```python
import torch

def _softmax(x, axis=-1):
    return torch.softmax(x, dim=axis)
def _gelu(x):
    return torch.nn.functional.gelu(x, approximate="tanh")
def _silu(x):
    return torch.nn.functional.silu(x)
def _sigmoid(x):
    return torch.sigmoid(x)
def _layernorm(x, axis=-1, eps=1e-5):
    m = x.mean(dim=axis, keepdim=True)
    v = x.var(dim=axis, keepdim=True, unbiased=False)
    return (x - m) / torch.sqrt(v + eps)
def _scatter_add(tgt, idx, src, axis=0):
    return tgt.clone().index_add_(axis, idx, src)
def _segment_sum(src, seg, n):
    out = torch.zeros((n,) + src.shape[1:], dtype=src.dtype)
    return out.index_add_(0, seg, src)
def _pad(x, pw):
    flat = tuple(v for pair in reversed(pw) for v in pair)
    return torch.nn.functional.pad(x, flat)

kernel_name = 'gated_mix__ssm_conv_s4__mixer_token_mlp__prompt'

def setup_inputs():

    _w = (lambda a: (lambda t: t.to(torch.bfloat16) if t.is_floating_point() else t)(torch.as_tensor(a)))
    def _A_setup():
        B, L, D, N = 1, 2048, 512, 128
        A_re = -(lambda _x: torch.exp(torch.as_tensor(_x)))((lambda *s: torch.randn(*s, dtype=torch.bfloat16) * 3.2)(D, N))
        A_im = torch.pi * (lambda *s: torch.randn(*s, dtype=torch.bfloat16) * 0.05)(D, N)
        B_re = (lambda *s: torch.randn(*s, dtype=torch.bfloat16) * 0.1)(D, N)
        B_im = (lambda *s: torch.randn(*s, dtype=torch.bfloat16) * 0.1)(D, N)
        C_re = (lambda *s: torch.randn(*s, dtype=torch.bfloat16) * 0.1)(D, N)
        C_im = (lambda *s: torch.randn(*s, dtype=torch.bfloat16) * 0.1)(D, N)
        log_dt = (lambda *s: torch.randn(*s, dtype=torch.bfloat16) * 0.05)(D) * 0.5 - 4.0
        Dskip = (lambda *s: torch.randn(*s, dtype=torch.bfloat16) * 0.05)(D)
        return {
            "u": _w((lambda *s: torch.randn(*s, dtype=torch.bfloat16) * 0.05)(B, L, D)),
            "A_re": _w(A_re),
            "A_im": _w(A_im),
            "B_re": _w(B_re),
            "B_im": _w(B_im),
            "C_re": _w(C_re),
            "C_im": _w(C_im),
            "log_dt": _w(log_dt),
            "Dskip": _w(Dskip),
        }
    _A_in = _A_setup()

    def _B_setup():
        B, S, D, F = 1, 2048, 512, 1792
        return {
            "x": _w((lambda *s: torch.randn(*s, dtype=torch.bfloat16) * 0.05)(B, S, D)),
            "w1": _w((lambda *s: torch.randn(*s, dtype=torch.bfloat16) * 0.2)(S, F) * (S ** -0.5)),
            "b1": _w((lambda *s: torch.randn(*s, dtype=torch.bfloat16) * 3.2)(F) * 0.02),
            "w2": _w((lambda *s: torch.randn(*s, dtype=torch.bfloat16) * 0.05)(F, S) * (F ** -0.5)),
            "b2": _w((lambda *s: torch.randn(*s, dtype=torch.bfloat16) * 0.1)(S) * 0.02),
        }
    _B_in = _B_setup()

    return {
        "A_u": _A_in["u"],
        "A_A_re": _A_in["A_re"],
        "A_A_im": _A_in["A_im"],
        "A_B_re": _A_in["B_re"],
        "A_B_im": _A_in["B_im"],
        "A_C_re": _A_in["C_re"],
        "A_C_im": _A_in["C_im"],
        "A_log_dt": _A_in["log_dt"],
        "A_Dskip": _A_in["Dskip"],
        "B_x": _B_in["x"],
        "B_w1": _B_in["w1"],
        "B_b1": _B_in["b1"],
        "B_w2": _B_in["w2"],
        "B_b2": _B_in["b2"],
        "gate_w": _w((lambda *s: torch.randn(*s, dtype=torch.bfloat16) * 0.05)(512) * 16.0),
    }

def reference(A_u, A_A_re, A_A_im, A_B_re, A_B_im, A_C_re, A_C_im, A_log_dt, A_Dskip, B_x, B_w1, B_b1, B_w2, B_b2, gate_w):
    def _A_ref(u, A_re, A_im, B_re, B_im, C_re, C_im, log_dt, Dskip):
        Bsz, L, D = u.shape
        dt = torch.exp(log_dt)[:, None]
        A = A_re + 1j * A_im
        Bc = B_re + 1j * B_im
        Cc = C_re + 1j * C_im
        logdA = dt * A
        dB = dt * Bc
        l = (lambda x, dt: x.to(dt))(torch.arange(L), A_re.dtype)
        P = torch.exp(logdA[:, :, None] * l[None, None, :])
        K = torch.einsum("dn,dnl,dn->dl", Cc, P, dB).real
        L2 = 2 * L
        Kp = _pad(K, ((0, 0), (0, L)))
        up = (lambda x, *d: x.permute(*d))(u, 0, 2, 1)
        up = _pad(up, ((0, 0), (0, 0), (0, L)))
        Kf = (lambda x, axes=(-2,-1): torch.fft.rfft2(x.float(), dim=axes))(Kp[:, None, :], axes=(-2, -1))
        Uf = (lambda x, axes=(-2,-1): torch.fft.rfft2(x.float(), dim=axes))(up[:, :, None, :], axes=(-2, -1))
        Yf = Uf * Kf[None, :, :, :]
        y = (lambda x, s, axes=(-2,-1): torch.fft.irfft2(x, s=s, dim=axes).to(torch.bfloat16))(Yf, (1, L2), axes=(-2, -1))[:, :, 0, :L]
        y = (lambda x, *d: x.permute(*d))(y, 0, 2, 1) + u * Dskip[None, None, :]
        return y

    def _B_ref(x, w1, b1, w2, b2):
        B, S, D = x.shape
        h = _layernorm(x, axis=-1)
        u = torch.einsum("bsd,sf->bdf", h, w1) + b1
        u = _gelu(u)
        y = torch.einsum("bdf,fs->bds", u, w2) + b2
        return (lambda x, *d: x.permute(*d))(y, 0, 2, 1)

    x = A_u
    g = _sigmoid((x * gate_w).sum(-1, keepdims=True))
    a = _A_ref(x, A_A_re, A_A_im, A_B_re, A_B_im, A_C_re, A_C_im, A_log_dt, A_Dskip)
    b = _B_ref(x, B_w1, B_b1, B_w2, B_b2)
    return g * a + (1 - g) * b
```

```python
import struct, sys

NAME = "gated_mix__ssm_conv_s4__mixer_token_mlp__prompt"

MB = 1 << 20
WS_HF = 0
WS_UF = 2 * MB
WS_GF = 4 * MB
WS_AF = 6 * MB
WS_GT = 8 * MB
WS_RK = 9 * MB
WS_SIZE = 268435456

NPREP = 64
HILO = True


def f32(x):
    return struct.unpack("<I", struct.pack("<f", x))[0]


class A:
    def __init__(self):
        self.L = []

    def __call__(self, s):
        self.L.append("    " + s)

    def lab(self, s):
        self.L.append(s + ":")

    def nop(self, n):
        while n > 0:
            k = min(n, 16)
            self("s_nop %d" % (k - 1))
            n -= k

    def c(self, s):
        self.L.append("    ; " + s)


def srd(a, d, base, nbytes, off=0):
    if off:
        a("s_add_u32 s%d, s%d, 0x%x" % (d, base, off))
        a("s_addc_u32 s%d, s%d, 0" % (d + 1, base + 1))
    else:
        a("s_mov_b32 s%d, s%d" % (d, base))
        a("s_mov_b32 s%d, s%d" % (d + 1, base + 1))
    a("s_mov_b32 s%d, 0x%x" % (d + 2, nbytes))
    a("s_mov_b32 s%d, 0x00020000" % (d + 3))


def bf16r(a, v):
    a("v_cvt_pk_bf16_f32 v%d, v%d, v%d" % (v, v, v))
    a("v_lshlrev_b32 v%d, 16, v%d" % (v, v))


def wave_reduce(a, regs):
    assert len(regs) >= 3
    steps = ["quad_perm:[1,0,3,2] row_mask:0xf bank_mask:0xf",
             "quad_perm:[2,3,0,1] row_mask:0xf bank_mask:0xf",
             "row_half_mirror row_mask:0xf bank_mask:0xf",
             "row_mirror row_mask:0xf bank_mask:0xf",
             "row_bcast:15 row_mask:0xa bank_mask:0xf",
             "row_bcast:31 row_mask:0xc bank_mask:0xf"]
    a.nop(2)
    for st in steps:
        for r in regs:
            a("v_add_f32_dpp v%d, v%d, v%d %s" % (r, r, r, st))
    a.nop(1)


def gen_prep(a):
    a.c("---- prep role: wave handles 8 rows")
    a("s_load_dwordx2 s[4:5], s[0:1], 0")
    a("s_load_dwordx2 s[6:7], s[0:1], 112")
    a("s_load_dwordx2 s[8:9], s[0:1], 136")
    a("v_lshrrev_b32 v1, 6, v0")
    a("v_and_b32 v2, 63, v0")
    a("v_readfirstlane_b32 s3, v1")
    a("s_waitcnt lgkmcnt(0)")
    srd(a, 12, 4, 2 * MB)
    srd(a, 16, 6, 1024)
    srd(a, 20, 8, WS_SIZE)
    a("s_lshl_b32 s24, s2, 2")
    a("s_add_u32 s24, s24, s3")
    a("s_lshl_b32 s25, s24, 13")
    a("s_add_u32 s26, s25, 4096")
    a("v_lshlrev_b32 v3, 4, v2")
    RAW = 16
    GWR = 48
    GW = 52
    XF = 64
    for r in range(8):
        a("buffer_load_dwordx4 v[%d:%d], v3, s[12:15], s%d offen offset:%d" %
          (RAW + 4 * r, RAW + 4 * r + 3, 25 if r < 4 else 26, (r & 3) * 1024))
    a("buffer_load_dwordx4 v[%d:%d], v3, s[16:19], 0 offen" % (GWR, GWR + 3))
    a("s_mov_b32 s27, 0xffff0000")
    a("s_waitcnt vmcnt(0)")
    for q in range(4):
        a("v_lshlrev_b32 v%d, 16, v%d" % (GW + 2 * q, GWR + q))
        a("v_and_b32 v%d, s27, v%d" % (GW + 2 * q + 1, GWR + q))
    for r in range(8):
        for q in range(4):
            a("v_lshlrev_b32 v%d, 16, v%d" % (XF + 8 * r + 2 * q, RAW + 4 * r + q))
            a("v_and_b32 v%d, s27, v%d" % (XF + 8 * r + 2 * q + 1, RAW + 4 * r + q))
    SUM = 128
    GD = 136
    T = 144
    for r in range(8):
        x = XF + 8 * r
        a("v_add_f32 v%d, v%d, v%d" % (SUM + r, x, x + 1))
        for i in range(2, 8):
            a("v_add_f32 v%d, v%d, v%d" % (SUM + r, SUM + r, x + i))
        for i in range(8):
            a("v_mul_f32 v%d, v%d, v%d" % (T + i, x + i, GW + i))
        for q in range(4):
            a("v_cvt_pk_bf16_f32 v%d, v%d, v%d" % (T + 8 + q, T + 2 * q, T + 2 * q + 1))
        for q in range(4):
            a("v_lshlrev_b32 v%d, 16, v%d" % (T + 2 * q, T + 8 + q))
            a("v_and_b32 v%d, s27, v%d" % (T + 2 * q + 1, T + 8 + q))
        a("v_add_f32 v%d, v%d, v%d" % (GD + r, T, T + 1))
        for i in range(2, 8):
            a("v_add_f32 v%d, v%d, v%d" % (GD + r, GD + r, T + i))
    wave_reduce(a, list(range(SUM, SUM + 16)))
    for r in range(16):
        a("v_readlane_b32 s%d, v%d, 63" % (32 + r, SUM + r))
    a("v_mov_b32 v4, 0x%x" % f32(1.0 / 512))
    a.nop(1)
    MEAN = 160
    VAR = 168
    for r in range(8):
        a("v_mul_f32 v%d, s%d, v4" % (MEAN + r, 32 + r))
    for r in range(8):
        x = XF + 8 * r
        for i in range(8):
            a("v_sub_f32 v%d, v%d, v%d" % (T + i, x + i, MEAN + r))
        a("v_mul_f32 v%d, v%d, v%d" % (VAR + r, T, T))
        for i in range(1, 8):
            a("v_fmac_f32 v%d, v%d, v%d" % (VAR + r, T + i, T + i))
    wave_reduce(a, list(range(VAR, VAR + 8)))
    for r in range(8):
        a("v_readlane_b32 s%d, v%d, 63" % (48 + r, VAR + r))
    for r in range(8):
        a("v_writelane_b32 v5, s%d, %d" % (40 + r, r))
    a.nop(1)
    for r in range(8):
        a("v_mul_f32 v%d, s%d, v4" % (VAR + r, 48 + r))
    a("v_mov_b32 v6, 0x%x" % f32(1e-5))
    for r in range(8):
        bf16r(a, VAR + r)
        bf16r(a, MEAN + r)
    for r in range(8):
        a("v_add_f32 v%d, v%d, v6" % (VAR + r, VAR + r))
    for r in range(8):
        bf16r(a, VAR + r)
    for r in range(8):
        a("v_sqrt_f32 v%d, v%d" % (VAR + r, VAR + r))
    a.nop(1)
    for r in range(8):
        bf16r(a, VAR + r)
    for r in range(8):
        a("v_rcp_f32 v%d, v%d" % (VAR + r, VAR + r))
    bf16r(a, 5)
    a("v_mul_f32 v5, 0x%x, v5" % f32(-1.4426950408889634))
    a("v_exp_f32 v5, v5")
    a.nop(1)
    a("v_add_f32 v5, 1.0, v5")
    a("v_rcp_f32 v5, v5")
    a.nop(1)
    bf16r(a, 5)
    a("v_lshrrev_b32 v7, 2, v2")
    a("v_lshlrev_b32 v7, 17, v7")
    a("v_and_b32 v8, 3, v2")
    a("v_lshl_add_u32 v7, v8, 7, v7")
    a("s_lshl_b32 s28, s24, 9")
    a("s_add_u32 s29, s28, 0x%x" % WS_UF)
    if WS_HF:
        a("s_add_u32 s28, s28, 0x%x" % WS_HF)
    PK = 176
    for i in range(8):
        for j in range(4):
            a("v_cvt_pk_bf16_f32 v%d, v%d, v%d" % (PK + 4 * i + j, XF + 8 * (2 * j) + i, XF + 8 * (2 * j + 1) + i))
    for i in range(8):
        a("buffer_store_dwordx4 v[%d:%d], v7, s[20:23], s29 offen offset:%d" % (PK + 4 * i, PK + 4 * i + 3, 16 * i))
    for r in range(8):
        x = XF + 8 * r
        for i in range(8):
            a("v_sub_f32 v%d, v%d, v%d" % (x + i, x + i, MEAN + r))
        for q in range(4):
            a("v_cvt_pk_bf16_f32 v%d, v%d, v%d" % (T + q, x + 2 * q, x + 2 * q + 1))
        for q in range(4):
            a("v_lshlrev_b32 v%d, 16, v%d" % (x + 2 * q, T + q))
            a("v_and_b32 v%d, s27, v%d" % (x + 2 * q + 1, T + q))
        for i in range(8):
            a("v_mul_f32 v%d, v%d, v%d" % (x + i, x + i, VAR + r))
    PK2 = 208
    for i in range(8):
        for j in range(4):
            a("v_cvt_pk_bf16_f32 v%d, v%d, v%d" % (PK2 + 4 * i + j, XF + 8 * (2 * j) + i, XF + 8 * (2 * j + 1) + i))
    for i in range(8):
        a("buffer_store_dwordx4 v[%d:%d], v7, s[20:23], s28 offen offset:%d" % (PK2 + 4 * i, PK2 + 4 * i + 3, 16 * i))
    a("s_lshl_b32 s30, s24, 5")
    a("s_add_u32 s30, s30, 0x%x" % WS_GT)
    a("v_lshlrev_b32 v9, 2, v2")
    a("s_mov_b64 exec, 0xff")
    a("buffer_store_dword v5, v9, s[20:23], s30 offen")
    a("s_endpgm")


def gen_kgen(a):
    a.c("---- kgen role: one channel per workgroup")
    a("s_sub_u32 s2, s2, %d" % NPREP)
    a("s_load_dwordx4 s[4:7], s[0:1], 8")
    a("s_load_dwordx4 s[8:11], s[0:1], 24")
    a("s_load_dwordx4 s[12:15], s[0:1], 40")
    a("s_load_dwordx2 s[16:17], s[0:1], 56")
    a("s_load_dwordx2 s[18:19], s[0:1], 136")
    a("v_lshrrev_b32 v1, 6, v0")
    a("v_and_b32 v2, 63, v0")
    a("v_readfirstlane_b32 s3, v1")
    a("s_waitcnt lgkmcnt(0)")
    for k in range(6):
        srd(a, 24 + 4 * k, 4 + 2 * k, 131072)
    srd(a, 48, 16, 1024)
    srd(a, 52, 18, WS_SIZE)
    a("s_lshl_b32 s20, s2, 8")
    a("s_lshl_b32 s21, s2, 1")
    a("s_cmp_ge_u32 s3, 2")
    a("s_cbranch_scc1 L_kg_p1done")
    a("v_lshlrev_b32 v3, 1, v0")
    for k in range(6):
        a("buffer_load_ushort v%d, v3, s[%d:%d], s20 offen" % (10 + k, 24 + 4 * k, 27 + 4 * k))
    a("v_mov_b32 v4, 0")
    a("buffer_load_ushort v16, v4, s[48:51], s21 offen")
    a("s_waitcnt vmcnt(0)")
    for k in range(7):
        a("v_lshlrev_b32 v%d, 16, v%d" % (10 + k, 10 + k))
    a("v_mul_f32 v16, 0x%x, v16" % f32(1.4426950408889634))
    a("v_exp_f32 v16, v16")
    a.nop(1)
    bf16r(a, 16)
    a("v_mul_f32 v20, v16, v10")
    a("v_mul_f32 v21, v16, v11")
    a("v_mul_f32 v20, 0x%x, v20" % f32(1.4426950408889634))
    a("v_mul_f32 v21, 0x%x, v21" % f32(0.15915494309189535))
    a("v_mul_f32 v12, v16, v12")
    a("v_mul_f32 v13, v16, v13")
    a("v_mul_f32 v22, v14, v12")
    a("v_mul_f32 v23, v14, v13")
    a("v_fma_f32 v22, -v15, v13, v22")
    a("v_fma_f32 v23, v15, v12, v23")
    a("v_lshlrev_b32 v3, 4, v0")
    a("ds_write_b128 v3, v[20:23]")
    a.lab("L_kg_p1done")
    a("s_waitcnt lgkmcnt(0)")
    a("s_barrier")
    a("v_and_b32 v3, 15, v2")
    a("v_lshrrev_b32 v4, 4, v2")
    a("v_lshlrev_b32 v5, s3, v3")
    a("v_cvt_f32_u32 v5, v5")
    a("s_cmp_eq_u32 s3, 0")
    a("s_cselect_b32 s22, 0, 8")
    a("s_add_u32 s23, s3, 4")
    a("v_add_u32 v6, s22, v3")
    a("v_lshlrev_b32 v6, s23, v6")
    a("v_cvt_f32_u32 v6, v6")
    a("v_lshlrev_b32 v7, 6, v4")
    a("s_mov_b32 s27, 0xffff0000")
    PRM = 16
    AH, BH, AL, BL = 32, 36, 40, 44
    T = 48
    D = 64
    for kap in range(8):
        for t in range(4):
            a("ds_read_b128 v[%d:%d], v7 offset:%d" % (PRM + 4 * t, PRM + 4 * t + 3, (16 * kap + t) * 16))
        for t in range(4):
            if t == 0:
                a("s_waitcnt lgkmcnt(3)")
            elif t == 1:
                a("s_waitcnt lgkmcnt(2)")
            elif t == 2:
                a("s_waitcnt lgkmcnt(1)")
            else:
                a("s_waitcnt lgkmcnt(0)")
            zr, zi, cr, ci = PRM + 4 * t, PRM + 4 * t + 1, PRM + 4 * t + 2, PRM + 4 * t + 3
            a("v_mul_f32 v%d, v%d, v5" % (T + 0, zr))
            a("v_mul_f32 v%d, v%d, v5" % (T + 1, zi))
            a("v_mul_f32 v%d, v%d, v6" % (T + 2, zr))
            a("v_mul_f32 v%d, v%d, v6" % (T + 3, zi))
            a("v_fract_f32 v%d, v%d" % (T + 1, T + 1))
            a("v_fract_f32 v%d, v%d" % (T + 3, T + 3))
            a("v_exp_f32 v%d, v%d" % (T + 0, T + 0))
            a("v_exp_f32 v%d, v%d" % (T + 2, T + 2))
            a("v_cos_f32 v%d, v%d" % (T + 4, T + 1))
            a("v_sin_f32 v%d, v%d" % (T + 5, T + 1))
            a("v_cos_f32 v%d, v%d" % (T + 6, T + 3))
            a("v_sin_f32 v%d, v%d" % (T + 7, T + 3))
            a("v_mul_f32 v%d, v%d, v%d" % (T + 4, T + 0, T + 4))
            a("v_mul_f32_e64 v%d, -v%d, v%d" % (T + 5, T + 0, T + 5))
            a("v_mul_f32 v%d, v%d, v%d" % (T + 6, T + 2, T + 6))
            a("v_mul_f32 v%d, v%d, v%d" % (T + 7, T + 2, T + 7))
            a("v_mul_f32 v%d, v%d, v%d" % (T + 8, cr, T + 6))
            a("v_mul_f32 v%d, v%d, v%d" % (T + 9, cr, T + 7))
            a("v_fma_f32 v%d, -v%d, v%d, v%d" % (T + 8, ci, T + 7, T + 8))
            a("v_fma_f32 v%d, v%d, v%d, v%d" % (T + 9, ci, T + 6, T + 9))
            a("v_cvt_pk_bf16_f32 v%d, v%d, v%d" % (BH + t, T + 4, T + 5))
            a("v_cvt_pk_bf16_f32 v%d, v%d, v%d" % (AH + t, T + 8, T + 9))
            if HILO:
                a("v_lshlrev_b32 v%d, 16, v%d" % (T + 10, BH + t))
                a("v_and_b32 v%d, s27, v%d" % (T + 11, BH + t))
                a("v_lshlrev_b32 v%d, 16, v%d" % (T + 12, AH + t))
                a("v_and_b32 v%d, s27, v%d" % (T + 13, AH + t))
                a("v_sub_f32 v%d, v%d, v%d" % (T + 4, T + 4, T + 10))
                a("v_sub_f32 v%d, v%d, v%d" % (T + 5, T + 5, T + 11))
                a("v_sub_f32 v%d, v%d, v%d" % (T + 8, T + 8, T + 12))
                a("v_sub_f32 v%d, v%d, v%d" % (T + 9, T + 9, T + 13))
                a("v_cvt_pk_bf16_f32 v%d, v%d, v%d" % (BL + t, T + 4, T + 5))
                a("v_cvt_pk_bf16_f32 v%d, v%d, v%d" % (AL + t, T + 8, T + 9))
        a.nop(2)
        c0 = "0" if kap == 0 else "v[%d:%d]" % (D, D + 3)
        a("v_mfma_f32_16x16x32_bf16 v[%d:%d], v[%d:%d], v[%d:%d], %s" % (D, D + 3, AH, AH + 3, BH, BH + 3, c0))
        if HILO:
            a("v_mfma_f32_16x16x32_bf16 v[%d:%d], v[%d:%d], v[%d:%d], v[%d:%d]" % (D, D + 3, AH, AH + 3, BL, BL + 3, D, D + 3))
            a("v_mfma_f32_16x16x32_bf16 v[%d:%d], v[%d:%d], v[%d:%d], v[%d:%d]" % (D, D + 3, AL, AL + 3, BH, BH + 3, D, D + 3))
    a("s_lshl_b32 s22, s3, 7")
    a("s_add_u32 s22, s22, 128")
    a("s_cmp_eq_u32 s3, 0")
    a("s_cselect_b32 s22, 0, s22")
    a("s_mov_b32 s23, 128")
    a("s_cselect_b32 s23, 256, s23")
    a("s_cmp_eq_u32 s3, 3")
    a("s_cselect_b32 s23, 129, s23")
    a("v_lshl_add_u32 v8, v4, 6, v3")
    a.nop(8)
    for reg in range(4):
        a("v_add_u32 v9, %d, v8" % (16 * reg))
        a("v_cmp_gt_u32 vcc, s23, v9")
        a("v_add_u32 v9, s22, v9")
        a("v_lshlrev_b32 v9, 2, v9")
        a("s_and_saveexec_b64 s[56:57], vcc")
        a("ds_write_b32 v9, v%d offset:2048" % (D + reg))
        a("s_mov_b64 exec, s[56:57]")
    a("s_waitcnt lgkmcnt(0)")
    a("s_barrier")
    a("v_lshlrev_b32 v3, 3, v0")
    a("v_sub_u32 v3, 2047, v3")
    a("s_mov_b32 s22, 0xffff")
    a("s_mov_b32 s23, %d" % (0x4300 - 128))
    for j in range(8):
        a("v_subrev_u32 v%d, %d, v3" % (16 + j, j))
        a("v_cvt_f32_u32 v%d, v%d" % (24 + j, 16 + j))
    for j in range(8):
        a("v_cvt_pk_bf16_f32 v%d, v%d, v%d" % (24 + j, 24 + j, 24 + j))
    for j in range(8):
        a("v_and_b32 v%d, s22, v%d" % (24 + j, 24 + j))
        a("v_subrev_u32 v%d, s23, v%d" % (24 + j, 24 + j))
    for j in range(8):
        a("v_cmp_gt_u32 vcc, 128, v%d" % (16 + j))
        a.nop(2)
        a("v_cndmask_b32 v%d, v%d, v%d, vcc" % (24 + j, 24 + j, 16 + j))
        a("v_lshlrev_b32 v%d, 2, v%d" % (24 + j, 24 + j))
    for j in range(8):
        a("ds_read_b32 v%d, v%d offset:2048" % (32 + j, 24 + j))
    a("s_waitcnt lgkmcnt(0)")
    for q in range(4):
        a("v_cvt_pk_bf16_f32 v%d, v%d, v%d" % (40 + q, 32 + 2 * q, 33 + 2 * q))
    a("s_lshl_b32 s22, s2, 12")
    a("s_add_u32 s22, s22, 0x%x" % WS_RK)
    a("v_lshlrev_b32 v3, 4, v0")
    a("buffer_store_dwordx4 v[40:43], v3, s[52:55], s22 offen")
    a("s_endpgm")


CP = 4416
UB = 8 * CP
UP = 144
CONV_LDS = UB + 64 * UP


def gen_conv(a, first_wg):
    a.c("---- conv role: one channel per workgroup")
    a("s_sub_u32 s2, s2, %d" % first_wg)
    a("s_load_dwordx2 s[4:5], s[0:1], 136")
    a("s_load_dwordx2 s[6:7], s[0:1], 64")
    a("v_lshrrev_b32 v1, 6, v0")
    a("v_and_b32 v2, 63, v0")
    a("v_readfirstlane_b32 s3, v1")
    a("s_waitcnt lgkmcnt(0)")
    srd(a, 8, 4, WS_SIZE)
    a("s_lshl_b32 s20, s2, 12")
    a("s_add_u32 s20, s20, 0x%x" % WS_RK)
    a("s_add_u32 s12, s4, s20")
    a("s_addc_u32 s13, s5, 0")
    a("s_mov_b32 s14, 4096")
    a("s_mov_b32 s15, 0x00020000")
    srd(a, 16, 6, 1024)
    a("v_lshlrev_b32 v3, 4, v0")
    a("buffer_load_dwordx4 v[8:11], v3, s[12:15], 0 offen")
    a("buffer_load_dwordx4 v[12:15], v3, s[12:15], 0 offen offset:16")
    a("s_lshr_b32 s21, s2, 5")
    a("s_lshl_b32 s21, s21, 17")
    a("s_and_b32 s22, s2, 31")
    a("s_lshl_b32 s22, s22, 4")
    a("s_add_u32 s21, s21, s22")
    a("s_add_u32 s22, s21, 0x%x" % WS_UF)
    a("s_add_u32 s23, s21, 0x%x" % WS_AF)
    a("v_lshlrev_b32 v4, 9, v0")
    a("buffer_load_dwordx4 v[16:19], v4, s[8:11], s22 offen")
    a("v_lshlrev_b32 v5, 5, v0")
    a("s_mov_b32 s24, 0x%x" % WS_GT)
    a("buffer_load_dwordx4 v[112:115], v5, s[8:11], s24 offen")
    a("buffer_load_dwordx4 v[116:119], v5, s[8:11], s24 offen offset:16")
    a("s_lshl_b32 s25, s2, 1")
    a("v_mov_b32 v6, 0")
    a("buffer_load_ushort v120, v6, s[16:19], s25 offen")
    for k in range(4):
        a("v_mov_b32 v%d, 0" % (48 + k))
    a("ds_write_b128 v3, v[48:51] offset:%d" % UB)
    a("v_cmp_gt_u32 vcc, 32, v0")
    a("s_and_saveexec_b64 s[26:27], vcc")
    a("ds_write_b128 v3, v[48:51] offset:%d" % (UB + 4096))
    a("s_mov_b64 exec, 0xff")
    a("s_and_b64 exec, exec, vcc")
    for s in range(8):
        a("ds_write_b128 v3, v[48:51] offset:%d" % (s * CP + 4096))
    a("s_mov_b64 exec, s[26:27]")
    a("v_lshrrev_b32 v6, 3, v0")
    a("v_mul_u32_u24 v6, %d, v6" % UP)
    a("v_and_b32 v7, 7, v0")
    a("v_lshl_add_u32 v6, v7, 4, v6")
    a("s_waitcnt vmcnt(4)")
    for k in range(1, 8):
        a("v_mov_b32 v%d, v%d" % (21 + k, 8 + k))
    for k in range(7):
        a("v_alignbit_b32 v%d, v%d, v%d, 16" % (30 + k, 9 + k, 8 + k))
    for k in range(1, 7):
        a("v_alignbit_b32 v%d, v%d, v%d, 16" % (39 + k, 9 + k, 8 + k))
    src = {0: 8, 2: 22, 4: 10, 6: 24, 1: 30, 3: 40, 5: 32, 7: 42}
    for s in range(8):
        a("ds_write_b128 v3, v[%d:%d] offset:%d" % (src[s], src[s] + 3, s * CP))
    a("s_waitcnt vmcnt(3)")
    a("ds_write_b128 v6, v[16:19] offset:%d" % (UB + 32 * UP))
    a("v_and_b32 v20, 31, v2")
    a("v_lshrrev_b32 v21, 5, v2")
    a("v_and_b32 v22, 7, v20")
    a("v_sub_u32 v22, 7, v22")
    a("v_mul_u32_u24 v22, %d, v22" % CP)
    a("v_lshrrev_b32 v23, 3, v20")
    a("v_sub_u32 v23, v21, v23")
    a("v_lshl_add_u32 v22, v23, 4, v22")
    a("s_lshl_b32 s28, s3, 10")
    a("s_sub_u32 s28, %d, s28" % (16 * 255 - 128 * 7 - 64))
    a("v_add_u32 v22, s28, v22")
    a("v_mul_u32_u24 v23, %d, v20" % UP)
    a("v_lshl_add_u32 v23, v21, 4, v23")
    a("s_mul_i32 s29, s3, %d" % (8 * UP))
    a("s_sub_u32 s29, %d, s29" % (UB + UP * 25))
    a("v_add_u32 v23, s29, v23")
    a("s_waitcnt lgkmcnt(0)")
    a("s_barrier")
    ACC = [64, 80]
    FA = [24 + 4 * k for k in range(10)]
    FB = [[96 + 4 * k for k in range(4)], [128 + 4 * k for k in range(4)]]
    free = list(range(10))
    cur = {}

    def loadA(dl, rel):
        sl = free.pop(0)
        a("ds_read_b128 v[%d:%d], v22 offset:%d" % (FA[sl], FA[sl] + 3, 128 * (7 - dl) + 64 - 2 * rel))
        return sl

    def loadB(dl):
        for k in range(4):
            a("ds_read_b128 v[%d:%d], v23 offset:%d" % (FB[dl & 1][k], FB[dl & 1][k] + 3, UP * (7 - dl) + 32 * k))

    for rel in (-48, -32, -16, 0, 16, 32):
        cur[rel] = loadA(0, rel)
    loadB(0)
    for dl in range(8):
        nxt = {}
        if dl < 7:
            nxt[-48] = cur[16]
            nxt[-32] = cur[32]
            for rel in (-16, 0, 16, 32):
                nxt[rel] = loadA(dl + 1, rel)
            loadB(dl + 1)
            a("s_waitcnt lgkmcnt(8)")
        else:
            a("s_waitcnt lgkmcnt(0)")
        for k in range(4):
            for beta in range(2):
                rel = 32 * beta - 16 * k
                c = "0" if (dl == 0 and k == 0) else "v[%d:%d]" % (ACC[beta], ACC[beta] + 15)
                a("v_mfma_f32_32x32x16_bf16 v[%d:%d], v[%d:%d], v[%d:%d], %s" %
                  (ACC[beta], ACC[beta] + 15, FA[cur[rel]], FA[cur[rel]] + 3, FB[dl & 1][k], FB[dl & 1][k] + 3, c))
        for rel in (-48, -32, -16, 0):
            free.append(cur[rel])
        cur = nxt
    a("v_mul_u32_u24 v24, 272, v20")
    a("v_lshl_add_u32 v24, v21, 4, v24")
    a("s_mul_i32 s28, s3, 8704")
    a("v_add_u32 v24, s28, v24")
    a("s_barrier")
    a.nop(8)
    for beta in range(2):
        for rq in range(4):
            a("ds_write_b128 v24, v[%d:%d] offset:%d" % (ACC[beta] + 4 * rq, ACC[beta] + 4 * rq + 3, (32 * beta + 8 * rq) * 4))
    a("v_lshrrev_b32 v25, 3, v0")
    a("v_mul_u32_u24 v25, 272, v25")
    a("v_and_b32 v26, 7, v0")
    a("v_lshl_add_u32 v25, v26, 5, v25")
    a("s_waitcnt lgkmcnt(0)")
    a("s_barrier")
    for w in range(4):
        a("ds_read_b128 v[%d:%d], v25 offset:%d" % (32 + 8 * w, 35 + 8 * w, w * 8704))
        a("ds_read_b128 v[%d:%d], v25 offset:%d" % (36 + 8 * w, 39 + 8 * w, w * 8704 + 16))
    a("s_mov_b32 s27, 0xffff0000")
    a("s_waitcnt vmcnt(0)")
    a("v_lshlrev_b32 v120, 16, v120")
    for q in range(4):
        a("v_lshlrev_b32 v%d, 16, v%d" % (64 + 2 * q, 16 + q))
        a("v_and_b32 v%d, s27, v%d" % (65 + 2 * q, 16 + q))
    for j in range(8):
        a("v_mul_f32 v%d, v%d, v120" % (64 + j, 64 + j))
    for q in range(4):
        a("v_cvt_pk_bf16_f32 v%d, v%d, v%d" % (72 + q, 64 + 2 * q, 65 + 2 * q))
    for q in range(4):
        a("v_lshlrev_b32 v%d, 16, v%d" % (64 + 2 * q, 72 + q))
        a("v_and_b32 v%d, s27, v%d" % (65 + 2 * q, 72 + q))
    a("s_waitcnt lgkmcnt(0)")
    for j in range(8):
        a("v_add_f32 v%d, v%d, v%d" % (32 + j, 32 + j, 40 + j))
        a("v_add_f32 v%d, v%d, v%d" % (48 + j, 48 + j, 56 + j))
    for j in range(8):
        a("v_add_f32 v%d, v%d, v%d" % (32 + j, 32 + j, 48 + j))
    for q in range(4):
        a("v_cvt_pk_bf16_f32 v%d, v%d, v%d" % (72 + q, 32 + 2 * q, 33 + 2 * q))
    for q in range(4):
        a("v_lshlrev_b32 v%d, 16, v%d" % (32 + 2 * q, 72 + q))
        a("v_and_b32 v%d, s27, v%d" % (33 + 2 * q, 72 + q))
    for j in range(8):
        a("v_add_f32 v%d, v%d, v%d" % (32 + j, 32 + j, 64 + j))
    for q in range(4):
        a("v_cvt_pk_bf16_f32 v%d, v%d, v%d" % (72 + q, 32 + 2 * q, 33 + 2 * q))
    for q in range(4):
        a("v_lshlrev_b32 v%d, 16, v%d" % (32 + 2 * q, 72 + q))
        a("v_and_b32 v%d, s27, v%d" % (33 + 2 * q, 72 + q))
    for j in range(8):
        a("v_mul_f32 v%d, v%d, v%d" % (32 + j, 32 + j, 112 + j))
    for q in range(4):
        a("v_cvt_pk_bf16_f32 v%d, v%d, v%d" % (72 + q, 32 + 2 * q, 33 + 2 * q))
    a("buffer_store_dwordx4 v[72:75], v4, s[8:11], s23 offen")
    a("s_endpgm")


PPITCH = 272
PSZ = 64 * PPITCH
NS = 4
PD = 3
GEMM_LDS = 4 * PSZ
TP = 144
GEMM2_LDS = GEMM_LDS + 64 * TP


def gen_gemm(a, which):
    g1 = (which == 1)
    NOCT = 256 if g1 else 224
    S = 16 if g1 else 14
    PW = 3584 if g1 else 4096
    WOFF = 80 if g1 else 96
    WBYTES = 2048 * 1792 * 2
    DOFF = WS_HF if g1 else WS_GF
    TPITCH = NOCT * 512
    NQ = 28 if g1 else 32
    a.c("---- gemm%d role" % which)
    a("s_load_dwordx2 s[4:5], s[0:1], %d" % WOFF)
    a("s_load_dwordx2 s[6:7], s[0:1], 136")
    a("s_load_dwordx2 s[36:37], s[0:1], %d" % (88 if g1 else 104))
    if not g1:
        a("s_load_dwordx2 s[38:39], s[0:1], 120")
    a("v_lshrrev_b32 v1, 6, v0")
    a("v_and_b32 v2, 63, v0")
    a("v_readfirstlane_b32 s3, v1")
    a("s_and_b32 s20, s2, 7")
    a("s_lshr_b32 s21, s2, 3")
    a("s_mul_i32 s20, s20, %d" % NQ)
    a("s_add_u32 s20, s20, s21")
    a("s_lshr_b32 s21, s20, 3")
    a("s_and_b32 s22, s20, 7")
    a("s_waitcnt lgkmcnt(0)")
    srd(a, 8, 4, WBYTES)
    srd(a, 12, 6, WS_SIZE)
    srd(a, 40, 36, 3584 if g1 else 4096)
    if not g1:
        srd(a, 44, 38, 2 * MB)
    a("s_mul_i32 s23, s22, %d" % (2 * TPITCH))
    a("s_mul_i32 s24, s3, %d" % (S * 2048))
    a("s_add_u32 s23, s23, s24")
    a("s_add_u32 s23, s23, 0x%x" % DOFF)
    a("v_lshlrev_b32 v3, 4, v2")
    a("v_add_u32 v4, %d, v3" % TPITCH)
    a("v_lshrrev_b32 v5, 3, v2")
    a("v_and_b32 v6, 7, v2")
    a("v_lshlrev_b32 v7, 1, v5")
    a("v_and_b32 v7, 4, v7")
    a("v_xor_b32 v6, v6, v7")
    a("v_mul_u32_u24 v5, %d, v5" % PW)
    a("v_lshl_add_u32 v5, v6, 4, v5")
    a("s_lshl_b32 s24, s21, 7")
    a("v_add_u32 v5, s24, v5")
    a("s_mul_i32 s25, s3, %d" % (S * 32 * PW))
    a("s_lshl_b32 s26, s3, 14")
    a("v_lshrrev_b32 v8, 4, v2")
    a("v_and_b32 v9, 15, v2")
    a("v_lshrrev_b32 v10, 2, v9")
    a("v_and_b32 v11, 3, v9")
    a("v_lshrrev_b32 v12, 1, v8")
    a("v_lshl_add_u32 v12, v12, 3, v10")
    a("v_lshlrev_b32 v12, 7, v12")
    a("v_and_b32 v13, 1, v8")
    a("v_lshlrev_b32 v13, 1, v13")
    a("v_lshrrev_b32 v14, 1, v11")
    a("v_add_u32 v13, v13, v14")
    a("v_lshlrev_b32 v14, 1, v10")
    a("v_and_b32 v14, 4, v14")
    a("v_xor_b32 v13, v13, v14")
    a("v_lshl_add_u32 v12, v13, 4, v12")
    a("v_and_b32 v14, 1, v11")
    a("v_lshl_add_u32 v12, v14, 3, v12")
    a("v_add_u32 v12, s26, v12")
    a("v_xor_b32 v13, 64, v12")
    if not g1:
        a("s_lshl_b32 s30, s22, 18")
        a("s_lshl_b32 s31, s21, 12")
        a("s_add_u32 s30, s30, s31")
        a("s_add_u32 s30, s30, 0x%x" % WS_AF)
        a("s_add_u32 s31, s30, 131072")
        a("v_lshlrev_b32 v15, 4, v0")
        a("buffer_load_dwordx4 v[240:243], v15, s[12:15], s30 offen")
        a("buffer_load_dwordx4 v[244:247], v15, s[12:15], s31 offen")
    ACC = [[16, 32], [48, 64]]
    DF = [80 + 16 * k for k in range(NS)]
    WF = 144

    def issue(st):
        sl = st % NS
        for q in range(4):
            a("s_add_u32 m0, s26, %d" % (sl * 4096 + q * 1024))
            a("s_add_u32 s27, s25, %d" % ((32 * st + 8 * q) * PW))
            a("buffer_load_dwordx4 v5, s[8:11], s27 offen lds")
        a("s_add_u32 s28, s23, %d" % (st * 2048))
        for t in range(2):
            for kl in range(2):
                r = DF[sl] + 8 * t + 4 * kl
                a("buffer_load_dwordx4 v[%d:%d], v%d, s[12:15], s28 offen offset:%d" % (r, r + 3, 3 + t, kl * 1024))

    for st in range(min(PD, S)):
        issue(st)
    for st in range(S):
        later = min(S - 1, st + PD - 1) - st
        a("s_waitcnt vmcnt(%d)" % (8 * later))
        sl = st % NS
        for kl in range(2):
            for nu in range(2):
                for h in range(2):
                    r = WF + 8 * nu + 4 * kl + 2 * h
                    a("ds_read_b64_tr_b16 v[%d:%d], v%d offset:%d" % (r, r + 1, 12 + nu, sl * 4096 + kl * 2048 + h * 512))
        if st + PD < S:
            issue(st + PD)
        for kl in range(2):
            a("s_waitcnt lgkmcnt(%d)" % (4 if kl == 0 else 0))
            for nu in range(2):
                for t in range(2):
                    wf = WF + 8 * nu + 4 * kl
                    df = DF[sl] + 8 * t + 4 * kl
                    if g1:
                        acc = ACC[nu][t]
                        A_, B_ = wf, df
                    else:
                        acc = ACC[t][nu]
                        A_, B_ = df, wf
                    c = "0" if (st == 0 and kl == 0) else "v[%d:%d]" % (acc, acc + 15)
                    a("v_mfma_f32_32x32x16_bf16 v[%d:%d], v[%d:%d], v[%d:%d], %s" % (acc, acc + 15, A_, A_ + 3, B_, B_ + 3, c))
    a("v_and_b32 v6, 31, v2")
    a("v_lshrrev_b32 v7, 5, v2")
    a("v_mul_u32_u24 v8, %d, v6" % PPITCH)
    a("v_lshl_add_u32 v8, v7, 4, v8")
    a("s_mul_i32 s28, s3, %d" % PSZ)
    a("v_add_u32 v8, s28, v8")
    a("s_barrier")
    a.nop(6)
    for mt in range(2):
        for nt in range(2):
            for rq in range(4):
                r = ACC[mt][nt] + 4 * rq
                a("ds_write_b128 v8, v[%d:%d] offset:%d" % (r, r + 3, nt * 32 * PPITCH + (32 * mt + 8 * rq) * 4))
    a("s_mov_b32 s27, 0xffff0000")
    if g1:
        a("s_lshr_b32 s29, s3, 1")
        a("s_and_b32 s30, s3, 1")
        a("s_lshl_b32 s30, s30, 2")
        a("v_add_u32 v9, s30, v7")
        a("s_lshl_b32 s31, s29, 5")
        a("v_add_u32 v10, s31, v6")
        a("v_mul_u32_u24 v10, %d, v10" % PPITCH)
        a("v_lshl_add_u32 v10, v9, 5, v10")
        a("s_lshl_b32 s31, s21, 7")
        a("v_lshlrev_b32 v11, 4, v9")
        a("buffer_load_dwordx4 v[144:147], v11, s[40:43], s31 offen")
        a("buffer_load_dwordx4 v[148:151], v11, s[40:43], s31 offen offset:32")
        a("s_lshl_b32 s32, s22, 1")
        a("s_add_u32 s32, s32, s29")
        a("s_mul_i32 s32, s32, %d" % (224 * 512))
        a("s_lshl_b32 s33, s21, 12")
        a("s_add_u32 s32, s32, s33")
        a("s_add_u32 s32, s32, 0x%x" % WS_GF)
        a("v_lshlrev_b32 v11, 9, v9")
        a("v_lshl_add_u32 v11, v6, 4, v11")
        a("s_waitcnt lgkmcnt(0)")
        a("s_barrier")
        for p in range(2):
            for w in range(4):
                a("ds_read_b128 v[%d:%d], v10 offset:%d" % (80 + 32 * p + 8 * w, 83 + 32 * p + 8 * w, w * PSZ + 64 * p))
                a("ds_read_b128 v[%d:%d], v10 offset:%d" % (84 + 32 * p + 8 * w, 87 + 32 * p + 8 * w, w * PSZ + 64 * p + 16))
        a("s_waitcnt vmcnt(0)")
        for p in range(2):
            R = 80 + 32 * p
            a("s_waitcnt lgkmcnt(%d)" % (8 if p == 0 else 0))
            for j in range(8):
                a("v_add_f32 v%d, v%d, v%d" % (R + j, R + j, R + 8 + j))
                a("v_add_f32 v%d, v%d, v%d" % (R + 16 + j, R + 16 + j, R + 24 + j))
            for j in range(8):
                a("v_add_f32 v%d, v%d, v%d" % (R + j, R + j, R + 16 + j))
            for q in range(4):
                a("v_cvt_pk_bf16_f32 v%d, v%d, v%d" % (R + 8 + q, R + 2 * q, R + 2 * q + 1))
            for q in range(4):
                a("v_lshlrev_b32 v%d, 16, v%d" % (R + 2 * q, R + 8 + q))
                a("v_and_b32 v%d, s27, v%d" % (R + 2 * q + 1, R + 8 + q))
                a("v_lshlrev_b32 v%d, 16, v%d" % (R + 16 + 2 * q, 144 + 4 * p + q))
                a("v_and_b32 v%d, s27, v%d" % (R + 17 + 2 * q, 144 + 4 * p + q))
            for j in range(8):
                a("v_add_f32 v%d, v%d, v%d" % (R + j, R + j, R + 16 + j))
            for q in range(4):
                a("v_cvt_pk_bf16_f32 v%d, v%d, v%d" % (R + 8 + q, R + 2 * q, R + 2 * q + 1))
            for q in range(4):
                a("v_lshlrev_b32 v%d, 16, v%d" % (R + 2 * q, R + 8 + q))
                a("v_and_b32 v%d, s27, v%d" % (R + 2 * q + 1, R + 8 + q))
            k1 = -2.0 * 0.7978845608028654 * 1.4426950408889634
            a("s_mov_b32 s33, 0x%x" % f32(k1))
            a("s_mov_b32 s34, 0x%x" % f32(k1 * 0.044715))
            for j in range(8):
                a("v_mul_f32 v%d, v%d, v%d" % (R + 8 + j, R + j, R + j))
            a("v_mov_b32 v12, s33")
            for j in range(8):
                a("v_fma_f32 v%d, v%d, s34, v12" % (R + 8 + j, R + 8 + j))
            for j in range(8):
                a("v_mul_f32 v%d, v%d, v%d" % (R + 8 + j, R + 8 + j, R + j))
            for j in range(8):
                a("v_exp_f32 v%d, v%d" % (R + 8 + j, R + 8 + j))
            for j in range(8):
                a("v_add_f32 v%d, 1.0, v%d" % (R + 8 + j, R + 8 + j))
            for j in range(8):
                a("v_rcp_f32 v%d, v%d" % (R + 8 + j, R + 8 + j))
            for j in range(8):
                a("v_mul_f32 v%d, v%d, v%d" % (R + j, R + j, R + 8 + j))
            for q in range(4):
                a("v_cvt_pk_bf16_f32 v%d, v%d, v%d" % (R + 16 + q, R + 2 * q, R + 2 * q + 1))
            a("buffer_store_dwordx4 v[%d:%d], v11, s[12:15], s32 offen offset:%d" % (R + 16, R + 19, 1024 * p))
        a("s_endpgm")
    else:
        a("v_and_b32 v9, 31, v0")
        a("v_mul_u32_u24 v9, %d, v9" % TP)
        a("v_lshrrev_b32 v10, 5, v0")
        a("v_lshl_add_u32 v9, v10, 4, v9")
        a("v_add_u32 v9, %d, v9" % GEMM_LDS)
        a("s_waitcnt vmcnt(0)")
        a("ds_write_b128 v9, v[240:243]")
        a("ds_write_b128 v9, v[244:247] offset:%d" % (32 * TP))
        a("v_lshrrev_b32 v9, 4, v2")
        a("v_and_b32 v10, 15, v2")
        a("s_lshl_b32 s29, s3, 4")
        a("v_add_u32 v11, s29, v10")
        a("v_mul_u32_u24 v12, %d, v11" % PPITCH)
        a("v_lshl_add_u32 v12, v9, 5, v12")
        a("v_lshrrev_b32 v13, 2, v10")
        a("v_lshl_add_u32 v13, v9, 3, v13")
        a("v_mul_u32_u24 v13, %d, v13" % TP)
        a("v_and_b32 v14, 3, v10")
        a("v_lshl_add_u32 v13, v14, 3, v13")
        a("s_lshl_b32 s30, s3, 5")
        a("s_add_u32 s30, s30, %d" % GEMM_LDS)
        a("v_add_u32 v13, s30, v13")
        a("s_lshl_b32 s31, s21, 6")
        a("v_add_u32 v14, s31, v11")
        a("v_lshlrev_b32 v15, 2, v14")
        a("s_mov_b32 s32, 0x%x" % WS_GT)
        a("buffer_load_dword v144, v15, s[12:15], s32 offen")
        a("v_lshlrev_b32 v15, 1, v14")
        a("buffer_load_ushort v145, v15, s[40:43], 0 offen")
        a("v_lshlrev_b32 v14, 10, v14")
        a("v_lshl_add_u32 v14, v9, 4, v14")
        a("s_lshl_b32 s33, s22, 7")
        a("s_waitcnt lgkmcnt(0)")
        a("s_barrier")
        for p in range(2):
            for w in range(4):
                a("ds_read_b128 v[%d:%d], v12 offset:%d" % (80 + 32 * p + 8 * w, 83 + 32 * p + 8 * w, w * PSZ + 128 * p))
                a("ds_read_b128 v[%d:%d], v12 offset:%d" % (84 + 32 * p + 8 * w, 87 + 32 * p + 8 * w, w * PSZ + 128 * p + 16))
            for h in range(2):
                a("ds_read_b64_tr_b16 v[%d:%d], v13 offset:%d" % (148 + 4 * p + 2 * h, 149 + 4 * p + 2 * h, (32 * p + 4 * h) * TP))
        a("s_waitcnt vmcnt(0)")
        a("v_lshlrev_b32 v145, 16, v145")
        a("v_sub_f32 v144, 1.0, v144")
        bf16r(a, 144)
        for p in range(2):
            R = 80 + 32 * p
            a("s_waitcnt lgkmcnt(%d)" % (10 if p == 0 else 0))
            for j in range(8):
                a("v_add_f32 v%d, v%d, v%d" % (R + j, R + j, R + 8 + j))
                a("v_add_f32 v%d, v%d, v%d" % (R + 16 + j, R + 16 + j, R + 24 + j))
            for j in range(8):
                a("v_add_f32 v%d, v%d, v%d" % (R + j, R + j, R + 16 + j))
            for q in range(4):
                a("v_cvt_pk_bf16_f32 v%d, v%d, v%d" % (R + 8 + q, R + 2 * q, R + 2 * q + 1))
            for q in range(4):
                a("v_lshlrev_b32 v%d, 16, v%d" % (R + 2 * q, R + 8 + q))
                a("v_and_b32 v%d, s27, v%d" % (R + 2 * q + 1, R + 8 + q))
                a("v_lshlrev_b32 v%d, 16, v%d" % (R + 16 + 2 * q, 148 + 4 * p + q))
                a("v_and_b32 v%d, s27, v%d" % (R + 17 + 2 * q, 148 + 4 * p + q))
            for j in range(8):
                a("v_add_f32 v%d, v%d, v145" % (R + j, R + j))
            for q in range(4):
                a("v_cvt_pk_bf16_f32 v%d, v%d, v%d" % (R + 8 + q, R + 2 * q, R + 2 * q + 1))
            for q in range(4):
                a("v_lshlrev_b32 v%d, 16, v%d" % (R + 2 * q, R + 8 + q))
                a("v_and_b32 v%d, s27, v%d" % (R + 2 * q + 1, R + 8 + q))
            for j in range(8):
                a("v_mul_f32 v%d, v%d, v144" % (R + j, R + j))
            for q in range(4):
                a("v_cvt_pk_bf16_f32 v%d, v%d, v%d" % (R + 8 + q, R + 2 * q, R + 2 * q + 1))
            for q in range(4):
                a("v_lshlrev_b32 v%d, 16, v%d" % (R + 2 * q, R + 8 + q))
                a("v_and_b32 v%d, s27, v%d" % (R + 2 * q + 1, R + 8 + q))
            for j in range(8):
                a("v_add_f32 v%d, v%d, v%d" % (R + j, R + j, R + 16 + j))
            for q in range(4):
                a("v_cvt_pk_bf16_f32 v%d, v%d, v%d" % (R + 24 + q, R + 2 * q, R + 2 * q + 1))
            a("buffer_store_dwordx4 v[%d:%d], v14, s[44:47], s33 offen offset:%d" % (R + 24, R + 27, 64 * p))
        a("s_endpgm")


def kd(name, vgpr, sgpr=102):
    acc = (vgpr + 3) // 4 * 4
    return """.amdhsa_kernel %s
  .amdhsa_next_free_vgpr %d
  .amdhsa_next_free_sgpr %d
  .amdhsa_accum_offset %d
  .amdhsa_group_segment_fixed_size 0
  .amdhsa_kernarg_size 144
  .amdhsa_user_sgpr_count 2
  .amdhsa_user_sgpr_kernarg_segment_ptr 1
  .amdhsa_system_sgpr_workgroup_id_x 1
.end_amdhsa_kernel
""" % (name, vgpr, sgpr, acc)


def main(out):
    ref = open("cdna_kernels/%s.s.ref" % NAME).read()
    head = []
    for ln in ref.splitlines():
        if ln.startswith("; @launch"):
            break
        if ln.startswith("; Override") or ln.startswith("; grid=ceil"):
            continue
        head.append(ln)
    a = A()
    K1, K2, K3 = "k1_prep_kgen_kernel", "k2_gemm1_conv_kernel", "k3_gemm2_kernel"
    head.append("; @launch kernel=%s grid=(%d,1,1) block=(256,1,1) lds=%d" % (K1, NPREP + 512, 8192))
    head.append("; @launch kernel=%s grid=(%d,1,1) block=(256,1,1) lds=%d" % (K2, 224 + 512, GEMM_LDS))
    head.append("; @launch kernel=%s grid=(%d,1,1) block=(256,1,1) lds=%d" % (K3, 256, GEMM2_LDS))
    a.L += head
    a.L.append('.amdgcn_target "amdgcn-amd-amdhsa--gfx950"')
    a.L.append(".text")

    def start(k):
        a.L.append(".globl %s" % k)
        a.L.append(".p2align 8")
        a.L.append(".type %s,@function" % k)
        a.lab(k)

    start(K1)
    a("s_cmp_ge_u32 s2, %d" % (NPREP + 512))
    a("s_cbranch_scc1 L_k1_exit")
    a("s_cmp_ge_u32 s2, %d" % NPREP)
    a("s_cbranch_scc1 L_k1_kgen")
    gen_prep(a)
    a.lab("L_k1_exit")
    a("s_endpgm")
    a.lab("L_k1_kgen")
    gen_kgen(a)

    start(K2)
    a("s_cmp_ge_u32 s2, %d" % (224 + 512))
    a("s_cbranch_scc1 L_k2_exit")
    a("s_cmp_ge_u32 s2, 224")
    a("s_cbranch_scc1 L_k2_conv")
    gen_gemm(a, 1)
    a.lab("L_k2_exit")
    a("s_endpgm")
    a.lab("L_k2_conv")
    gen_conv(a, 224)

    start(K3)
    a("s_cmp_ge_u32 s2, 256")
    a("s_cbranch_scc1 L_k3_exit")
    gen_gemm(a, 2)
    a.lab("L_k3_exit")
    a("s_endpgm")

    a.L.append('.section .rodata,"a"')
    for k, v in ((K1, 240), (K2, 160), (K3, 248)):
        a.L.append(".p2align 6")
        a.L.append(kd(k, v))
    open(out, "w").write("\n".join(a.L) + "\n")


if __name__ == "__main__":
    main(sys.argv[1] if len(sys.argv) > 1 else "cdna_kernels/%s.s" % NAME)
```

```python
import struct, sys, os
X = os.environ.get("GENX", "")

NAME = "gated_mix__ssm_conv_s4__mixer_token_mlp__prompt"

MB = 1 << 20
WS_HF = 0
WS_UF = 2 * MB
WS_GF = 4 * MB
WS_AF = 6 * MB
WS_GT = 8 * MB
WS_RK = 9 * MB
WS_SIZE = 268435456

NPREP = 64
HILO = True


def f32(x):
    return struct.unpack("<I", struct.pack("<f", x))[0]


class A:
    def __init__(self):
        self.L = []
        self.cur = ""

    def __call__(self, s):
        self.L.append("    " + s)

    def lab(self, s):
        self.L.append(s + ":")

    def nop(self, n):
        while n > 0:
            k = min(n, 16)
            self("s_nop %d" % (k - 1))
            n -= k

    def c(self, s):
        self.L.append("    ; " + s)


STAMPS = [0]
def stamp(a):
    if "stamp" not in X:
        return
    k = STAMPS[0]
    a("s_memtime s[%d:%d]" % (70 + 2 * k, 71 + 2 * k))
    STAMPS[0] += 1


def dump_stamps(a, wg, off=0):
    if "stamp" not in X:
        return
    n = STAMPS[0]
    STAMPS[0] = 0
    a("s_waitcnt vmcnt(0) lgkmcnt(0)")
    a("s_memtime s[%d:%d]" % (70 + 2 * n, 71 + 2 * n))
    n += 1
    a("s_load_dwordx2 s[96:97], s[0:1], 128")
    a("s_waitcnt lgkmcnt(0)")
    a("s_mov_b32 s98, 256")
    a("s_mov_b32 s99, 0x00020000")
    a("s_mov_b64 exec, -1")
    a("v_lshrrev_b32 v1, 6, v0")
    a("s_nop 1")
    a("v_readfirstlane_b32 s95, v1")
    a("s_cmp_lg_u32 s95, 0")
    a("s_cbranch_scc1 L_nostamp%d" % len(a.L))
    lab = "L_nostamp%d" % (len(a.L) - 1)
    a("s_cmp_lg_u32 s2, %d" % wg)
    a("s_cbranch_scc1 %s" % lab)
    a("s_mov_b64 exec, 1")
    a("v_mov_b32 v1, 0")
    for k in range(n):
        a("v_mov_b32 v2, s%d" % (70 + 2 * k))
        a("buffer_store_dword v2, v1, s[96:99], 0 offen offset:%d" % (off + 4 * k))
    a.lab(lab)


def trace_begin(a):
    if "trace" not in X:
        return
    a("s_memrealtime s[88:89]")
    a("s_memtime s[90:91]")
    a("s_mov_b32 s94, s2")
    if "cfirst" in X and a.cur == "g1":
        a("s_add_u32 s94, s94, 512")


def trace_end(a, launch):
    if "trace" not in X:
        return
    a("s_waitcnt vmcnt(0) lgkmcnt(0)")
    a("s_memrealtime s[92:93]")
    a("s_memtime s[84:85]")
    a("s_load_dwordx2 s[96:97], s[0:1], 136")
    a("s_waitcnt lgkmcnt(0)")
    a("s_mov_b32 s98, 0x%x" % WS_SIZE)
    a("s_mov_b32 s99, 0x00020000")
    a("s_mov_b64 exec, -1")
    a("v_lshrrev_b32 v1, 6, v0")
    a("s_nop 1")
    a("v_readfirstlane_b32 s95, v1")
    a("s_cmp_lg_u32 s95, 0")
    a("s_cbranch_scc1 L_notr%d" % len(a.L))
    lab = "L_notr%d" % (len(a.L) - 1)
    a("s_lshl_b32 s94, s94, 4")
    a("s_add_u32 s94, s94, 0x%x" % (64 * MB + launch * 65536))
    a("s_mov_b64 exec, 1")
    a("v_mov_b32 v1, 0")
    a("v_mov_b32 v4, s88")
    a("v_mov_b32 v5, s92")
    a("v_mov_b32 v6, s90")
    a("v_mov_b32 v7, s84")
    a("buffer_store_dwordx4 v[4:7], v1, s[96:99], s94 offen")
    a.lab(lab)


def srd(a, d, base, nbytes, off=0):
    if off:
        a("s_add_u32 s%d, s%d, 0x%x" % (d, base, off))
        a("s_addc_u32 s%d, s%d, 0" % (d + 1, base + 1))
    else:
        a("s_mov_b32 s%d, s%d" % (d, base))
        a("s_mov_b32 s%d, s%d" % (d + 1, base + 1))
    a("s_mov_b32 s%d, 0x%x" % (d + 2, nbytes))
    a("s_mov_b32 s%d, 0x00020000" % (d + 3))


def bf16r(a, v):
    a("v_cvt_pk_bf16_f32 v%d, v%d, v%d" % (v, v, v))
    a("v_lshlrev_b32 v%d, 16, v%d" % (v, v))


def wave_reduce(a, regs):
    assert len(regs) >= 3
    steps = ["quad_perm:[1,0,3,2] row_mask:0xf bank_mask:0xf",
             "quad_perm:[2,3,0,1] row_mask:0xf bank_mask:0xf",
             "row_half_mirror row_mask:0xf bank_mask:0xf",
             "row_mirror row_mask:0xf bank_mask:0xf",
             "row_bcast:15 row_mask:0xa bank_mask:0xf",
             "row_bcast:31 row_mask:0xc bank_mask:0xf"]
    a.nop(2)
    for st in steps:
        for r in regs:
            a("v_add_f32_dpp v%d, v%d, v%d %s" % (r, r, r, st))
    a.nop(1)


RP = 1024 + 64
PREP_LDS = 16 * RP


def gen_prep(a):
    a.c("---- prep role: wave handles 1 row, WG = 8 rows")
    trace_begin(a)
    stamp(a)
    a("s_load_dwordx2 s[4:5], s[0:1], 0")
    a("s_load_dwordx2 s[6:7], s[0:1], 112")
    a("s_load_dwordx2 s[8:9], s[0:1], 136")
    a("v_lshrrev_b32 v1, 6, v0")
    a("v_and_b32 v2, 63, v0")
    a("v_readfirstlane_b32 s3, v1")
    a("v_lshlrev_b32 v3, 4, v2")
    a("s_lshl_b32 s24, s2, 3")
    a("s_add_u32 s24, s24, s3")
    a("s_lshl_b32 s25, s24, 10")
    a("s_mov_b32 s27, 0xffff0000")
    a("s_waitcnt lgkmcnt(0)")
    srd(a, 12, 4, 2 * MB)
    srd(a, 16, 6, 1024)
    a("buffer_load_dwordx4 v[8:11], v3, s[12:15], s25 offen")
    a("buffer_load_dwordx4 v[12:15], v3, s[16:19], 0 offen")
    srd(a, 20, 8, WS_SIZE)
    a("s_mul_i32 s26, s3, %d" % RP)
    a("v_add_u32 v4, s26, v3")
    a("v_and_b32 v5, 15, v2")
    a("v_lshrrev_b32 v6, 2, v5")
    a("v_mul_u32_u24 v6, %d, v6" % RP)
    a("v_and_b32 v5, 3, v5")
    a("v_lshl_add_u32 v6, v5, 3, v6")
    a("v_lshrrev_b32 v5, 4, v2")
    a("v_lshl_add_u32 v6, v5, 5, v6")
    a("s_lshl_b32 s26, s3, 7")
    a("v_add_u32 v6, s26, v6")
    a("v_lshrrev_b32 v7, 5, v2")
    a("s_lshl_b32 s26, s3, 1")
    a("v_add_u32 v7, s26, v7")
    a("v_lshlrev_b32 v7, 17, v7")
    a("v_and_b32 v5, 31, v2")
    a("v_lshl_add_u32 v7, v5, 4, v7")
    a("s_lshl_b32 s28, s2, 9")
    a("s_add_u32 s29, s28, 0x%x" % WS_UF)
    a("v_mov_b32 v60, 0x%x" % f32(1.0 / 512))
    a("v_mov_b32 v61, 0x%x" % f32(1e-5))
    X, GW, T = 16, 24, 32
    a("s_waitcnt vmcnt(0)")
    stamp(a)
    a("ds_write_b128 v4, v[8:11] offset:%d" % (8 * RP))
    for q in range(4):
        a("v_lshlrev_b32 v%d, 16, v%d" % (X + 2 * q, 8 + q))
        a("v_and_b32 v%d, s27, v%d" % (X + 2 * q + 1, 8 + q))
        a("v_lshlrev_b32 v%d, 16, v%d" % (GW + 2 * q, 12 + q))
        a("v_and_b32 v%d, s27, v%d" % (GW + 2 * q + 1, 12 + q))
    for q in range(4):
        a("v_pk_mul_f32 v[%d:%d], v[%d:%d], v[%d:%d]" % (T + 2 * q, T + 2 * q + 1, X + 2 * q, X + 2 * q + 1, GW + 2 * q, GW + 2 * q + 1))
    a("v_pk_add_f32 v[40:41], v[%d:%d], v[%d:%d]" % (X, X + 1, X + 2, X + 3))
    a("v_pk_add_f32 v[42:43], v[%d:%d], v[%d:%d]" % (X + 4, X + 5, X + 6, X + 7))
    for q in range(4):
        a("v_cvt_pk_bf16_f32 v%d, v%d, v%d" % (44 + q, T + 2 * q, T + 2 * q + 1))
    a("v_pk_add_f32 v[40:41], v[40:41], v[42:43]")
    for q in range(4):
        a("v_lshlrev_b32 v%d, 16, v%d" % (T + 2 * q, 44 + q))
        a("v_and_b32 v%d, s27, v%d" % (T + 2 * q + 1, 44 + q))
    a("v_add_f32 v40, v40, v41")
    a("v_pk_add_f32 v[42:43], v[%d:%d], v[%d:%d]" % (T, T + 1, T + 2, T + 3))
    a("v_pk_add_f32 v[44:45], v[%d:%d], v[%d:%d]" % (T + 4, T + 5, T + 6, T + 7))
    a("v_pk_add_f32 v[42:43], v[42:43], v[44:45]")
    a("v_add_f32 v41, v42, v43")
    steps = ["quad_perm:[1,0,3,2] row_mask:0xf bank_mask:0xf",
             "quad_perm:[2,3,0,1] row_mask:0xf bank_mask:0xf",
             "row_half_mirror row_mask:0xf bank_mask:0xf",
             "row_mirror row_mask:0xf bank_mask:0xf",
             "row_bcast:15 row_mask:0xa bank_mask:0xf",
             "row_bcast:31 row_mask:0xc bank_mask:0xf"]
    a.nop(1)
    for st in steps:
        a("v_add_f32_dpp v40, v40, v40 %s" % st)
        a("v_add_f32_dpp v41, v41, v41 %s" % st)
        a.nop(1)
    a("v_readlane_b32 s32, v40, 63")
    a("v_readlane_b32 s33, v41, 63")
    a.nop(2)
    a("v_mul_f32 v42, s32, v60")
    a("v_mul_f32 v43, s32, v60")
    a("v_mov_b32 v50, s33")
    for q in range(4):
        a("v_pk_add_f32 v[%d:%d], v[%d:%d], v[42:43] neg_lo:[0,1] neg_hi:[0,1]" % (T + 2 * q, T + 2 * q + 1, X + 2 * q, X + 2 * q + 1))
    a("v_pk_mul_f32 v[44:45], v[%d:%d], v[%d:%d]" % (T, T + 1, T, T + 1))
    a("v_pk_mul_f32 v[46:47], v[%d:%d], v[%d:%d]" % (T + 2, T + 3, T + 2, T + 3))
    a("v_pk_fma_f32 v[44:45], v[%d:%d], v[%d:%d], v[44:45]" % (T + 4, T + 5, T + 4, T + 5))
    a("v_pk_fma_f32 v[46:47], v[%d:%d], v[%d:%d], v[46:47]" % (T + 6, T + 7, T + 6, T + 7))
    bf16r(a, 50)
    a("v_pk_add_f32 v[44:45], v[44:45], v[46:47]")
    a("v_mul_f32 v50, 0x%x, v50" % f32(-1.4426950408889634))
    a("v_add_f32 v44, v44, v45")
    a("v_exp_f32 v50, v50")
    bf16r(a, 42)
    for k, st in enumerate(steps):
        a("v_add_f32_dpp v44, v44, v44 %s" % st)
        if k == 0:
            a("v_add_f32 v50, 1.0, v50")
            a("v_mov_b32 v43, v42")
        elif k == 1:
            a("v_rcp_f32 v50, v50")
            a.nop(1)
        else:
            a.nop(2)
    a("v_readlane_b32 s34, v44, 63")
    for q in range(4):
        a("v_pk_add_f32 v[%d:%d], v[%d:%d], v[42:43] neg_lo:[0,1] neg_hi:[0,1]" % (X + 2 * q, X + 2 * q + 1, X + 2 * q, X + 2 * q + 1))
    a("v_mul_f32 v44, s34, v60")
    for q in range(4):
        a("v_cvt_pk_bf16_f32 v%d, v%d, v%d" % (T + q, X + 2 * q, X + 2 * q + 1))
    bf16r(a, 44)
    bf16r(a, 50)
    a("v_add_f32 v44, v44, v61")
    for q in range(4):
        a("v_lshlrev_b32 v%d, 16, v%d" % (X + 2 * q, T + q))
        a("v_and_b32 v%d, s27, v%d" % (X + 2 * q + 1, T + q))
    bf16r(a, 44)
    a("v_sqrt_f32 v44, v44")
    a.nop(1)
    bf16r(a, 44)
    a("v_rcp_f32 v44, v44")
    a("s_lshl_b32 s30, s24, 2")
    a("s_add_u32 s30, s30, 0x%x" % WS_GT)
    a("v_mov_b32 v45, v44")
    a("v_mov_b32 v51, 0")
    for q in range(4):
        a("v_pk_mul_f32 v[%d:%d], v[%d:%d], v[44:45]" % (X + 2 * q, X + 2 * q + 1, X + 2 * q, X + 2 * q + 1))
    for q in range(4):
        a("v_cvt_pk_bf16_f32 v%d, v%d, v%d" % (T + q, X + 2 * q, X + 2 * q + 1))
    a("ds_write_b128 v4, v[%d:%d]" % (T, T + 3))
    a("s_mov_b64 exec, 1")
    a("buffer_store_dword v50, v51, s[20:23], s30 offen")
    a("s_mov_b64 exec, -1")
    a("s_waitcnt lgkmcnt(0)")
    a("s_barrier")
    stamp(a)
    a("ds_read_b64_tr_b16 v[8:9], v6")
    a("ds_read_b64_tr_b16 v[10:11], v6 offset:%d" % (4 * RP))
    a("ds_read_b64_tr_b16 v[12:13], v6 offset:%d" % (8 * RP))
    a("ds_read_b64_tr_b16 v[14:15], v6 offset:%d" % (12 * RP))
    a("s_waitcnt lgkmcnt(2)")
    a("buffer_store_dwordx4 v[8:11], v7, s[20:23], s28 offen")
    a("s_waitcnt lgkmcnt(0)")
    a("buffer_store_dwordx4 v[12:15], v7, s[20:23], s29 offen")
    stamp(a)
    dump_stamps(a, 5)
    trace_end(a, 0)
    a("s_endpgm")


CP = 4416
UB = 8 * CP
UP = 144
TBP = 528
XT = 0
YT = 41 * TBP
KT = 45056
K2_LDS = 49152


def gen_conv(a, first_wg):
    a.c("---- conv role: one channel per workgroup")
    a.cur = "conv"
    trace_begin(a)
    stamp(a)
    a("s_sub_u32 s2, s2, %d" % first_wg)
    a("s_load_dwordx4 s[28:31], s[0:1], 8")
    a("s_load_dwordx4 s[32:35], s[0:1], 24")
    a("s_load_dwordx4 s[36:39], s[0:1], 40")
    a("s_load_dwordx4 s[40:43], s[0:1], 56")
    a("s_load_dwordx2 s[4:5], s[0:1], 136")
    a("v_lshrrev_b32 v1, 6, v0")
    a("v_and_b32 v2, 63, v0")
    a("v_readfirstlane_b32 s3, v1")
    a("v_and_b32 v3, 127, v0")
    a("v_lshlrev_b32 v4, 1, v3")
    a("s_lshl_b32 s20, s2, 8")
    a("s_lshl_b32 s25, s2, 1")
    a("v_mov_b32 v6, 0")
    a("s_waitcnt lgkmcnt(0)")
    for k in range(6):
        srd(a, 44 + 4 * k, 28 + 2 * k, 131072)
        a("buffer_load_ushort v%d, v4, s[%d:%d], s20 offen" % (10 + k, 44 + 4 * k, 47 + 4 * k))
    srd(a, 12, 40, 1024)
    a("buffer_load_ushort v16, v6, s[12:15], s25 offen")
    srd(a, 8, 4, WS_SIZE)
    srd(a, 16, 42, 1024)
    a("s_lshr_b32 s21, s2, 5")
    a("s_lshl_b32 s21, s21, 17")
    a("s_and_b32 s22, s2, 31")
    a("s_lshl_b32 s22, s22, 4")
    a("s_add_u32 s21, s21, s22")
    a("s_add_u32 s22, s21, 0x%x" % WS_UF)
    a("s_add_u32 s23, s21, 0x%x" % WS_AF)
    a("v_lshlrev_b32 v5, 9, v0")
    a("buffer_load_dwordx4 v[152:155], v5, s[8:11], s22 offen")
    a("v_lshlrev_b32 v7, 5, v0")
    a("s_mov_b32 s24, 0x%x" % WS_GT)
    a("buffer_load_dwordx4 v[156:159], v7, s[8:11], s24 offen")
    a("buffer_load_dwordx4 v[160:163], v7, s[8:11], s24 offen offset:16")
    a("buffer_load_ushort v164, v6, s[16:19], s25 offen")
    a("s_cmp_ge_u32 s3, 2")
    a("s_cselect_b32 s26, %d, %d" % (XT, YT))
    a("s_cselect_b32 s27, 0x%x, 0x%x" % (f32(16.0), f32(1.0)))
    a("s_cselect_b32 s36, 0x%x, 0x%x" % (f32(0.15915494309189535), f32(-0.15915494309189535)))
    a("v_lshlrev_b32 v8, 2, v3")
    a("v_add_u32 v8, s26, v8")
    a("s_waitcnt vmcnt(4)")
    for k in range(7):
        a("v_lshlrev_b32 v%d, 16, v%d" % (10 + k, 10 + k))
    a("v_mul_f32 v16, 0x%x, v16" % f32(1.4426950408889634))
    a("v_exp_f32 v16, v16")
    a.nop(1)
    bf16r(a, 16)
    a("v_mul_f32 v20, v16, v10")
    a("v_mul_f32 v21, v16, v11")
    a("v_mul_f32 v12, v16, v12")
    a("v_mul_f32 v13, v16, v13")
    a("v_mul_f32 v20, 0x%x, v20" % f32(1.4426950408889634))
    a("v_mul_f32 v21, s36, v21")
    a("v_mul_f32 v20, s27, v20")
    a("v_mul_f32 v21, s27, v21")
    a("v_mul_f32 v22, v14, v12")
    a("v_mul_f32 v23, v14, v13")
    a("v_fract_f32 v21, v21")
    a("v_exp_f32 v20, v20")
    a("v_fma_f32 v22, -v15, v13, v22")
    a("v_fma_f32 v23, v15, v12, v23")
    a("v_cos_f32 v24, v21")
    a("v_sin_f32 v25, v21")
    a("v_mov_b32 v26, 1.0")
    a("v_mov_b32 v27, 0")
    a("v_mul_f32 v24, v20, v24")
    a("v_mul_f32 v25, v20, v25")
    a("s_cmp_ge_u32 s3, 2")
    a("s_cbranch_scc0 L_cv_y")
    a("v_mov_b32 v26, v22")
    a("v_mov_b32 v27, v23")
    a.lab("L_cv_y")

    def cmul(dst, x, w):
        a("v_pk_mul_f32 v[30:31], v[%d:%d], v[%d:%d] op_sel:[0,0] op_sel_hi:[1,0]" % (x, x + 1, w, w + 1))
        a("v_pk_fma_f32 v[%d:%d], v[%d:%d], v[%d:%d], v[30:31] op_sel:[1,1,0] op_sel_hi:[0,1,1] neg_lo:[1,0,0]" %
          (dst, dst + 1, x, x + 1, w, w + 1))

    W = [24, 32, 34, 36]
    for k in range(1, 4):
        cmul(W[k], W[k - 1], W[k - 1])
    for row in range(41):
        a("v_cvt_pk_bf16_f32 v%d, v26, v27" % (40 + (row & 3)))
        if row < 40:
            w = W[0] if row < 15 + 1 else (W[1] if row < 24 else (W[2] if row < 32 else W[3]))
            if row < 16:
                w = W[0]
            cmul(26, 26, w)
        a("ds_write_b32 v8, v%d offset:%d" % (40 + (row & 3), row * TBP))
    a("v_and_b32 v9, 15, v2")
    a("v_lshrrev_b32 v10, 4, v2")
    a("s_lshl_b32 s26, s3, 3")
    a("s_add_u32 s26, s26, 8")
    a("s_cmp_eq_u32 s3, 0")
    a("s_cselect_b32 s26, 0, s26")
    a("v_add_u32 v11, s26, v9")
    a("v_mul_u32_u24 v11, %d, v11" % TBP)
    a("v_lshl_add_u32 v11, v10, 4, v11")
    a("v_lshlrev_b32 v12, s3, v9")
    a("v_or_b32 v13, 8, v12")
    a("v_ffbh_u32 v13, v13")
    a("v_sub_u32 v13, 28, v13")
    a("v_lshrrev_b32 v12, v13, v12")
    a("v_lshl_add_u32 v12, v13, 3, v12")
    a("v_mul_u32_u24 v12, %d, v12" % TBP)
    a("v_lshl_add_u32 v12, v10, 4, v12")
    a("s_waitcnt lgkmcnt(0)")
    a("s_barrier")
    stamp(a)
    for kap in range(8):
        a("ds_read_b128 v[%d:%d], v11 offset:%d" % (64 + 8 * kap, 67 + 8 * kap, XT + 64 * kap))
        a("ds_read_b128 v[%d:%d], v12 offset:%d" % (68 + 8 * kap, 71 + 8 * kap, YT + 64 * kap))
    a("s_lshl_b32 s26, s3, 7")
    a("s_add_u32 s26, s26, 128")
    a("s_cmp_eq_u32 s3, 0")
    a("s_cselect_b32 s26, 0, s26")
    a("s_mov_b32 s27, 128")
    a("s_cselect_b32 s27, 256, s27")
    a("s_cmp_eq_u32 s3, 3")
    a("s_cselect_b32 s27, 129, s27")
    a("v_lshl_add_u32 v13, v10, 6, v9")
    for kap in range(8):
        a("s_waitcnt lgkmcnt(%d)" % (14 - 2 * kap))
        c0 = "0" if kap == 0 else "v[44:47]"
        a("v_mfma_f32_16x16x32_bf16 v[44:47], v[%d:%d], v[%d:%d], %s" % (64 + 8 * kap, 67 + 8 * kap, 68 + 8 * kap, 71 + 8 * kap, c0))
    a("v_lshlrev_b32 v14, 3, v0")
    a("v_sub_u32 v14, 2047, v14")
    a("s_mov_b32 s28, 0xffff")
    a("s_mov_b32 s29, %d" % (0x4300 - 128))
    for j in range(8):
        a("v_subrev_u32 v%d, %d, v14" % (48 + j, j))
        a("v_cvt_f32_u32 v%d, v%d" % (56 + j, 48 + j))
    for reg in range(4):
        a("v_add_u32 v15, %d, v13" % (16 * reg))
        a("v_cmp_gt_u32 vcc, s27, v15")
        a("v_add_u32 v15, s26, v15")
        a("v_lshlrev_b32 v15, 2, v15")
        a("s_and_saveexec_b64 s[30:31], vcc")
        a("ds_write_b32 v15, v%d offset:%d" % (44 + reg, KT))
        a("s_mov_b64 exec, s[30:31]")
    for j in range(8):
        a("v_cvt_pk_bf16_f32 v%d, v%d, v%d" % (56 + j, 56 + j, 56 + j))
    for j in range(8):
        a("v_and_b32 v%d, s28, v%d" % (56 + j, 56 + j))
        a("v_subrev_u32 v%d, s29, v%d" % (56 + j, 56 + j))
    for j in range(8):
        a("v_cmp_gt_u32 vcc, 128, v%d" % (48 + j))
        a.nop(2)
        a("v_cndmask_b32 v%d, v%d, v%d, vcc" % (56 + j, 56 + j, 48 + j))
        a("v_lshlrev_b32 v%d, 2, v%d" % (56 + j, 56 + j))
    a("v_lshlrev_b32 v3, 4, v0")
    for k in range(4):
        a("v_mov_b32 v%d, 0" % (48 + k))
    a("v_lshrrev_b32 v6, 3, v0")
    a("v_mul_u32_u24 v6, %d, v6" % UP)
    a("v_and_b32 v7, 7, v0")
    a("v_lshl_add_u32 v6, v7, 4, v6")
    a("s_waitcnt lgkmcnt(0)")
    a("s_barrier")
    stamp(a)
    for j in range(8):
        a("ds_read_b32 v%d, v%d offset:%d" % (64 + j, 56 + j, KT))
    a("ds_write_b128 v3, v[48:51] offset:%d" % UB)
    a("v_cmp_gt_u32 vcc, 32, v0")
    a("s_and_saveexec_b64 s[30:31], vcc")
    a("ds_write_b128 v3, v[48:51] offset:%d" % (UB + 4096))
    a("s_mov_b64 exec, 0xff")
    a("s_and_b64 exec, exec, vcc")
    for s in range(8):
        a("ds_write_b128 v3, v[48:51] offset:%d" % (s * CP + 4096))
    a("s_mov_b64 exec, s[30:31]")
    a("s_waitcnt vmcnt(3)")
    a("ds_write_b128 v6, v[152:155] offset:%d" % (UB + 32 * UP))
    a("s_waitcnt lgkmcnt(11)")
    for q in range(4):
        a("v_cvt_pk_bf16_f32 v%d, v%d, v%d" % (8 + q, 64 + 2 * q, 65 + 2 * q))
    a("ds_write_b128 v3, v[8:11]")
    a("v_and_b32 v20, 31, v2")
    a("v_lshrrev_b32 v21, 5, v2")
    a("v_and_b32 v22, 7, v20")
    a("v_sub_u32 v22, 7, v22")
    a("v_mul_u32_u24 v22, %d, v22" % CP)
    a("v_lshrrev_b32 v23, 3, v20")
    a("v_sub_u32 v23, v21, v23")
    a("v_lshl_add_u32 v22, v23, 4, v22")
    a("s_lshl_b32 s28, s3, 10")
    a("s_sub_u32 s28, %d, s28" % (16 * 255 - 128 * 7 - 64))
    a("v_add_u32 v18, s28, v22")
    a("v_mul_u32_u24 v23, %d, v20" % UP)
    a("v_lshl_add_u32 v23, v21, 4, v23")
    a("s_mul_i32 s29, s3, %d" % (8 * UP))
    a("s_sub_u32 s29, %d, s29" % (UB + UP * 25))
    a("v_add_u32 v19, s29, v23")
    a("s_waitcnt lgkmcnt(0)")
    a("s_barrier")
    a("ds_read_b128 v[12:15], v3 offset:16")
    a("s_waitcnt lgkmcnt(0)")
    for k in range(1, 8):
        a("v_mov_b32 v%d, v%d" % (65 + k, 8 + k))
    for k in range(7):
        a("v_alignbit_b32 v%d, v%d, v%d, 16" % (74 + k, 9 + k, 8 + k))
    for k in range(1, 7):
        a("v_alignbit_b32 v%d, v%d, v%d, 16" % (83 + k, 9 + k, 8 + k))
    src = {2: 66, 4: 10, 6: 68, 1: 74, 3: 84, 5: 76, 7: 86}
    for s in range(1, 8):
        a("ds_write_b128 v3, v[%d:%d] offset:%d" % (src[s], src[s] + 3, s * CP))
    a("s_waitcnt lgkmcnt(0)")
    a("s_barrier")
    stamp(a)
    ACC = [64, 80]
    FA = [24 + 4 * k for k in range(10)]
    FB = [[96 + 4 * k for k in range(4)], [112 + 4 * k for k in range(4)]]
    free = list(range(10))
    cur = {}

    def loadA(dl, rel):
        sl = free.pop(0)
        a("ds_read_b128 v[%d:%d], v18 offset:%d" % (FA[sl], FA[sl] + 3, 128 * (7 - dl) + 64 - 2 * rel))
        return sl

    def loadB(dl):
        for k in range(4):
            a("ds_read_b128 v[%d:%d], v19 offset:%d" % (FB[dl & 1][k], FB[dl & 1][k] + 3, UP * (7 - dl) + 32 * k))

    for rel in (-48, -32, -16, 0, 16, 32):
        cur[rel] = loadA(0, rel)
    loadB(0)
    for dl in range(8):
        nxt = {}
        if dl < 7:
            nxt[-48] = cur[16]
            nxt[-32] = cur[32]
            for rel in (-16, 0, 16, 32):
                nxt[rel] = loadA(dl + 1, rel)
            loadB(dl + 1)
            a("s_waitcnt lgkmcnt(8)")
        else:
            a("s_waitcnt lgkmcnt(0)")
        for k in range(4):
            for beta in range(2):
                rel = 32 * beta - 16 * k
                c = "0" if (dl == 0 and k == 0) else "v[%d:%d]" % (ACC[beta], ACC[beta] + 15)
                a("v_mfma_f32_32x32x16_bf16 v[%d:%d], v[%d:%d], v[%d:%d], %s" %
                  (ACC[beta], ACC[beta] + 15, FA[cur[rel]], FA[cur[rel]] + 3, FB[dl & 1][k], FB[dl & 1][k] + 3, c))
        for rel in (-48, -32, -16, 0):
            free.append(cur[rel])
        cur = nxt
    a("v_mul_u32_u24 v24, 272, v20")
    a("v_lshl_add_u32 v24, v21, 4, v24")
    a("s_mul_i32 s28, s3, 8704")
    a("v_add_u32 v24, s28, v24")
    a("v_lshrrev_b32 v25, 3, v0")
    a("v_mul_u32_u24 v25, 272, v25")
    a("v_and_b32 v26, 7, v0")
    a("v_lshl_add_u32 v25, v26, 5, v25")
    a("s_mov_b32 s27, 0xffff0000")
    a("s_waitcnt vmcnt(0)")
    a("s_barrier")
    stamp(a)
    a.nop(4)
    for beta in range(2):
        for rq in range(4):
            a("ds_write_b128 v24, v[%d:%d] offset:%d" % (ACC[beta] + 4 * rq, ACC[beta] + 4 * rq + 3, (32 * beta + 8 * rq) * 4))
    a("v_lshlrev_b32 v164, 16, v164")
    a("v_mov_b32 v165, v164")
    for q in range(4):
        a("v_lshlrev_b32 v%d, 16, v%d" % (128 + 2 * q, 152 + q))
        a("v_and_b32 v%d, s27, v%d" % (129 + 2 * q, 152 + q))
    for q in range(4):
        a("v_pk_mul_f32 v[%d:%d], v[%d:%d], v[164:165]" % (128 + 2 * q, 129 + 2 * q, 128 + 2 * q, 129 + 2 * q))
    for q in range(4):
        a("v_cvt_pk_bf16_f32 v%d, v%d, v%d" % (136 + q, 128 + 2 * q, 129 + 2 * q))
    for q in range(4):
        a("v_lshlrev_b32 v%d, 16, v%d" % (128 + 2 * q, 136 + q))
        a("v_and_b32 v%d, s27, v%d" % (129 + 2 * q, 136 + q))
    a("s_waitcnt lgkmcnt(0)")
    a("s_barrier")
    for w in range(4):
        a("ds_read_b128 v[%d:%d], v25 offset:%d" % (32 + 8 * w, 35 + 8 * w, w * 8704))
        a("ds_read_b128 v[%d:%d], v25 offset:%d" % (36 + 8 * w, 39 + 8 * w, w * 8704 + 16))
    a("s_waitcnt lgkmcnt(4)")
    for q in range(4):
        a("v_pk_add_f32 v[%d:%d], v[%d:%d], v[%d:%d]" % (32 + 2 * q, 33 + 2 * q, 32 + 2 * q, 33 + 2 * q, 40 + 2 * q, 41 + 2 * q))
    a("s_waitcnt lgkmcnt(0)")
    for q in range(4):
        a("v_pk_add_f32 v[%d:%d], v[%d:%d], v[%d:%d]" % (48 + 2 * q, 49 + 2 * q, 48 + 2 * q, 49 + 2 * q, 56 + 2 * q, 57 + 2 * q))
    for q in range(4):
        a("v_pk_add_f32 v[%d:%d], v[%d:%d], v[%d:%d]" % (32 + 2 * q, 33 + 2 * q, 32 + 2 * q, 33 + 2 * q, 48 + 2 * q, 49 + 2 * q))
    for q in range(4):
        a("v_cvt_pk_bf16_f32 v%d, v%d, v%d" % (72 + q, 32 + 2 * q, 33 + 2 * q))
    for q in range(4):
        a("v_lshlrev_b32 v%d, 16, v%d" % (32 + 2 * q, 72 + q))
        a("v_and_b32 v%d, s27, v%d" % (33 + 2 * q, 72 + q))
    for q in range(4):
        a("v_pk_add_f32 v[%d:%d], v[%d:%d], v[%d:%d]" % (32 + 2 * q, 33 + 2 * q, 32 + 2 * q, 33 + 2 * q, 128 + 2 * q, 129 + 2 * q))
    for q in range(4):
        a("v_cvt_pk_bf16_f32 v%d, v%d, v%d" % (72 + q, 32 + 2 * q, 33 + 2 * q))
    for q in range(4):
        a("v_lshlrev_b32 v%d, 16, v%d" % (32 + 2 * q, 72 + q))
        a("v_and_b32 v%d, s27, v%d" % (33 + 2 * q, 72 + q))
    for q in range(4):
        a("v_pk_mul_f32 v[%d:%d], v[%d:%d], v[%d:%d]" % (32 + 2 * q, 33 + 2 * q, 32 + 2 * q, 33 + 2 * q, 156 + 2 * q, 157 + 2 * q))
    for q in range(4):
        a("v_cvt_pk_bf16_f32 v%d, v%d, v%d" % (72 + q, 32 + 2 * q, 33 + 2 * q))
    a("buffer_store_dwordx4 v[72:75], v5, s[8:11], s23 offen")
    stamp(a)
    dump_stamps(a, 77, 64)
    trace_end(a, 1)
    a("s_endpgm")


TP = 144
RED = 49152
K3_LDS = 65536 + 64 * TP


def gen_gemm(a, which):
    g1 = (which == 1)
    NOCT = 256 if g1 else 224
    S = 32 if g1 else 28
    NS = 6 if g1 else 8
    PW = 3584 if g1 else 4096
    WOFF = 80 if g1 else 96
    WBYTES = 2048 * 1792 * 2
    DOFF = WS_HF if g1 else WS_GF
    TPITCH = NOCT * 512
    NQ = 28 if g1 else 32
    TBASE = 65536
    a.c("---- gemm%d role" % which)
    a.cur = "g%d" % which
    trace_begin(a)
    stamp(a)
    a("s_load_dwordx2 s[4:5], s[0:1], %d" % WOFF)
    a("s_load_dwordx2 s[6:7], s[0:1], 136")
    a("s_load_dwordx2 s[36:37], s[0:1], %d" % (88 if g1 else 104))
    if not g1:
        a("s_load_dwordx2 s[38:39], s[0:1], 120")
    a("v_lshrrev_b32 v1, 6, v0")
    a("v_and_b32 v2, 63, v0")
    a("v_readfirstlane_b32 s3, v1")
    a("s_and_b32 s20, s2, 7")
    a("s_lshr_b32 s21, s2, 3")
    a("s_mul_i32 s20, s20, %d" % NQ)
    a("s_add_u32 s20, s20, s21")
    a("s_lshr_b32 s21, s20, 3")
    a("s_and_b32 s22, s20, 7")
    a("s_mul_i32 s23, s22, %d" % (2 * TPITCH))
    a("s_mul_i32 s24, s3, %d" % (S * 1024))
    a("s_add_u32 s23, s23, s24")
    a("s_add_u32 s23, s23, 0x%x" % DOFF)
    a("v_lshlrev_b32 v3, 4, v2")
    a("v_add_u32 v4, %d, v3" % TPITCH)
    a("v_lshrrev_b32 v5, 3, v2")
    a("v_and_b32 v6, 7, v2")
    a("v_lshlrev_b32 v7, 1, v5")
    a("v_and_b32 v7, 4, v7")
    a("v_xor_b32 v6, v6, v7")
    a("v_mul_u32_u24 v5, %d, v5" % PW)
    a("v_lshl_add_u32 v5, v6, 4, v5")
    a("s_lshl_b32 s24, s21, 7")
    a("v_add_u32 v5, s24, v5")
    a("s_mul_i32 s25, s3, %d" % (S * 16 * PW))
    a("s_mul_i32 s26, s3, %d" % (NS * 2048))
    a("s_waitcnt lgkmcnt(0)")
    srd(a, 8, 4, WBYTES)
    srd(a, 12, 6, WS_SIZE)
    ACC = [[16, 32], [48, 64]]
    DF = [80 + 8 * k for k in range(NS)]
    WFB = 80 + 8 * NS
    XR = WFB + 16

    def issue(st):
        sl = st % NS
        for q in range(2):
            a("s_add_u32 m0, s26, %d" % (sl * 2048 + q * 1024))
            a("s_add_u32 s27, s25, %d" % ((16 * st + 8 * q) * PW))
            a("buffer_load_dwordx4 v5, s[8:11], s27 offen lds")
        a("s_add_u32 s28, s23, %d" % ((st & ~3) * 1024))
        for t in range(2):
            r = DF[sl] + 4 * t
            a("buffer_load_dwordx4 v[%d:%d], v%d, s[12:15], s28 offen offset:%d" % (r, r + 3, 3 + t, (st & 3) * 1024))

    issue(0)
    issue(1)
    srd(a, 40, 36, 3584 if g1 else 4096)
    if not g1:
        srd(a, 44, 38, 2 * MB)
    for st in range(2, NS):
        issue(st)
    a("v_lshrrev_b32 v8, 4, v2")
    a("v_and_b32 v9, 15, v2")
    a("v_lshrrev_b32 v10, 2, v9")
    a("v_and_b32 v11, 3, v9")
    a("v_lshrrev_b32 v12, 1, v8")
    a("v_lshl_add_u32 v12, v12, 3, v10")
    a("v_lshlrev_b32 v12, 7, v12")
    a("v_and_b32 v13, 1, v8")
    a("v_lshlrev_b32 v13, 1, v13")
    a("v_lshrrev_b32 v14, 1, v11")
    a("v_add_u32 v13, v13, v14")
    a("v_lshlrev_b32 v14, 1, v10")
    a("v_and_b32 v14, 4, v14")
    a("v_xor_b32 v13, v13, v14")
    a("v_lshl_add_u32 v12, v13, 4, v12")
    a("v_and_b32 v14, 1, v11")
    a("v_lshl_add_u32 v12, v14, 3, v12")
    a("v_add_u32 v12, s26, v12")
    a("v_xor_b32 v13, 64, v12")
    a("s_lshr_b32 s29, s3, 1")
    a("s_and_b32 s30, s3, 1")
    a("v_and_b32 v6, 31, v2")
    a("v_lshrrev_b32 v7, 5, v2")
    NX = 0
    if g1:
        a("s_lshl_b32 s31, s21, 7")
        a("s_lshl_b32 s32, s29, 6")
        a("s_add_u32 s31, s31, s32")
        a("v_lshlrev_b32 v14, 3, v7")
        for rq in range(4):
            a("buffer_load_dwordx2 v[%d:%d], v14, s[40:43], s31 offen offset:%d" % (XR + 2 * rq, XR + 2 * rq + 1, 16 * rq))
        NX = 4
    else:
        a("s_lshl_b32 s31, s22, 18")
        a("s_lshl_b32 s32, s21, 12")
        a("s_add_u32 s31, s31, s32")
        a("s_add_u32 s31, s31, 0x%x" % WS_AF)
        a("s_add_u32 s32, s31, 131072")
        a("v_lshlrev_b32 v15, 4, v0")
        a("buffer_load_dwordx4 v[%d:%d], v15, s[12:15], s31 offen" % (XR, XR + 3))
        a("buffer_load_dwordx4 v[%d:%d], v15, s[12:15], s32 offen" % (XR + 4, XR + 7))
        a("s_lshl_b32 s33, s21, 6")
        a("s_lshl_b32 s34, s30, 5")
        a("s_add_u32 s33, s33, s34")
        a("v_add_u32 v14, s33, v6")
        a("v_lshlrev_b32 v15, 2, v14")
        a("s_mov_b32 s34, 0x%x" % WS_GT)
        a("buffer_load_dword v%d, v15, s[12:15], s34 offen" % (XR + 8))
        a("v_lshlrev_b32 v15, 1, v14")
        a("buffer_load_ushort v%d, v15, s[40:43], 0 offen" % (XR + 9))
        NX = 4
    stamp(a)

    def trreads(st):
        sl = st % NS
        for nu in range(2):
            for h in range(2):
                r = WFB + 8 * (st & 1) + 4 * nu + 2 * h
                a("ds_read_b64_tr_b16 v[%d:%d], v%d offset:%d" % (r, r + 1, 12 + nu, sl * 2048 + h * 512))

    q = []
    for st in range(NS):
        q += [st] * 4
    q += ["x"] * NX

    def wait_for(st):
        idx = max(i for i, t in enumerate(q) if t == st)
        a("s_waitcnt vmcnt(%d)" % (len(q) - 1 - idx))

    wait_for(0)
    trreads(0)
    for st in range(S):
        if st + 1 < S:
            wait_for(st + 1)
            trreads(st + 1)
            a("s_waitcnt lgkmcnt(4)")
        else:
            a("s_waitcnt lgkmcnt(0)")
        if st in (1, 17):
            stamp(a)
        sl = st % NS
        for nu in range(2):
            for t in range(2):
                wf = WFB + 8 * (st & 1) + 4 * nu
                df = DF[sl] + 4 * t
                if g1:
                    acc = ACC[nu][t]
                    A_, B_ = wf, df
                else:
                    acc = ACC[t][nu]
                    A_, B_ = df, wf
                c = "0" if st == 0 else "v[%d:%d]" % (acc, acc + 15)
                a("v_mfma_f32_32x32x16_bf16 v[%d:%d], v[%d:%d], v[%d:%d], %s" % (acc, acc + 15, A_, A_ + 3, B_, B_ + 3, c))
        if st + NS < S:
            issue(st + NS)
            q += [st + NS] * 4
    stamp(a)
    F = 80
    a("s_mov_b32 s27, 0xffff0000")
    if not g1:
        a("v_and_b32 v9, 31, v0")
        a("v_mul_u32_u24 v9, %d, v9" % TP)
        a("v_lshrrev_b32 v10, 5, v0")
        a("v_lshl_add_u32 v9, v10, 4, v9")
        a("v_add_u32 v9, %d, v9" % TBASE)
        a("s_waitcnt vmcnt(0)")
        a("ds_write_b128 v9, v[%d:%d]" % (XR, XR + 3))
        a("ds_write_b128 v9, v[%d:%d] offset:%d" % (XR + 4, XR + 7, 32 * TP))
    a("s_barrier")
    a.nop(4)
    for qd in range(4):
        acc = ACC[qd >> 1][qd & 1]
        a("s_cmp_eq_u32 s3, %d" % qd)
        a("s_cbranch_scc1 L_g%d_own%d" % (which, qd))
        a("s_sub_u32 s28, s3, %d" % (qd + 1))
        a("s_and_b32 s28, s28, 3")
        a("s_add_u32 s28, s28, %d" % (qd * 3))
        a("s_lshl_b32 s28, s28, 12")
        a("v_add_u32 v8, s28, v3")
        for rq in range(4):
            a("ds_write_b128 v8, v[%d:%d] offset:%d" % (acc + 4 * rq, acc + 4 * rq + 3, rq * 1024))
        a("s_branch L_g%d_nx%d" % (which, qd))
        a.lab("L_g%d_own%d" % (which, qd))
        for k in range(8):
            a("v_pk_add_f32 v[%d:%d], v[%d:%d], 0" % (F + 2 * k, F + 2 * k + 1, acc + 2 * k, acc + 2 * k + 1))
        a.lab("L_g%d_nx%d" % (which, qd))
    a("s_mul_i32 s28, s3, %d" % (3 * 4096))
    a("v_add_u32 v8, s28, v3")
    if g1:
        a("s_lshl_b32 s32, s22, 1")
        a("s_add_u32 s32, s32, s30")
        a("s_mul_i32 s32, s32, %d" % (224 * 512))
        a("s_lshl_b32 s33, s21, 12")
        a("s_add_u32 s32, s32, s33")
        a("s_lshl_b32 s33, s29, 11")
        a("s_add_u32 s32, s32, s33")
        a("s_add_u32 s32, s32, 0x%x" % WS_GF)
        a("v_lshlrev_b32 v11, 4, v6")
        a("v_lshl_add_u32 v11, v7, 3, v11")
    else:
        a("v_lshrrev_b32 v9, 4, v2")
        a("v_and_b32 v10, 15, v2")
        a("v_lshrrev_b32 v13, 2, v10")
        a("v_lshl_add_u32 v13, v7, 2, v13")
        a("v_mul_u32_u24 v13, %d, v13" % TP)
        a("v_and_b32 v10, 3, v10")
        a("v_lshl_add_u32 v13, v10, 3, v13")
        a("v_and_b32 v9, 1, v9")
        a("v_lshl_add_u32 v13, v9, 5, v13")
        a("s_mul_i32 s32, s29, %d" % (32 * TP))
        a("s_lshl_b32 s33, s30, 6")
        a("s_add_u32 s32, s32, s33")
        a("s_add_u32 s32, s32, %d" % TBASE)
        a("v_add_u32 v13, s32, v13")
        a("v_lshlrev_b32 v14, 10, v14")
        a("v_lshl_add_u32 v14, v7, 3, v14")
        a("s_lshl_b32 s33, s22, 7")
        a("s_lshl_b32 s34, s29, 6")
        a("s_add_u32 s33, s33, s34")
    a("s_waitcnt lgkmcnt(0)")
    a("s_barrier")
    P = 96
    for rq in range(4):
        for k in range(3):
            a("ds_read_b128 v[%d:%d], v8 offset:%d" % (P + 16 * k + 4 * rq, P + 16 * k + 4 * rq + 3, k * 4096 + rq * 1024))
    if not g1:
        for rq in range(4):
            a("ds_read_b64_tr_b16 v[%d:%d], v13 offset:%d" % (16 + 2 * rq, 17 + 2 * rq, 8 * rq * TP))
        a("v_lshlrev_b32 v%d, 16, v%d" % (XR + 9, XR + 9))
        a("v_sub_f32 v%d, 1.0, v%d" % (XR + 8, XR + 8))
        bf16r(a, XR + 8)
        a("v_mov_b32 v%d, v%d" % (XR + 11, XR + 9))
        a("v_mov_b32 v%d, v%d" % (XR + 10, XR + 9))
        a("v_mov_b32 v%d, v%d" % (XR + 9, XR + 8))
    else:
        a("s_waitcnt vmcnt(0)")
        k1 = -2.0 * 0.7978845608028654 * 1.4426950408889634
        a("v_mov_b32 v16, 0x%x" % f32(k1))
        a("v_mov_b32 v17, 0x%x" % f32(k1))
        a("v_mov_b32 v18, 0x%x" % f32(k1 * 0.044715))
        a("v_mov_b32 v19, 0x%x" % f32(k1 * 0.044715))
        a("v_mov_b32 v20, 1.0")
        a("v_mov_b32 v21, 1.0")
    nrd = 12 + (0 if g1 else 4)

    def pk(op, d, x, y):
        a("v_pk_%s_f32 v[%d:%d], v[%d:%d], v[%d:%d]" % (op, d, d + 1, x, x + 1, y, y + 1))

    def rnd(base, n, tmp):
        for k in range(n // 2):
            a("v_cvt_pk_bf16_f32 v%d, v%d, v%d" % (tmp + k, base + 2 * k, base + 2 * k + 1))
        for k in range(n // 2):
            a("v_lshlrev_b32 v%d, 16, v%d" % (base + 2 * k, tmp + k))
            a("v_and_b32 v%d, s27, v%d" % (base + 2 * k + 1, tmp + k))

    for half in range(2):
        a("s_waitcnt lgkmcnt(%d)" % (nrd - 6 * (half + 1)))
        for k in range(3):
            for e in range(4):
                pk("add", F + 8 * half + 2 * e, F + 8 * half + 2 * e, P + 16 * k + 8 * half + 2 * e)
    TM = 48
    B = 32
    rnd(F, 16, TM)
    if g1:
        for k in range(8):
            a("v_lshlrev_b32 v%d, 16, v%d" % (B + 2 * k, XR + k))
            a("v_and_b32 v%d, s27, v%d" % (B + 2 * k + 1, XR + k))
        for e in range(8):
            pk("add", F + 2 * e, F + 2 * e, B + 2 * e)
        rnd(F, 16, TM)
        for e in range(8):
            pk("mul", B + 2 * e, F + 2 * e, F + 2 * e)
        for e in range(8):
            a("v_pk_fma_f32 v[%d:%d], v[%d:%d], v[18:19], v[16:17]" % (B + 2 * e, B + 2 * e + 1, B + 2 * e, B + 2 * e + 1))
        for e in range(8):
            pk("mul", B + 2 * e, B + 2 * e, F + 2 * e)
        for j in range(16):
            a("v_exp_f32 v%d, v%d" % (B + j, B + j))
        for e in range(8):
            pk("add", B + 2 * e, B + 2 * e, 20)
        for j in range(16):
            a("v_rcp_f32 v%d, v%d" % (B + j, B + j))
        a.nop(1)
        for e in range(8):
            pk("mul", F + 2 * e, F + 2 * e, B + 2 * e)
        for k in range(8):
            a("v_cvt_pk_bf16_f32 v%d, v%d, v%d" % (TM + k, F + 2 * k, F + 2 * k + 1))
        for rq in range(4):
            a("buffer_store_dwordx2 v[%d:%d], v11, s[12:15], s32 offen offset:%d" % (TM + 2 * rq, TM + 2 * rq + 1, 512 * rq))
    else:
        for e in range(8):
            pk("add", F + 2 * e, F + 2 * e, XR + 10)
        rnd(F, 16, TM)
        for e in range(8):
            pk("mul", F + 2 * e, F + 2 * e, XR + 8)
        rnd(F, 16, TM)
        a("s_waitcnt lgkmcnt(0)")
        for k in range(8):
            a("v_lshlrev_b32 v%d, 16, v%d" % (B + 2 * k, 16 + k))
            a("v_and_b32 v%d, s27, v%d" % (B + 2 * k + 1, 16 + k))
        for e in range(8):
            pk("add", F + 2 * e, F + 2 * e, B + 2 * e)
        for k in range(8):
            a("v_cvt_pk_bf16_f32 v%d, v%d, v%d" % (TM + k, F + 2 * k, F + 2 * k + 1))
        for rq in range(4):
            a("buffer_store_dwordx2 v[%d:%d], v14, s[44:47], s33 offen offset:%d" % (TM + 2 * rq, TM + 2 * rq + 1, 16 * rq))
    stamp(a)
    dump_stamps(a, 9)
    trace_end(a, which)
    a("s_endpgm")


def kd(name, vgpr, sgpr=102):
    acc = (vgpr + 3) // 4 * 4
    return """.amdhsa_kernel %s
  .amdhsa_next_free_vgpr %d
  .amdhsa_next_free_sgpr %d
  .amdhsa_accum_offset %d
  .amdhsa_group_segment_fixed_size 0
  .amdhsa_kernarg_size 144
  .amdhsa_user_sgpr_count 2
  .amdhsa_user_sgpr_kernarg_segment_ptr 1
  .amdhsa_system_sgpr_workgroup_id_x 1
.end_amdhsa_kernel
""" % (name, vgpr, sgpr, acc)


def main(out):
    ref = open("cdna_kernels/%s.s.ref" % NAME).read()
    head = []
    for ln in ref.splitlines():
        if ln.startswith("; @launch"):
            break
        if ln.startswith("; Override") or ln.startswith("; grid=ceil"):
            continue
        head.append(ln)
    a = A()
    K1, K2, K3 = "k1_prep_kernel", "k2_gemm1_conv_kernel", "k3_gemm2_kernel"
    head.append("; @launch kernel=%s grid=(%d,1,1) block=(512,1,1) lds=%d" % (K1, 256, PREP_LDS))
    head.append("; @launch kernel=%s grid=(%d,1,1) block=(256,1,1) lds=%d" % (K2, 224 + 512, K2_LDS))
    head.append("; @launch kernel=%s grid=(%d,1,1) block=(256,1,1) lds=%d" % (K3, 256, K3_LDS))
    a.L += head
    a.L.append('.amdgcn_target "amdgcn-amd-amdhsa--gfx950"')
    a.L.append(".text")

    def start(k):
        a.L.append(".globl %s" % k)
        a.L.append(".p2align 8")
        a.L.append(".type %s,@function" % k)
        a.lab(k)

    start(K1)
    a("s_cmp_ge_u32 s2, 256")
    a("s_cbranch_scc1 L_k1_exit")
    gen_prep(a)
    a.lab("L_k1_exit")
    a("s_endpgm")

    start(K2)
    a("s_cmp_ge_u32 s2, %d" % (224 + 512))
    a("s_cbranch_scc1 L_k2_exit")
    if "cfirst" in X:
        a("s_cmp_lt_u32 s2, 512")
        a("s_cbranch_scc1 %s" % ("L_k2_exit" if "noConv" in X else "L_k2_conv"))
        a("s_sub_u32 s2, s2, 512")
    else:
        a("s_cmp_ge_u32 s2, 224")
        a("s_cbranch_scc1 %s" % ("L_k2_exit" if "noConv" in X else "L_k2_conv"))
    if "noG1" in X:
        a("s_branch L_k2_exit")
    if "prio" in X:
        a("s_setprio 3")
    gen_gemm(a, 1)
    a.lab("L_k2_exit")
    a("s_endpgm")
    a.lab("L_k2_conv")
    gen_conv(a, 0 if "cfirst" in X else 224)

    start(K3)
    a("s_cmp_ge_u32 s2, 256")
    a("s_cbranch_scc1 L_k3_exit")
    gen_gemm(a, 2)
    a.lab("L_k3_exit")
    a("s_endpgm")

    a.L.append('.section .rodata,"a"')
    for k, v in ((K1, 64), (K2, 168), (K3, 176)):
        a.L.append(".p2align 6")
        a.L.append(kd(k, v))
    open(out, "w").write("\n".join(a.L) + "\n")


if __name__ == "__main__":
    main(sys.argv[1] if len(sys.argv) > 1 else "cdna_kernels/%s.s" % NAME)
```

```python
import struct, sys, os
X = os.environ.get("GENX", "")
GX = X
WH = " nt" if "wnt" in X else (" sc1" if "wsc1" in X else "")
DH = " nt" if "dnt" in X else (" sc1" if "dsc1" in X else "")

NAME = "gated_mix__ssm_conv_s4__mixer_token_mlp__prompt"

MB = 1 << 20
WS_HF = 0
WS_UF = 2 * MB
WS_GF = 4 * MB
WS_AF = 6 * MB
WS_GT = 8 * MB
WS_RK = 9 * MB
WS_SIZE = 268435456

NPREP = 64
HILO = True


def f32(x):
    return struct.unpack("<I", struct.pack("<f", x))[0]


class A:
    def __init__(self):
        self.L = []
        self.cur = ""

    def __call__(self, s):
        self.L.append("    " + s)

    def lab(self, s):
        self.L.append(s + ":")

    def nop(self, n):
        while n > 0:
            k = min(n, 16)
            self("s_nop %d" % (k - 1))
            n -= k

    def c(self, s):
        self.L.append("    ; " + s)


STAMPS = [0]
def stamp(a):
    if "stamp" not in X:
        return
    k = STAMPS[0]
    a("s_memtime s[%d:%d]" % (72 + 2 * k, 73 + 2 * k))
    STAMPS[0] += 1


def dump_stamps(a, wg, off=0):
    if "stamp" not in X:
        return
    n = STAMPS[0]
    STAMPS[0] = 0
    a("s_waitcnt vmcnt(0) lgkmcnt(0)")
    a("s_memtime s[%d:%d]" % (72 + 2 * n, 73 + 2 * n))
    n += 1
    a("s_load_dwordx2 s[96:97], s[0:1], 128")
    a("s_waitcnt lgkmcnt(0)")
    a("s_mov_b32 s98, 256")
    a("s_mov_b32 s99, 0x00020000")
    a("s_mov_b64 exec, -1")
    a("v_lshrrev_b32 v1, 6, v0")
    a("s_nop 1")
    a("v_readfirstlane_b32 s95, v1")
    a("s_cmp_lg_u32 s95, 0")
    a("s_cbranch_scc1 L_nostamp%d" % len(a.L))
    lab = "L_nostamp%d" % (len(a.L) - 1)
    a("s_cmp_lg_u32 s2, %d" % wg)
    a("s_cbranch_scc1 %s" % lab)
    a("s_mov_b64 exec, 1")
    a("v_mov_b32 v1, 0")
    for k in range(n):
        a("v_mov_b32 v2, s%d" % (72 + 2 * k))
        a("buffer_store_dword v2, v1, s[96:99], 0 offen offset:%d" % (off + 4 * k))
    a.lab(lab)


def trace_begin(a):
    if "trace" not in X:
        return
    a("s_memrealtime s[88:89]")
    a("s_memtime s[90:91]")
    a("s_mov_b32 s94, s2")
    if "cfirst" in X and a.cur == "g1":
        a("s_add_u32 s94, s94, 512")


def trace_end(a, launch):
    if "trace" not in X:
        return
    a("s_waitcnt vmcnt(0) lgkmcnt(0)")
    a("s_memrealtime s[92:93]")
    a("s_memtime s[84:85]")
    a("s_load_dwordx2 s[96:97], s[0:1], 136")
    a("s_waitcnt lgkmcnt(0)")
    a("s_mov_b32 s98, 0x%x" % WS_SIZE)
    a("s_mov_b32 s99, 0x00020000")
    a("s_mov_b64 exec, -1")
    a("v_lshrrev_b32 v1, 6, v0")
    a("s_nop 1")
    a("v_readfirstlane_b32 s95, v1")
    a("s_cmp_lg_u32 s95, 0")
    a("s_cbranch_scc1 L_notr%d" % len(a.L))
    lab = "L_notr%d" % (len(a.L) - 1)
    a("s_lshl_b32 s94, s94, 4")
    a("s_add_u32 s94, s94, 0x%x" % (64 * MB + launch * 65536))
    a("s_mov_b64 exec, 1")
    a("v_mov_b32 v1, 0")
    a("v_mov_b32 v4, s88")
    a("v_mov_b32 v5, s92")
    if "hwid" in X:
        a("s_getreg_b32 s90, hwreg(HW_REG_HW_ID)")
        a("s_getreg_b32 s84, hwreg(HW_REG_XCC_ID)")
    a("v_mov_b32 v6, s90")
    a("v_mov_b32 v7, s84")
    a("buffer_store_dwordx4 v[4:7], v1, s[96:99], s94 offen")
    a.lab(lab)


def srd(a, d, base, nbytes, off=0):
    if off:
        a("s_add_u32 s%d, s%d, 0x%x" % (d, base, off))
        a("s_addc_u32 s%d, s%d, 0" % (d + 1, base + 1))
    else:
        a("s_mov_b32 s%d, s%d" % (d, base))
        a("s_mov_b32 s%d, s%d" % (d + 1, base + 1))
    a("s_mov_b32 s%d, 0x%x" % (d + 2, nbytes))
    a("s_mov_b32 s%d, 0x00020000" % (d + 3))


def bf16r(a, v):
    a("v_cvt_pk_bf16_f32 v%d, v%d, v%d" % (v, v, v))
    a("v_lshlrev_b32 v%d, 16, v%d" % (v, v))


def wave_reduce(a, regs):
    assert len(regs) >= 3
    steps = ["quad_perm:[1,0,3,2] row_mask:0xf bank_mask:0xf",
             "quad_perm:[2,3,0,1] row_mask:0xf bank_mask:0xf",
             "row_half_mirror row_mask:0xf bank_mask:0xf",
             "row_mirror row_mask:0xf bank_mask:0xf",
             "row_bcast:15 row_mask:0xa bank_mask:0xf",
             "row_bcast:31 row_mask:0xc bank_mask:0xf"]
    a.nop(2)
    for st in steps:
        for r in regs:
            a("v_add_f32_dpp v%d, v%d, v%d %s" % (r, r, r, st))
    a.nop(1)


RP = 1024 + 64
UTP = 128 + 64
TBP = 528
XT = 0
YT = 41 * TBP
KT = 82 * TBP
K1_LDS = KT + 2576
DSTEPS = ["quad_perm:[1,0,3,2] row_mask:0xf bank_mask:0xf",
          "quad_perm:[2,3,0,1] row_mask:0xf bank_mask:0xf",
          "row_half_mirror row_mask:0xf bank_mask:0xf",
          "row_mirror row_mask:0xf bank_mask:0xf",
          "row_bcast:15 row_mask:0xa bank_mask:0xf",
          "row_bcast:31 row_mask:0xc bank_mask:0xf"]


def prep_row(R, SR):
    a = A()
    XV, T, M = R + 8, R + 16, R + 24
    GW = 24
    for q in range(4):
        a("v_lshlrev_b32 v%d, 16, v%d" % (XV + 2 * q, R + q))
        a("v_and_b32 v%d, s27, v%d" % (XV + 2 * q + 1, R + q))
    for q in range(4):
        a("v_pk_mul_f32 v[%d:%d], v[%d:%d], v[%d:%d]" % (T + 2 * q, T + 2 * q + 1, XV + 2 * q, XV + 2 * q + 1, GW + 2 * q, GW + 2 * q + 1))
    a("v_pk_add_f32 v[%d:%d], v[%d:%d], v[%d:%d]" % (M, M + 1, XV, XV + 1, XV + 2, XV + 3))
    a("v_pk_add_f32 v[%d:%d], v[%d:%d], v[%d:%d]" % (M + 2, M + 3, XV + 4, XV + 5, XV + 6, XV + 7))
    for q in range(4):
        a("v_cvt_pk_bf16_f32 v%d, v%d, v%d" % (M + 4 + q, T + 2 * q, T + 2 * q + 1))
    a("v_pk_add_f32 v[%d:%d], v[%d:%d], v[%d:%d]" % (M, M + 1, M, M + 1, M + 2, M + 3))
    for q in range(4):
        a("v_lshlrev_b32 v%d, 16, v%d" % (T + 2 * q, M + 4 + q))
        a("v_and_b32 v%d, s27, v%d" % (T + 2 * q + 1, M + 4 + q))
    a("v_add_f32 v%d, v%d, v%d" % (M, M, M + 1))
    a("v_pk_add_f32 v[%d:%d], v[%d:%d], v[%d:%d]" % (M + 2, M + 3, T, T + 1, T + 2, T + 3))
    a("v_pk_add_f32 v[%d:%d], v[%d:%d], v[%d:%d]" % (M + 4, M + 5, T + 4, T + 5, T + 6, T + 7))
    a("v_pk_add_f32 v[%d:%d], v[%d:%d], v[%d:%d]" % (M + 2, M + 3, M + 2, M + 3, M + 4, M + 5))
    a("v_add_f32 v%d, v%d, v%d" % (M + 1, M + 2, M + 3))
    a.nop(1)
    for st in DSTEPS:
        a("v_add_f32_dpp v%d, v%d, v%d %s" % (M, M, M, st))
        a("v_add_f32_dpp v%d, v%d, v%d %s" % (M + 1, M + 1, M + 1, st))
        a.nop(1)
    a("v_readlane_b32 s%d, v%d, 63" % (SR, M))
    a("v_readlane_b32 s%d, v%d, 63" % (SR + 1, M + 1))
    a.nop(2)
    G = M + 10
    a("v_mul_f32 v%d, s%d, v60" % (M + 2, SR))
    a("v_mul_f32 v%d, s%d, v60" % (M + 3, SR))
    a("v_mov_b32 v%d, s%d" % (G, SR + 1))
    for q in range(4):
        a("v_pk_add_f32 v[%d:%d], v[%d:%d], v[%d:%d] neg_lo:[0,1] neg_hi:[0,1]" % (T + 2 * q, T + 2 * q + 1, XV + 2 * q, XV + 2 * q + 1, M + 2, M + 3))
    a("v_pk_mul_f32 v[%d:%d], v[%d:%d], v[%d:%d]" % (M + 4, M + 5, T, T + 1, T, T + 1))
    a("v_pk_mul_f32 v[%d:%d], v[%d:%d], v[%d:%d]" % (M + 6, M + 7, T + 2, T + 3, T + 2, T + 3))
    a("v_pk_fma_f32 v[%d:%d], v[%d:%d], v[%d:%d], v[%d:%d]" % (M + 4, M + 5, T + 4, T + 5, T + 4, T + 5, M + 4, M + 5))
    a("v_pk_fma_f32 v[%d:%d], v[%d:%d], v[%d:%d], v[%d:%d]" % (M + 6, M + 7, T + 6, T + 7, T + 6, T + 7, M + 6, M + 7))
    bf16r(a, G)
    a("v_pk_add_f32 v[%d:%d], v[%d:%d], v[%d:%d]" % (M + 4, M + 5, M + 4, M + 5, M + 6, M + 7))
    a("v_mul_f32 v%d, 0x%x, v%d" % (G, f32(-1.4426950408889634), G))
    a("v_add_f32 v%d, v%d, v%d" % (M + 4, M + 4, M + 5))
    a("v_exp_f32 v%d, v%d" % (G, G))
    bf16r(a, M + 2)
    for k, st in enumerate(DSTEPS):
        a("v_add_f32_dpp v%d, v%d, v%d %s" % (M + 4, M + 4, M + 4, st))
        if k == 0:
            a("v_add_f32 v%d, 1.0, v%d" % (G, G))
            a("v_mov_b32 v%d, v%d" % (M + 3, M + 2))
        elif k == 1:
            a("v_rcp_f32 v%d, v%d" % (G, G))
            a.nop(1)
        else:
            a.nop(2)
    a("v_readlane_b32 s%d, v%d, 63" % (SR + 2, M + 4))
    for q in range(4):
        a("v_pk_add_f32 v[%d:%d], v[%d:%d], v[%d:%d] neg_lo:[0,1] neg_hi:[0,1]" % (XV + 2 * q, XV + 2 * q + 1, XV + 2 * q, XV + 2 * q + 1, M + 2, M + 3))
    a("v_mul_f32 v%d, s%d, v60" % (M + 4, SR + 2))
    for q in range(4):
        a("v_cvt_pk_bf16_f32 v%d, v%d, v%d" % (T + q, XV + 2 * q, XV + 2 * q + 1))
    bf16r(a, M + 4)
    bf16r(a, G)
    a("v_add_f32 v%d, v%d, v61" % (M + 4, M + 4))
    for q in range(4):
        a("v_lshlrev_b32 v%d, 16, v%d" % (XV + 2 * q, T + q))
        a("v_and_b32 v%d, s27, v%d" % (XV + 2 * q + 1, T + q))
    bf16r(a, M + 4)
    a("v_sqrt_f32 v%d, v%d" % (M + 4, M + 4))
    a.nop(1)
    bf16r(a, M + 4)
    a("v_rcp_f32 v%d, v%d" % (M + 4, M + 4))
    a.nop(1)
    a("v_mov_b32 v%d, v%d" % (M + 5, M + 4))
    for q in range(4):
        a("v_pk_mul_f32 v[%d:%d], v[%d:%d], v[%d:%d]" % (XV + 2 * q, XV + 2 * q + 1, XV + 2 * q, XV + 2 * q + 1, M + 4, M + 5))
    for q in range(4):
        a("v_cvt_pk_bf16_f32 v%d, v%d, v%d" % (T + q, XV + 2 * q, XV + 2 * q + 1))
    return a.L, T, G


def gen_prep(a, first_wg):
    a.c("---- prep role: wave handles 2 rows, WG = 8 rows")
    a.cur = "prep"
    trace_begin(a)
    stamp(a)
    a("s_sub_u32 s2, s2, %d" % first_wg)
    a("s_load_dwordx2 s[4:5], s[0:1], 0")
    a("s_load_dwordx2 s[6:7], s[0:1], 112")
    a("s_load_dwordx2 s[8:9], s[0:1], 136")
    a("v_lshrrev_b32 v1, 6, v0")
    a("v_and_b32 v2, 63, v0")
    a("v_readfirstlane_b32 s3, v1")
    a("v_lshlrev_b32 v3, 4, v2")
    a("s_lshl_b32 s24, s2, 3")
    a("s_lshl_b32 s25, s3, 1")
    a("s_add_u32 s24, s24, s25")
    a("s_lshl_b32 s25, s24, 10")
    a("s_mov_b32 s27, 0xffff0000")
    a("s_waitcnt lgkmcnt(0)")
    srd(a, 12, 4, 2 * MB)
    srd(a, 16, 6, 1024)
    R0, R1 = 64, 104
    a("buffer_load_dwordx4 v[%d:%d], v3, s[12:15], s25 offen" % (R0, R0 + 3))
    a("buffer_load_dwordx4 v[%d:%d], v3, s[12:15], s25 offen offset:1024" % (R1, R1 + 3))
    a("buffer_load_dwordx4 v[12:15], v3, s[16:19], 0 offen")
    a("s_lshr_b32 s40, s2, 3")
    a("s_and_b32 s41, s2, 7")
    a("s_lshl_b32 s42, s40, 16")
    a("s_lshl_b32 s43, s41, 7")
    a("s_add_u32 s42, s42, s43")
    a("v_lshrrev_b32 v44, 3, v0")
    a("v_and_b32 v45, 7, v0")
    a("v_lshlrev_b32 v43, 10, v44")
    a("v_lshl_add_u32 v43, v45, 4, v43")
    a("buffer_load_dwordx4 v[32:35], v43, s[12:15], s42 offen")
    a("s_add_u32 s43, s42, 32768")
    a("buffer_load_dwordx4 v[36:39], v43, s[12:15], s43 offen")
    a("v_mul_u32_u24 v40, %d, v44" % UTP)
    a("v_lshl_add_u32 v40, v45, 4, v40")
    a("v_and_b32 v44, 15, v2")
    a("v_lshrrev_b32 v41, 2, v44")
    a("s_lshl_b32 s44, s3, 4")
    a("v_add_u32 v41, s44, v41")
    a("v_mul_u32_u24 v41, %d, v41" % UTP)
    a("v_and_b32 v44, 3, v44")
    a("v_lshl_add_u32 v41, v44, 3, v41")
    a("v_lshrrev_b32 v44, 4, v2")
    a("v_lshl_add_u32 v41, v44, 5, v41")
    a("v_lshlrev_b32 v42, 12, v2")
    a("s_lshl_b32 s44, s41, 18")
    a("s_lshl_b32 s45, s40, 7")
    a("s_add_u32 s44, s44, s45")
    a("s_lshl_b32 s45, s3, 5")
    a("s_add_u32 s44, s44, s45")
    a("s_add_u32 s44, s44, 0x%x" % WS_UF)
    srd(a, 20, 8, WS_SIZE)
    a("s_mul_i32 s26, s3, %d" % (2 * RP))
    a("v_add_u32 v4, s26, v3")
    a("v_and_b32 v5, 15, v2")
    a("v_lshrrev_b32 v6, 2, v5")
    a("v_mul_u32_u24 v6, %d, v6" % RP)
    a("v_and_b32 v5, 3, v5")
    a("v_lshl_add_u32 v6, v5, 3, v6")
    a("v_lshrrev_b32 v5, 4, v2")
    a("v_lshl_add_u32 v6, v5, 5, v6")
    a("s_lshl_b32 s26, s3, 8")
    a("v_add_u32 v6, s26, v6")
    a("v_lshrrev_b32 v7, 5, v2")
    a("s_lshl_b32 s26, s3, 2")
    a("v_add_u32 v7, s26, v7")
    a("v_lshlrev_b32 v7, 17, v7")
    a("v_and_b32 v5, 31, v2")
    a("v_lshl_add_u32 v7, v5, 4, v7")
    a("s_lshl_b32 s28, s2, 9")
    a("s_add_u32 s29, s28, %d" % (2 * 131072))
    a("v_mov_b32 v60, 0x%x" % f32(1.0 / 512))
    a("v_mov_b32 v61, 0x%x" % f32(1e-5))
    a("s_lshl_b32 s30, s24, 2")
    a("s_add_u32 s30, s30, 0x%x" % WS_GT)
    a("v_mov_b32 v8, 0")
    a("s_waitcnt vmcnt(2)")
    stamp(a)
    for q in range(4):
        a("v_lshlrev_b32 v%d, 16, v%d" % (24 + 2 * q, 12 + q))
        a("v_and_b32 v%d, s27, v%d" % (25 + 2 * q, 12 + q))
    L0, T0, G0 = prep_row(R0, 32)
    L1, T1, G1 = prep_row(R1, 36)
    for x, y in zip(L0, L1):
        if "s_nop 0" in x:
            continue
        if "s_nop 1" in x:
            a("s_nop 0")
            continue
        a.L.append(x)
        a.L.append(y)
    a("s_waitcnt vmcnt(0)")
    a("ds_write_b128 v40, v[32:35] offset:%d" % (8 * RP))
    a("ds_write_b128 v40, v[36:39] offset:%d" % (8 * RP + 32 * UTP))
    a("ds_write_b128 v4, v[%d:%d]" % (T0, T0 + 3))
    a("ds_write_b128 v4, v[%d:%d] offset:%d" % (T1, T1 + 3, RP))
    a("s_mov_b64 exec, 1")
    a("buffer_store_dword v%d, v8, s[20:23], s30 offen" % G0)
    a("buffer_store_dword v%d, v8, s[20:23], s30 offen offset:4" % G1)
    a("s_mov_b64 exec, -1")
    a("s_waitcnt lgkmcnt(0)")
    a("s_barrier")
    stamp(a)
    for p in range(2):
        a("ds_read_b64_tr_b16 v[%d:%d], v6 offset:%d" % (8 + 4 * p, 9 + 4 * p, 128 * p))
        a("ds_read_b64_tr_b16 v[%d:%d], v6 offset:%d" % (10 + 4 * p, 11 + 4 * p, 4 * RP + 128 * p))
    for p in range(2):
        for h in range(2):
            a("ds_read_b64_tr_b16 v[%d:%d], v41 offset:%d" % (32 + 4 * p + 2 * h, 33 + 4 * p + 2 * h, 8 * RP + (8 * p + 4 * h) * UTP))
    a("s_waitcnt lgkmcnt(6)")
    a("buffer_store_dwordx4 v[8:11], v7, s[20:23], s28 offen")
    a("s_waitcnt lgkmcnt(4)")
    a("buffer_store_dwordx4 v[12:15], v7, s[20:23], s29 offen")
    a("s_waitcnt lgkmcnt(2)")
    a("buffer_store_dwordx4 v[32:35], v42, s[20:23], s44 offen")
    a("s_waitcnt lgkmcnt(0)")
    a("buffer_store_dwordx4 v[36:39], v42, s[20:23], s44 offen offset:16")
    stamp(a)
    dump_stamps(a, 5)
    trace_end(a, 0)
    a("s_endpgm")


def gen_utr(a, first_wg):
    a.c("---- U transposer role: tile 64 s x 64 d -> UT[d][s]")
    a.cur = "utr"
    trace_begin(a)
    a("s_sub_u32 s2, s2, %d" % first_wg)
    a("s_load_dwordx2 s[4:5], s[0:1], 0")
    a("s_load_dwordx2 s[8:9], s[0:1], 136")
    a("v_lshrrev_b32 v1, 6, v0")
    a("v_and_b32 v2, 63, v0")
    a("v_readfirstlane_b32 s3, v1")
    a("s_lshr_b32 s20, s2, 3")
    a("s_and_b32 s21, s2, 7")
    a("s_lshl_b32 s22, s20, 16")
    a("s_lshl_b32 s23, s21, 7")
    a("s_add_u32 s22, s22, s23")
    a("v_lshrrev_b32 v3, 3, v0")
    a("v_and_b32 v4, 7, v0")
    a("v_lshlrev_b32 v5, 10, v3")
    a("v_lshl_add_u32 v5, v4, 4, v5")
    a("v_mul_u32_u24 v6, %d, v3" % UTP)
    a("v_lshl_add_u32 v6, v4, 4, v6")
    a("s_waitcnt lgkmcnt(0)")
    srd(a, 12, 4, 2 * MB)
    a("buffer_load_dwordx4 v[8:11], v5, s[12:15], s22 offen")
    a("s_add_u32 s23, s22, 32768")
    a("buffer_load_dwordx4 v[12:15], v5, s[12:15], s23 offen")
    srd(a, 16, 8, WS_SIZE)
    a("v_and_b32 v3, 15, v2")
    a("v_lshrrev_b32 v4, 2, v3")
    a("s_lshl_b32 s24, s3, 4")
    a("v_add_u32 v4, s24, v4")
    a("v_mul_u32_u24 v4, %d, v4" % UTP)
    a("v_and_b32 v3, 3, v3")
    a("v_lshl_add_u32 v4, v3, 3, v4")
    a("v_lshrrev_b32 v3, 4, v2")
    a("v_lshl_add_u32 v4, v3, 5, v4")
    a("v_lshlrev_b32 v7, 12, v2")
    a("s_lshl_b32 s24, s21, 18")
    a("s_lshl_b32 s25, s20, 7")
    a("s_add_u32 s24, s24, s25")
    a("s_lshl_b32 s25, s3, 5")
    a("s_add_u32 s24, s24, s25")
    a("s_add_u32 s24, s24, 0x%x" % WS_UF)
    a("s_waitcnt vmcnt(1)")
    a("ds_write_b128 v6, v[8:11]")
    a("s_waitcnt vmcnt(0)")
    a("ds_write_b128 v6, v[12:15] offset:%d" % (32 * UTP))
    a("s_waitcnt lgkmcnt(0)")
    a("s_barrier")
    for p in range(2):
        for h in range(2):
            a("ds_read_b64_tr_b16 v[%d:%d], v4 offset:%d" % (8 + 4 * p + 2 * h, 9 + 4 * p + 2 * h, (8 * p + 4 * h) * UTP))
    a("s_waitcnt lgkmcnt(2)")
    a("buffer_store_dwordx4 v[8:11], v7, s[16:19], s24 offen")
    a("s_waitcnt lgkmcnt(0)")
    a("buffer_store_dwordx4 v[12:15], v7, s[16:19], s24 offen offset:16")
    trace_end(a, 0)
    a("s_endpgm")


def gen_kgen(a, first_wg):
    a.c("---- kgen role: one channel per workgroup")
    a.cur = "kgen"
    trace_begin(a)
    stamp(a)
    if first_wg:
        a("s_sub_u32 s2, s2, %d" % first_wg)
    a("s_load_dwordx4 s[28:31], s[0:1], 8")
    a("s_load_dwordx4 s[32:35], s[0:1], 24")
    a("s_load_dwordx4 s[36:39], s[0:1], 40")
    a("s_load_dwordx2 s[40:41], s[0:1], 56")
    a("s_load_dwordx2 s[4:5], s[0:1], 136")
    a("v_lshrrev_b32 v1, 6, v0")
    a("v_and_b32 v2, 63, v0")
    a("v_readfirstlane_b32 s3, v1")
    a("v_and_b32 v3, 127, v0")
    a("v_lshlrev_b32 v4, 1, v3")
    a("s_lshl_b32 s20, s2, 8")
    a("s_lshl_b32 s25, s2, 1")
    a("v_mov_b32 v6, 0")
    a("s_waitcnt lgkmcnt(0)")
    for k in range(6):
        srd(a, 44 + 4 * k, 28 + 2 * k, 131072)
        a("buffer_load_ushort v%d, v4, s[%d:%d], s20 offen" % (10 + k, 44 + 4 * k, 47 + 4 * k))
    srd(a, 12, 40, 1024)
    a("buffer_load_ushort v16, v6, s[12:15], s25 offen")
    srd(a, 8, 4, WS_SIZE)
    a("s_cmp_ge_u32 s3, 2")
    a("s_cselect_b32 s26, %d, %d" % (XT, YT))
    a("s_cselect_b32 s27, 0x%x, 0x%x" % (f32(16.0), f32(1.0)))
    a("s_cselect_b32 s36, 0x%x, 0x%x" % (f32(0.15915494309189535), f32(-0.15915494309189535)))
    a("v_lshlrev_b32 v8, 2, v3")
    a("v_add_u32 v8, s26, v8")
    a("v_lshlrev_b32 v28, 3, v0")
    a("v_sub_u32 v28, 2047, v28")
    a("s_mov_b32 s28, 0xffff")
    a("s_mov_b32 s29, %d" % (0x4300 - 128))
    for j in range(8):
        a("v_subrev_u32 v%d, %d, v28" % (48 + j, j))
        a("v_cvt_f32_u32 v%d, v%d" % (56 + j, 48 + j))
    for j in range(0, 8, 2):
        a("v_cvt_pk_bf16_f32 v%d, v%d, v%d" % (56 + j, 56 + j, 57 + j))
    for j in range(0, 8, 2):
        a("v_lshrrev_b32 v%d, 16, v%d" % (57 + j, 56 + j))
        a("v_and_b32 v%d, s28, v%d" % (56 + j, 56 + j))
    for j in range(8):
        a("v_subrev_u32 v%d, s29, v%d" % (56 + j, 56 + j))
    for j in range(8):
        a("v_cmp_gt_u32 vcc, 128, v%d" % (48 + j))
        a.nop(2)
        a("v_cndmask_b32 v%d, v%d, v%d, vcc" % (56 + j, 56 + j, 48 + j))
        a("v_lshlrev_b32 v%d, 2, v%d" % (56 + j, 56 + j))
    a("v_and_b32 v9, 15, v2")
    a("v_lshrrev_b32 v17, 4, v2")
    a("s_lshl_b32 s26, s3, 3")
    a("s_add_u32 s26, s26, 8")
    a("s_cmp_eq_u32 s3, 0")
    a("s_cselect_b32 s26, 0, s26")
    a("v_add_u32 v18, s26, v9")
    a("v_mul_u32_u24 v18, %d, v18" % TBP)
    a("v_lshl_add_u32 v18, v17, 4, v18")
    a("v_lshlrev_b32 v19, s3, v9")
    a("v_or_b32 v29, 8, v19")
    a("v_ffbh_u32 v29, v29")
    a("v_sub_u32 v29, 28, v29")
    a("v_lshrrev_b32 v19, v29, v19")
    a("v_lshl_add_u32 v19, v29, 3, v19")
    a("v_mul_u32_u24 v19, %d, v19" % TBP)
    a("v_lshl_add_u32 v19, v17, 4, v19")
    a("s_waitcnt vmcnt(0)")
    for k in range(7):
        a("v_lshlrev_b32 v%d, 16, v%d" % (10 + k, 10 + k))
    a("v_mul_f32 v16, 0x%x, v16" % f32(1.4426950408889634))
    a("v_exp_f32 v16, v16")
    a.nop(1)
    bf16r(a, 16)
    a("v_mul_f32 v20, v16, v10")
    a("v_mul_f32 v21, v16, v11")
    a("v_mul_f32 v12, v16, v12")
    a("v_mul_f32 v13, v16, v13")
    a("v_mul_f32 v20, 0x%x, v20" % f32(1.4426950408889634))
    a("v_mul_f32 v21, s36, v21")
    a("v_mul_f32 v20, s27, v20")
    a("v_mul_f32 v21, s27, v21")
    a("v_mul_f32 v22, v14, v12")
    a("v_mul_f32 v23, v14, v13")
    a("v_fract_f32 v21, v21")
    a("v_exp_f32 v20, v20")
    a("v_fma_f32 v22, -v15, v13, v22")
    a("v_fma_f32 v23, v15, v12, v23")
    a("v_cos_f32 v24, v21")
    a("v_sin_f32 v25, v21")
    a("v_mov_b32 v26, 1.0")
    a("v_mov_b32 v27, 0")
    a("v_mul_f32 v24, v20, v24")
    a("v_mul_f32 v25, v20, v25")
    a("s_cmp_ge_u32 s3, 2")
    a("s_cbranch_scc0 L_kg_y")
    a("v_mov_b32 v26, v22")
    a("v_mov_b32 v27, v23")
    a.lab("L_kg_y")

    def cmul(dst, x, w):
        a("v_pk_mul_f32 v[30:31], v[%d:%d], v[%d:%d] op_sel:[0,0] op_sel_hi:[1,0]" % (x, x + 1, w, w + 1))
        a("v_pk_fma_f32 v[%d:%d], v[%d:%d], v[%d:%d], v[30:31] op_sel:[1,1,0] op_sel_hi:[0,1,1] neg_lo:[1,0,0]" %
          (dst, dst + 1, x, x + 1, w, w + 1))

    W = [24, 32, 34, 36]
    for k in range(1, 4):
        cmul(W[k], W[k - 1], W[k - 1])
    for row in range(41):
        a("v_cvt_pk_bf16_f32 v%d, v26, v27" % (40 + (row & 3)))
        if row < 40:
            cmul(26, 26, W[0] if row < 16 else (W[1] if row < 24 else (W[2] if row < 32 else W[3])))
        if row & 1:
            a("ds_write2_b32 v8, v%d, v%d offset0:%d offset1:%d" % (40 + ((row - 1) & 3), 40 + (row & 3), 0, TBP // 4))
            if row < 40:
                a("v_add_u32 v8, %d, v8" % (2 * TBP))
        elif row == 40:
            a("ds_write_b32 v8, v%d" % (40 + (row & 3)))
    a("s_waitcnt lgkmcnt(0)")
    a("s_barrier")
    stamp(a)
    for kap in range(8):
        a("ds_read_b128 v[%d:%d], v18 offset:%d" % (64 + 8 * kap, 67 + 8 * kap, XT + 64 * kap))
        a("ds_read_b128 v[%d:%d], v19 offset:%d" % (68 + 8 * kap, 71 + 8 * kap, YT + 64 * kap))
    a("s_lshl_b32 s26, s3, 7")
    a("s_add_u32 s26, s26, 128")
    a("s_cmp_eq_u32 s3, 0")
    a("s_cselect_b32 s26, 0, s26")
    a("s_mov_b32 s27, 128")
    a("s_cselect_b32 s27, 256, s27")
    a("s_cmp_eq_u32 s3, 3")
    a("s_cselect_b32 s27, 129, s27")
    a("v_lshl_add_u32 v13, v17, 6, v9")
    a("v_add_u32 v15, s26, v13")
    a("v_lshlrev_b32 v15, 2, v15")
    for kap in range(8):
        a("s_waitcnt lgkmcnt(%d)" % (14 - 2 * kap))
        c0 = "0" if kap == 0 else "v[44:47]"
        a("v_mfma_f32_16x16x32_bf16 v[44:47], v[%d:%d], v[%d:%d], %s" % (64 + 8 * kap, 67 + 8 * kap, 68 + 8 * kap, 71 + 8 * kap, c0))
    a("s_lshl_b32 s22, s2, 12")
    a("s_add_u32 s22, s22, 0x%x" % WS_RK)
    a("v_lshlrev_b32 v3, 4, v0")
    a.nop(5)
    for reg in range(4):
        a("v_add_u32 v14, %d, v13" % (16 * reg))
        a("v_cmp_gt_u32 vcc, s27, v14")
        a("s_and_saveexec_b64 s[30:31], vcc")
        a("ds_write_b32 v15, v%d offset:%d" % (44 + reg, KT + 64 * reg))
        a("s_mov_b64 exec, s[30:31]")
    a("s_waitcnt lgkmcnt(0)")
    a("s_barrier")
    stamp(a)
    for j in range(8):
        a("ds_read_b32 v%d, v%d offset:%d" % (64 + j, 56 + j, KT))
    a("s_waitcnt lgkmcnt(0)")
    for q in range(4):
        a("v_cvt_pk_bf16_f32 v%d, v%d, v%d" % (8 + q, 64 + 2 * q, 65 + 2 * q))
    a("buffer_store_dwordx4 v[8:11], v3, s[8:11], s22 offen")
    stamp(a)
    dump_stamps(a, 77, 64)
    trace_end(a, 0)
    a("s_endpgm")


CP = 4416
UB = 8 * CP
UP = 144
K2_LDS = 49152


def gen_conv(a, first_wg):
    a.c("---- conv role: one channel per workgroup")
    a.cur = "conv"
    trace_begin(a)
    stamp(a)
    if first_wg:
        a("s_sub_u32 s2, s2, %d" % first_wg)
    a("s_load_dwordx2 s[4:5], s[0:1], 136")
    a("s_load_dwordx2 s[6:7], s[0:1], 96")
    a("s_load_dwordx2 s[42:43], s[0:1], 64")
    a("v_lshrrev_b32 v1, 6, v0")
    a("v_and_b32 v2, 63, v0")
    a("v_readfirstlane_b32 s3, v1")
    a("s_lshl_b32 s25, s2, 1")
    a("v_mov_b32 v6, 0")
    a("v_lshlrev_b32 v3, 4, v0")
    a("s_lshl_b32 s21, s2, 12")
    a("s_add_u32 s20, s21, 0x%x" % WS_RK)
    a("s_add_u32 s22, s21, 0x%x" % WS_UF)
    a("s_add_u32 s23, s21, 0x%x" % WS_AF)
    a("s_waitcnt lgkmcnt(0)")
    a("s_add_u32 s12, s4, s20")
    a("s_addc_u32 s13, s5, 0")
    a("s_mov_b32 s14, 4096")
    a("s_mov_b32 s15, 0x00020000")
    a("buffer_load_dwordx4 v[8:11], v3, s[12:15], 0 offen")
    a("buffer_load_dwordx4 v[12:15], v3, s[12:15], 0 offen offset:16")
    srd(a, 8, 4, WS_SIZE)
    a("buffer_load_dwordx4 v[152:155], v3, s[8:11], s22 offen")
    srd(a, 16, 42, 1024)
    a("v_lshlrev_b32 v7, 5, v0")
    a("s_mov_b32 s24, 0x%x" % WS_GT)
    a("buffer_load_dwordx4 v[156:159], v7, s[8:11], s24 offen")
    a("buffer_load_dwordx4 v[160:163], v7, s[8:11], s24 offen offset:16")
    a("buffer_load_ushort v164, v6, s[16:19], s25 offen")
    NPF = 0
    if "nopf" not in X:
        NPF = 4
        srd(a, 68, 6, 2048 * 1792 * 2)
        a("s_lshl_b32 s26, s2, 14")
        for k in range(4):
            a("buffer_load_dwordx4 v[%d:%d], v3, s[68:71], s26 offen" % (128 + 4 * k, 131 + 4 * k))
            if k < 3:
                a("s_add_u32 s26, s26, 4096")
    for k in range(4):
        a("v_mov_b32 v%d, 0" % (48 + k))
    a("ds_write_b128 v3, v[48:51] offset:%d" % UB)
    a("v_lshrrev_b32 v4, 3, v2")
    a("v_mul_u32_u24 v4, %d, v4" % CP)
    a("v_and_b32 v7, 7, v2")
    a("v_lshl_add_u32 v4, v7, 4, v4")
    a("v_add_u32 v4, 4096, v4")
    a("v_add_u32 v5, %d, v3" % (UB + 4096))
    a("s_cmp_eq_u32 s3, 0")
    a("s_cbranch_scc1 L_cv_z0")
    a("s_cmp_eq_u32 s3, 1")
    a("s_cbranch_scc0 L_cv_z1")
    a("ds_write_b128 v4, v[48:51]")
    a("s_branch L_cv_z1")
    a.lab("L_cv_z0")
    a("s_mov_b64 exec, 0xffffffff")
    a("ds_write_b128 v5, v[48:51]")
    a("s_mov_b64 exec, -1")
    a.lab("L_cv_z1")
    a("v_lshrrev_b32 v6, 3, v0")
    a("v_mul_u32_u24 v6, %d, v6" % UP)
    a("v_and_b32 v7, 7, v0")
    a("v_lshl_add_u32 v6, v7, 4, v6")
    a("v_and_b32 v20, 31, v2")
    a("v_lshrrev_b32 v21, 5, v2")
    a("v_and_b32 v22, 7, v20")
    a("v_sub_u32 v22, 7, v22")
    a("v_mul_u32_u24 v22, %d, v22" % CP)
    a("v_lshrrev_b32 v23, 3, v20")
    a("v_sub_u32 v23, v21, v23")
    a("v_lshl_add_u32 v22, v23, 4, v22")
    a("s_lshl_b32 s28, s3, 10")
    a("s_sub_u32 s28, %d, s28" % (16 * 255 - 128 * 7 - 64))
    a("v_add_u32 v18, s28, v22")
    a("v_mul_u32_u24 v23, %d, v20" % UP)
    a("v_lshl_add_u32 v23, v21, 4, v23")
    a("s_mul_i32 s29, s3, %d" % (8 * UP))
    a("s_sub_u32 s29, %d, s29" % (UB + UP * 25))
    a("v_add_u32 v19, s29, v23")
    a("s_waitcnt vmcnt(%d)" % (4 + NPF))
    for k in range(1, 8):
        a("v_mov_b32 v%d, v%d" % (65 + k, 8 + k))
    for k in range(7):
        a("v_alignbit_b32 v%d, v%d, v%d, 16" % (74 + k, 9 + k, 8 + k))
    for k in range(1, 7):
        a("v_alignbit_b32 v%d, v%d, v%d, 16" % (83 + k, 9 + k, 8 + k))
    src = {0: 8, 2: 66, 4: 10, 6: 68, 1: 74, 3: 84, 5: 76, 7: 86}
    for s in range(8):
        a("ds_write_b128 v3, v[%d:%d] offset:%d" % (src[s], src[s] + 3, s * CP))
    a("s_waitcnt vmcnt(%d)" % (3 + NPF))
    a("ds_write_b128 v6, v[152:155] offset:%d" % (UB + 32 * UP))
    a("s_waitcnt lgkmcnt(0)")
    a("s_barrier")
    stamp(a)
    ACC = [64, 80]
    FA = [24 + 4 * k for k in range(10)]
    FB = [[96 + 4 * k for k in range(4)], [112 + 4 * k for k in range(4)]]
    free = list(range(10))
    cur = {}

    def loadA(dl, rel):
        sl = free.pop(0)
        a("ds_read_b128 v[%d:%d], v18 offset:%d" % (FA[sl], FA[sl] + 3, 128 * (7 - dl) + 64 - 2 * rel))
        return sl

    def loadB(dl):
        for k in range(4):
            a("ds_read_b128 v[%d:%d], v19 offset:%d" % (FB[dl & 1][k], FB[dl & 1][k] + 3, UP * (7 - dl) + 32 * k))

    for rel in (-48, -32, -16, 0, 16, 32):
        cur[rel] = loadA(0, rel)
    loadB(0)
    for dl in range(8):
        nxt = {}
        if dl < 7:
            nxt[-48] = cur[16]
            nxt[-32] = cur[32]
            for rel in (-16, 0, 16, 32):
                nxt[rel] = loadA(dl + 1, rel)
            loadB(dl + 1)
            a("s_waitcnt lgkmcnt(8)")
        else:
            a("s_waitcnt lgkmcnt(0)")
        for k in range(4):
            for beta in range(2):
                rel = 32 * beta - 16 * k
                c = "0" if (dl == 0 and k == 0) else "v[%d:%d]" % (ACC[beta], ACC[beta] + 15)
                a("v_mfma_f32_32x32x16_bf16 v[%d:%d], v[%d:%d], v[%d:%d], %s" %
                  (ACC[beta], ACC[beta] + 15, FA[cur[rel]], FA[cur[rel]] + 3, FB[dl & 1][k], FB[dl & 1][k] + 3, c))
        for rel in (-48, -32, -16, 0):
            free.append(cur[rel])
        cur = nxt
    a("v_mul_u32_u24 v24, 272, v20")
    a("v_lshl_add_u32 v24, v21, 4, v24")
    a("s_mul_i32 s28, s3, 8704")
    a("v_add_u32 v24, s28, v24")
    a("v_lshrrev_b32 v25, 3, v0")
    a("v_mul_u32_u24 v25, 272, v25")
    a("v_and_b32 v26, 7, v0")
    a("v_lshl_add_u32 v25, v26, 5, v25")
    a("s_mov_b32 s27, 0xffff0000")
    a("s_waitcnt vmcnt(0)")
    a("s_barrier")
    if "cv3" in X:
        trace_end(a, 1)
        a("s_endpgm")
    stamp(a)
    a.nop(4)
    for beta in range(2):
        for rq in range(4):
            a("ds_write_b128 v24, v[%d:%d] offset:%d" % (ACC[beta] + 4 * rq, ACC[beta] + 4 * rq + 3, (32 * beta + 8 * rq) * 4))
    a("v_lshlrev_b32 v164, 16, v164")
    a("v_mov_b32 v165, v164")
    for q in range(4):
        a("v_lshlrev_b32 v%d, 16, v%d" % (128 + 2 * q, 152 + q))
        a("v_and_b32 v%d, s27, v%d" % (129 + 2 * q, 152 + q))
    for q in range(4):
        a("v_pk_mul_f32 v[%d:%d], v[%d:%d], v[164:165]" % (128 + 2 * q, 129 + 2 * q, 128 + 2 * q, 129 + 2 * q))
    for q in range(4):
        a("v_cvt_pk_bf16_f32 v%d, v%d, v%d" % (136 + q, 128 + 2 * q, 129 + 2 * q))
    for q in range(4):
        a("v_lshlrev_b32 v%d, 16, v%d" % (128 + 2 * q, 136 + q))
        a("v_and_b32 v%d, s27, v%d" % (129 + 2 * q, 136 + q))
    a("s_waitcnt lgkmcnt(0)")
    a("s_barrier")
    for w in range(4):
        a("ds_read_b128 v[%d:%d], v25 offset:%d" % (32 + 8 * w, 35 + 8 * w, w * 8704))
        a("ds_read_b128 v[%d:%d], v25 offset:%d" % (36 + 8 * w, 39 + 8 * w, w * 8704 + 16))
    a("s_waitcnt lgkmcnt(4)")
    for q in range(4):
        a("v_pk_add_f32 v[%d:%d], v[%d:%d], v[%d:%d]" % (32 + 2 * q, 33 + 2 * q, 32 + 2 * q, 33 + 2 * q, 40 + 2 * q, 41 + 2 * q))
    a("s_waitcnt lgkmcnt(0)")
    for q in range(4):
        a("v_pk_add_f32 v[%d:%d], v[%d:%d], v[%d:%d]" % (48 + 2 * q, 49 + 2 * q, 48 + 2 * q, 49 + 2 * q, 56 + 2 * q, 57 + 2 * q))
    for q in range(4):
        a("v_pk_add_f32 v[%d:%d], v[%d:%d], v[%d:%d]" % (32 + 2 * q, 33 + 2 * q, 32 + 2 * q, 33 + 2 * q, 48 + 2 * q, 49 + 2 * q))
    for q in range(4):
        a("v_cvt_pk_bf16_f32 v%d, v%d, v%d" % (72 + q, 32 + 2 * q, 33 + 2 * q))
    for q in range(4):
        a("v_lshlrev_b32 v%d, 16, v%d" % (32 + 2 * q, 72 + q))
        a("v_and_b32 v%d, s27, v%d" % (33 + 2 * q, 72 + q))
    for q in range(4):
        a("v_pk_add_f32 v[%d:%d], v[%d:%d], v[%d:%d]" % (32 + 2 * q, 33 + 2 * q, 32 + 2 * q, 33 + 2 * q, 128 + 2 * q, 129 + 2 * q))
    for q in range(4):
        a("v_cvt_pk_bf16_f32 v%d, v%d, v%d" % (72 + q, 32 + 2 * q, 33 + 2 * q))
    for q in range(4):
        a("v_lshlrev_b32 v%d, 16, v%d" % (32 + 2 * q, 72 + q))
        a("v_and_b32 v%d, s27, v%d" % (33 + 2 * q, 72 + q))
    for q in range(4):
        a("v_pk_mul_f32 v[%d:%d], v[%d:%d], v[%d:%d]" % (32 + 2 * q, 33 + 2 * q, 32 + 2 * q, 33 + 2 * q, 156 + 2 * q, 157 + 2 * q))
    for q in range(4):
        a("v_cvt_pk_bf16_f32 v%d, v%d, v%d" % (72 + q, 32 + 2 * q, 33 + 2 * q))
    a("buffer_store_dwordx4 v[72:75], v3, s[8:11], s23 offen")
    stamp(a)
    dump_stamps(a, 77, 64)
    trace_end(a, 1)
    a("s_endpgm")


TP = 144
RED = 49152
K3_LDS = 65536 + 64 * TP


def gen_gemm(a, which):
    g1 = (which == 1)
    NOCT = 256 if g1 else 224
    S = 32 if g1 else 28
    NS = 6 if g1 else 8
    PW = 3584 if g1 else 4096
    WOFF = 80 if g1 else 96
    WBYTES = 2048 * 1792 * 2
    DOFF = WS_HF if g1 else WS_GF
    TPITCH = NOCT * 512
    NQ = 28 if g1 else 32
    TBASE = 65536
    a.c("---- gemm%d role" % which)
    a.cur = "g%d" % which
    trace_begin(a)
    stamp(a)
    a("s_load_dwordx2 s[4:5], s[0:1], %d" % WOFF)
    a("s_load_dwordx2 s[6:7], s[0:1], 136")
    a("s_load_dwordx2 s[36:37], s[0:1], %d" % (88 if g1 else 104))
    if not g1:
        a("s_load_dwordx2 s[38:39], s[0:1], 120")
    a("v_lshrrev_b32 v1, 6, v0")
    a("v_and_b32 v2, 63, v0")
    a("v_readfirstlane_b32 s3, v1")
    a("s_and_b32 s20, s2, 7")
    a("s_lshr_b32 s21, s2, 3")
    a("s_mul_i32 s20, s20, %d" % NQ)
    a("s_add_u32 s20, s20, s21")
    a("s_lshr_b32 s21, s20, 3")
    a("s_and_b32 s22, s20, 7")
    a("s_mul_i32 s23, s22, %d" % (2 * TPITCH))
    a("s_mul_i32 s24, s3, %d" % (S * 1024))
    a("s_add_u32 s23, s23, s24")
    a("s_add_u32 s23, s23, 0x%x" % DOFF)
    a("v_lshlrev_b32 v3, 4, v2")
    a("v_add_u32 v4, %d, v3" % TPITCH)
    a("v_lshrrev_b32 v5, 3, v2")
    a("v_and_b32 v6, 7, v2")
    a("v_lshlrev_b32 v7, 1, v5")
    a("v_and_b32 v7, 4, v7")
    a("v_xor_b32 v6, v6, v7")
    a("v_mul_u32_u24 v5, %d, v5" % PW)
    a("v_lshl_add_u32 v5, v6, 4, v5")
    a("s_lshl_b32 s24, s21, 7")
    a("v_add_u32 v5, s24, v5")
    a("s_mul_i32 s25, s3, %d" % (S * 16 * PW))
    a("s_mul_i32 s26, s3, %d" % (NS * 2048))
    a("s_waitcnt lgkmcnt(0)")
    srd(a, 8, 4, WBYTES)
    srd(a, 12, 6, WS_SIZE)
    ACC = [[16, 32], [48, 64]]
    DF = [80 + 8 * k for k in range(NS)]
    WFB = 80 + 8 * NS
    XR = WFB + 16

    a("s_and_b32 s48, s21, 3")
    a("s_lshl2_add_u32 s48, s22, s48")
    if "norot" in X:
        a("s_mov_b32 s48, 0")
    a("s_sub_u32 s49, s48, %d" % S)
    a("s_cmp_ge_u32 s48, %d" % S)
    a("s_cselect_b32 s48, s49, s48")

    def issue(st):
        sl = st % NS
        a("s_mul_i32 s27, s48, %d" % (16 * PW))
        a("s_add_u32 m0, s26, %d" % (sl * 2048))
        a("s_add_u32 s27, s27, s25")
        if "wreg" in X:
            a("buffer_load_dwordx4 v[%d:%d], v5, s[8:11], s27 offen" % (WFB + 8 * (st & 1), WFB + 8 * (st & 1) + 3))
        else:
            a("buffer_load_dwordx4 v5, s[8:11], s27 offen lds" + WH)
        a("s_add_u32 m0, s26, %d" % (sl * 2048 + 1024))
        a("s_add_u32 s27, s27, %d" % (8 * PW))
        a("s_lshl_b32 s28, s48, 10")
        if "wreg" in X:
            a("buffer_load_dwordx4 v[%d:%d], v5, s[8:11], s27 offen" % (WFB + 8 * (st & 1) + 4, WFB + 8 * (st & 1) + 7))
        else:
            a("buffer_load_dwordx4 v5, s[8:11], s27 offen lds" + WH)
        a("s_add_u32 s28, s28, s23")
        a("s_add_u32 s48, s48, 1")
        for t in range(2):
            r = DF[sl] + 4 * t
            a("buffer_load_dwordx4 v[%d:%d], v%d, s[12:15], s28 offen" % (r, r + 3, 3 + t) + DH)
        a("s_cmp_lg_u32 s48, %d" % S)
        a("s_cselect_b32 s48, s48, 0")

    issue(0)
    issue(1)
    srd(a, 40, 36, 3584 if g1 else 4096)
    if not g1:
        srd(a, 44, 38, 2 * MB)
    for st in range(2, NS):
        issue(st)
    a("v_lshrrev_b32 v8, 4, v2")
    a("v_and_b32 v9, 15, v2")
    a("v_lshrrev_b32 v10, 2, v9")
    a("v_and_b32 v11, 3, v9")
    a("v_lshrrev_b32 v12, 1, v8")
    a("v_lshl_add_u32 v12, v12, 3, v10")
    a("v_lshlrev_b32 v12, 7, v12")
    a("v_and_b32 v13, 1, v8")
    a("v_lshlrev_b32 v13, 1, v13")
    a("v_lshrrev_b32 v14, 1, v11")
    a("v_add_u32 v13, v13, v14")
    a("v_lshlrev_b32 v14, 1, v10")
    a("v_and_b32 v14, 4, v14")
    a("v_xor_b32 v13, v13, v14")
    a("v_lshl_add_u32 v12, v13, 4, v12")
    a("v_and_b32 v14, 1, v11")
    a("v_lshl_add_u32 v12, v14, 3, v12")
    a("v_add_u32 v12, s26, v12")
    a("v_xor_b32 v13, 64, v12")
    a("s_lshr_b32 s29, s3, 1")
    a("s_and_b32 s30, s3, 1")
    a("v_and_b32 v6, 31, v2")
    a("v_lshrrev_b32 v7, 5, v2")
    NX = 0
    if g1:
        a("s_lshl_b32 s31, s21, 7")
        a("s_lshl_b32 s32, s29, 6")
        a("s_add_u32 s31, s31, s32")
        a("v_lshlrev_b32 v14, 3, v7")
        for rq in range(4):
            a("buffer_load_dwordx2 v[%d:%d], v14, s[40:43], s31 offen offset:%d" % (XR + 2 * rq, XR + 2 * rq + 1, 16 * rq))
        NX = 4
    else:
        a("s_lshl_b32 s31, s22, 18")
        a("s_lshl_b32 s32, s21, 7")
        a("s_add_u32 s31, s31, s32")
        a("s_add_u32 s31, s31, 0x%x" % WS_AF)
        a("s_add_u32 s32, s31, 131072")
        a("v_lshrrev_b32 v14, 3, v0")
        a("v_and_b32 v15, 7, v0")
        a("v_lshlrev_b32 v15, 4, v15")
        a("v_lshl_add_u32 v15, v14, 12, v15")
        a("buffer_load_dwordx4 v[%d:%d], v15, s[12:15], s31 offen" % (XR, XR + 3))
        a("buffer_load_dwordx4 v[%d:%d], v15, s[12:15], s32 offen" % (XR + 4, XR + 7))
        a("s_lshl_b32 s33, s21, 6")
        a("s_lshl_b32 s34, s30, 5")
        a("s_add_u32 s33, s33, s34")
        a("v_add_u32 v14, s33, v6")
        a("v_lshlrev_b32 v15, 2, v14")
        a("s_mov_b32 s34, 0x%x" % WS_GT)
        a("buffer_load_dword v%d, v15, s[12:15], s34 offen" % (XR + 8))
        a("v_lshlrev_b32 v15, 1, v14")
        a("buffer_load_ushort v%d, v15, s[40:43], 0 offen" % (XR + 9))
        NX = 4
    stamp(a)

    def trreads(st):
        if "wreg" in X:
            return
        sl = st % NS
        for nu in range(2):
            for h in range(2):
                r = WFB + 8 * (st & 1) + 4 * nu + 2 * h
                a("ds_read_b64_tr_b16 v[%d:%d], v%d offset:%d" % (r, r + 1, 12 + nu, sl * 2048 + h * 512))

    def stage(st, sl, par, do_issue, wait_next, first=False):
        if wait_next is not None:
            a("s_waitcnt vmcnt(%d)" % wait_next)
            trreads2((sl + 1) % NS, par ^ 1)
            a("s_waitcnt lgkmcnt(4)")
        else:
            a("s_waitcnt lgkmcnt(0)")
        for nu in range(2):
            for t in range(2):
                wf = WFB + 8 * par + 4 * nu
                df = DF[sl] + 4 * t
                if g1:
                    acc = ACC[nu][t]
                    A_, B_ = wf, df
                else:
                    acc = ACC[t][nu]
                    A_, B_ = df, wf
                a("v_mfma_f32_32x32x16_bf16 v[%d:%d], v[%d:%d], v[%d:%d], v[%d:%d]" % (acc, acc + 15, A_, A_ + 3, B_, B_ + 3, acc, acc + 15))
        if do_issue:
            issue(sl)

    def trreads2(sl, par):
        if "wreg" in X:
            return
        for nu in range(2):
            for h in range(2):
                r = WFB + 8 * par + 4 * nu + 2 * h
                a("ds_read_b64_tr_b16 v[%d:%d], v%d offset:%d" % (r, r + 1, 12 + nu, sl * 2048 + h * 512))

    assert NS % 2 == 0
    for r in range(16, 80):
        a("v_mov_b32 v%d, 0" % r)
    NL = (S - NS) // NS
    a("s_mov_b32 s50, %d" % NL)
    a("s_waitcnt vmcnt(%d)" % (4 * (NS - 1) + NX))
    trreads2(0, 0)
    a.lab("L_g%d_loop" % which)
    for k in range(NS):
        stage(k, k, k & 1, True, 4 * (NS - 2))
    a("s_sub_u32 s50, s50, 1")
    a("s_cmp_lg_u32 s50, 0")
    a("s_cbranch_scc1 L_g%d_loop" % which)
    for st in range(NL * NS, S):
        k = st % NS
        iss = st + NS < S
        later = min(S - 1, st + NS - 1) - (st + 1)
        stage(st, k, st & 1, iss, (4 * later) if st + 1 < S else None)
    stamp(a)
    F = 80
    a("s_mov_b32 s27, 0xffff0000")
    if not g1:
        a("v_lshrrev_b32 v9, 3, v0")
        a("v_mul_u32_u24 v9, %d, v9" % TP)
        a("v_and_b32 v10, 7, v0")
        a("v_lshl_add_u32 v9, v10, 4, v9")
        a("v_add_u32 v9, %d, v9" % TBASE)
        a("s_waitcnt vmcnt(0)")
        a("ds_write_b128 v9, v[%d:%d]" % (XR, XR + 3))
        a("ds_write_b128 v9, v[%d:%d] offset:%d" % (XR + 4, XR + 7, 32 * TP))
    a("s_barrier")
    a.nop(4)
    for qd in range(4):
        acc = ACC[qd >> 1][qd & 1]
        a("s_cmp_eq_u32 s3, %d" % qd)
        a("s_cbranch_scc1 L_g%d_own%d" % (which, qd))
        a("s_sub_u32 s28, s3, %d" % (qd + 1))
        a("s_and_b32 s28, s28, 3")
        a("s_add_u32 s28, s28, %d" % (qd * 3))
        a("s_lshl_b32 s28, s28, 12")
        a("v_add_u32 v8, s28, v3")
        for rq in range(4):
            a("ds_write_b128 v8, v[%d:%d] offset:%d" % (acc + 4 * rq, acc + 4 * rq + 3, rq * 1024))
        a("s_branch L_g%d_nx%d" % (which, qd))
        a.lab("L_g%d_own%d" % (which, qd))
        for k in range(8):
            a("v_pk_add_f32 v[%d:%d], v[%d:%d], 0" % (F + 2 * k, F + 2 * k + 1, acc + 2 * k, acc + 2 * k + 1))
        a.lab("L_g%d_nx%d" % (which, qd))
    a("s_mul_i32 s28, s3, %d" % (3 * 4096))
    a("v_add_u32 v8, s28, v3")
    if g1:
        a("s_lshl_b32 s32, s22, 1")
        a("s_add_u32 s32, s32, s30")
        a("s_mul_i32 s32, s32, %d" % (224 * 512))
        a("s_lshl_b32 s33, s21, 12")
        a("s_add_u32 s32, s32, s33")
        a("s_lshl_b32 s33, s29, 11")
        a("s_add_u32 s32, s32, s33")
        a("s_add_u32 s32, s32, 0x%x" % WS_GF)
        a("v_lshlrev_b32 v11, 4, v6")
        a("v_lshl_add_u32 v11, v7, 3, v11")
    else:
        a("v_lshrrev_b32 v9, 4, v2")
        a("v_and_b32 v10, 15, v2")
        a("v_lshrrev_b32 v13, 2, v10")
        a("v_lshl_add_u32 v13, v7, 2, v13")
        a("v_mul_u32_u24 v13, %d, v13" % TP)
        a("v_and_b32 v10, 3, v10")
        a("v_lshl_add_u32 v13, v10, 3, v13")
        a("v_and_b32 v9, 1, v9")
        a("v_lshl_add_u32 v13, v9, 5, v13")
        a("s_mul_i32 s32, s29, %d" % (32 * TP))
        a("s_lshl_b32 s33, s30, 6")
        a("s_add_u32 s32, s32, s33")
        a("s_add_u32 s32, s32, %d" % TBASE)
        a("v_add_u32 v13, s32, v13")
        a("v_lshlrev_b32 v14, 10, v14")
        a("v_lshl_add_u32 v14, v7, 3, v14")
        a("s_lshl_b32 s33, s22, 7")
        a("s_lshl_b32 s34, s29, 6")
        a("s_add_u32 s33, s33, s34")
    a("s_waitcnt lgkmcnt(0)")
    a("s_barrier")
    P = 96
    for rq in range(4):
        for k in range(3):
            a("ds_read_b128 v[%d:%d], v8 offset:%d" % (P + 16 * k + 4 * rq, P + 16 * k + 4 * rq + 3, k * 4096 + rq * 1024))
    if not g1:
        for rq in range(4):
            a("ds_read_b64_tr_b16 v[%d:%d], v13 offset:%d" % (16 + 2 * rq, 17 + 2 * rq, 8 * rq * TP))
        a("v_lshlrev_b32 v%d, 16, v%d" % (XR + 9, XR + 9))
        a("v_sub_f32 v%d, 1.0, v%d" % (XR + 8, XR + 8))
        bf16r(a, XR + 8)
        a("v_mov_b32 v%d, v%d" % (XR + 11, XR + 9))
        a("v_mov_b32 v%d, v%d" % (XR + 10, XR + 9))
        a("v_mov_b32 v%d, v%d" % (XR + 9, XR + 8))
    else:
        a("s_waitcnt vmcnt(0)")
        k1 = -2.0 * 0.7978845608028654 * 1.4426950408889634
        a("v_mov_b32 v16, 0x%x" % f32(k1))
        a("v_mov_b32 v17, 0x%x" % f32(k1))
        a("v_mov_b32 v18, 0x%x" % f32(k1 * 0.044715))
        a("v_mov_b32 v19, 0x%x" % f32(k1 * 0.044715))
        a("v_mov_b32 v20, 1.0")
        a("v_mov_b32 v21, 1.0")
    nrd = 12 + (0 if g1 else 4)

    def pk(op, d, x, y):
        a("v_pk_%s_f32 v[%d:%d], v[%d:%d], v[%d:%d]" % (op, d, d + 1, x, x + 1, y, y + 1))

    def rnd(base, n, tmp):
        for k in range(n // 2):
            a("v_cvt_pk_bf16_f32 v%d, v%d, v%d" % (tmp + k, base + 2 * k, base + 2 * k + 1))
        for k in range(n // 2):
            a("v_lshlrev_b32 v%d, 16, v%d" % (base + 2 * k, tmp + k))
            a("v_and_b32 v%d, s27, v%d" % (base + 2 * k + 1, tmp + k))

    for half in range(2):
        a("s_waitcnt lgkmcnt(%d)" % (nrd - 6 * (half + 1)))
        for k in range(3):
            for e in range(4):
                pk("add", F + 8 * half + 2 * e, F + 8 * half + 2 * e, P + 16 * k + 8 * half + 2 * e)
    TM = 48
    B = 32
    rnd(F, 16, TM)
    if g1:
        for k in range(8):
            a("v_lshlrev_b32 v%d, 16, v%d" % (B + 2 * k, XR + k))
            a("v_and_b32 v%d, s27, v%d" % (B + 2 * k + 1, XR + k))
        for e in range(8):
            pk("add", F + 2 * e, F + 2 * e, B + 2 * e)
        rnd(F, 16, TM)
        for e in range(8):
            pk("mul", B + 2 * e, F + 2 * e, F + 2 * e)
        for e in range(8):
            a("v_pk_fma_f32 v[%d:%d], v[%d:%d], v[18:19], v[16:17]" % (B + 2 * e, B + 2 * e + 1, B + 2 * e, B + 2 * e + 1))
        for e in range(8):
            pk("mul", B + 2 * e, B + 2 * e, F + 2 * e)
        for j in range(16):
            a("v_exp_f32 v%d, v%d" % (B + j, B + j))
        for e in range(8):
            pk("add", B + 2 * e, B + 2 * e, 20)
        for j in range(16):
            a("v_rcp_f32 v%d, v%d" % (B + j, B + j))
        a.nop(1)
        for e in range(8):
            pk("mul", F + 2 * e, F + 2 * e, B + 2 * e)
        for k in range(8):
            a("v_cvt_pk_bf16_f32 v%d, v%d, v%d" % (TM + k, F + 2 * k, F + 2 * k + 1))
        for rq in range(4):
            a("buffer_store_dwordx2 v[%d:%d], v11, s[12:15], s32 offen offset:%d" % (TM + 2 * rq, TM + 2 * rq + 1, 512 * rq))
    else:
        for e in range(8):
            pk("add", F + 2 * e, F + 2 * e, XR + 10)
        rnd(F, 16, TM)
        for e in range(8):
            pk("mul", F + 2 * e, F + 2 * e, XR + 8)
        rnd(F, 16, TM)
        a("s_waitcnt lgkmcnt(0)")
        for k in range(8):
            a("v_lshlrev_b32 v%d, 16, v%d" % (B + 2 * k, 16 + k))
            a("v_and_b32 v%d, s27, v%d" % (B + 2 * k + 1, 16 + k))
        for e in range(8):
            pk("add", F + 2 * e, F + 2 * e, B + 2 * e)
        for k in range(8):
            a("v_cvt_pk_bf16_f32 v%d, v%d, v%d" % (TM + k, F + 2 * k, F + 2 * k + 1))
        for rq in range(4):
            a("buffer_store_dwordx2 v[%d:%d], v14, s[44:47], s33 offen offset:%d" % (TM + 2 * rq, TM + 2 * rq + 1, 16 * rq))
    stamp(a)
    dump_stamps(a, 9)
    trace_end(a, which)
    a("s_endpgm")


def kd(name, vgpr, sgpr=102):
    acc = (vgpr + 3) // 4 * 4
    return """.amdhsa_kernel %s
  .amdhsa_next_free_vgpr %d
  .amdhsa_next_free_sgpr %d
  .amdhsa_accum_offset %d
  .amdhsa_group_segment_fixed_size 0
  .amdhsa_kernarg_size 144
  .amdhsa_user_sgpr_count 2
  .amdhsa_user_sgpr_kernarg_segment_ptr 1
  .amdhsa_system_sgpr_workgroup_id_x 1
.end_amdhsa_kernel
""" % (name, vgpr, sgpr, acc)


def main(out):
    ref = open("cdna_kernels/%s.s.ref" % NAME).read()
    head = []
    for ln in ref.splitlines():
        if ln.startswith("; @launch"):
            break
        if ln.startswith("; Override") or ln.startswith("; grid=ceil"):
            continue
        head.append(ln)
    a = A()
    K1, K2, K3 = "k1_prep_kernel", "k2_gemm1_conv_kernel", "k3_gemm2_kernel"
    head.append("; @launch kernel=%s grid=(%d,1,1) block=(256,1,1) lds=%d" % (K1, 768, K1_LDS))
    head.append("; @launch kernel=%s grid=(%d,1,1) block=(256,1,1) lds=%d" % (K2, 224 + 512, K2_LDS))
    head.append("; @launch kernel=%s grid=(%d,1,1) block=(256,1,1) lds=%d" % (K3, 256, K3_LDS))
    a.L += head
    a.L.append('.amdgcn_target "amdgcn-amd-amdhsa--gfx950"')
    a.L.append(".text")

    def start(k):
        a.L.append(".globl %s" % k)
        a.L.append(".p2align 8")
        a.L.append(".type %s,@function" % k)
        a.lab(k)

    start(K1)
    a("s_cmp_ge_u32 s2, 768")
    a("s_cbranch_scc1 L_k1_exit")
    a("s_cmp_ge_u32 s2, 512")
    a("s_cbranch_scc1 L_k1_prep")
    gen_kgen(a, 0)
    a.lab("L_k1_exit")
    a("s_endpgm")
    a.lab("L_k1_prep")
    gen_prep(a, 512)

    start(K2)
    a("s_cmp_ge_u32 s2, %d" % (224 + 512))
    a("s_cbranch_scc1 L_k2_exit")
    if "cfirst" in X:
        a("s_cmp_lt_u32 s2, 512")
        a("s_cbranch_scc1 %s" % ("L_k2_exit" if "noConv" in X else "L_k2_conv"))
        a("s_sub_u32 s2, s2, 512")
    else:
        a("s_cmp_ge_u32 s2, 224")
        a("s_cbranch_scc1 %s" % ("L_k2_exit" if "noConv" in X else "L_k2_conv"))
    if "noG1" in X:
        a("s_branch L_k2_exit")
    if "prio" in X:
        a("s_setprio 3")
    gen_gemm(a, 1)
    a.lab("L_k2_exit")
    a("s_endpgm")
    a.lab("L_k2_conv")
    gen_conv(a, 0 if "cfirst" in X else 224)

    start(K3)
    a("s_cmp_ge_u32 s2, 256")
    a("s_cbranch_scc1 L_k3_exit")
    gen_gemm(a, 2)
    a.lab("L_k3_exit")
    a("s_endpgm")

    a.L.append('.section .rodata,"a"')
    for k, v in ((K1, 144), (K2, 168), (K3, 176)):
        a.L.append(".p2align 6")
        a.L.append(kd(k, v))
    open(out, "w").write("\n".join(a.L) + "\n")


if __name__ == "__main__":
    main(sys.argv[1] if len(sys.argv) > 1 else "cdna_kernels/%s.s" % NAME)
```

```python
import struct, sys, os
X = os.environ.get("GENX", "")
GX = X
FUSED = "fuse" in X
SC = " sc1" if FUSED else ""
WH = " nt" if "wnt" in X else (" sc1" if "wsc1" in X else "")
DH = " nt" if "dnt" in X else (" sc1" if "dsc1" in X else "")

NAME = "gated_mix__ssm_conv_s4__mixer_token_mlp__prompt"

MB = 1 << 20
WS_HF = 0
WS_UF = 2 * MB
WS_GF = 4 * MB
WS_AF = 6 * MB
WS_GT = 8 * MB
WS_RK = 9 * MB
WS_SIZE = 268435456

NPREP = 64
HILO = True


def f32(x):
    return struct.unpack("<I", struct.pack("<f", x))[0]


class A:
    def __init__(self):
        self.L = []
        self.cur = ""

    def __call__(self, s):
        self.L.append("    " + s)

    def lab(self, s):
        self.L.append(s + ":")

    def nop(self, n):
        while n > 0:
            k = min(n, 16)
            self("s_nop %d" % (k - 1))
            n -= k

    def c(self, s):
        self.L.append("    ; " + s)


STAMPS = [0]
def stamp(a):
    if "stamp" not in X:
        return
    k = STAMPS[0]
    a("s_memtime s[%d:%d]" % (72 + 2 * k, 73 + 2 * k))
    STAMPS[0] += 1


def dump_stamps(a, wg, off=0):
    if "stamp" not in X:
        return
    n = STAMPS[0]
    STAMPS[0] = 0
    a("s_waitcnt vmcnt(0) lgkmcnt(0)")
    a("s_memtime s[%d:%d]" % (72 + 2 * n, 73 + 2 * n))
    n += 1
    a("s_load_dwordx2 s[96:97], s[0:1], 128")
    a("s_waitcnt lgkmcnt(0)")
    a("s_mov_b32 s98, 256")
    a("s_mov_b32 s99, 0x00020000")
    a("s_mov_b64 exec, -1")
    a("v_lshrrev_b32 v1, 6, v0")
    a("s_nop 1")
    a("v_readfirstlane_b32 s95, v1")
    a("s_cmp_lg_u32 s95, 0")
    a("s_cbranch_scc1 L_nostamp%d" % len(a.L))
    lab = "L_nostamp%d" % (len(a.L) - 1)
    a("s_cmp_lg_u32 s2, %d" % wg)
    a("s_cbranch_scc1 %s" % lab)
    a("s_mov_b64 exec, 1")
    a("v_mov_b32 v1, 0")
    for k in range(n):
        a("v_mov_b32 v2, s%d" % (72 + 2 * k))
        a("buffer_store_dword v2, v1, s[96:99], 0 offen offset:%d" % (off + 4 * k))
    a.lab(lab)


def trace_begin(a):
    if "trace" not in X:
        return
    a("s_memrealtime s[88:89]")
    a("s_memtime s[90:91]")
    a("s_mov_b32 s94, s2")
    a("s_mov_b32 s86, 0")
    if a.cur == "g1":
        a("s_add_u32 s94, s94, 512")


def trace_end(a, launch):
    if "trace" not in X:
        return
    a("s_waitcnt vmcnt(0) lgkmcnt(0)")
    a("s_memrealtime s[92:93]")
    if FUSED:
        a("s_mov_b32 s84, s86")
    else:
        a("s_memtime s[84:85]")
    a("s_load_dwordx2 s[96:97], s[0:1], 136")
    a("s_waitcnt lgkmcnt(0)")
    a("s_mov_b32 s98, 0x%x" % WS_SIZE)
    a("s_mov_b32 s99, 0x00020000")
    a("s_mov_b64 exec, -1")
    a("v_lshrrev_b32 v1, 6, v0")
    a("s_nop 1")
    a("v_readfirstlane_b32 s95, v1")
    a("s_cmp_lg_u32 s95, 0")
    a("s_cbranch_scc1 L_notr%d" % len(a.L))
    lab = "L_notr%d" % (len(a.L) - 1)
    a("s_lshl_b32 s94, s94, 4")
    a("s_add_u32 s94, s94, 0x%x" % (64 * MB + launch * 65536))
    a("s_mov_b64 exec, 1")
    a("v_mov_b32 v1, 0")
    a("v_mov_b32 v4, s88")
    a("v_mov_b32 v5, s92")
    if "hwid" in X:
        a("s_getreg_b32 s90, hwreg(HW_REG_HW_ID)")
        a("s_getreg_b32 s84, hwreg(HW_REG_XCC_ID)")
    a("v_mov_b32 v6, s90")
    a("v_mov_b32 v7, s84")
    a("buffer_store_dwordx4 v[4:7], v1, s[96:99], s94 offen")
    a.lab(lab)


def poll_flags(a, tag, sreg=72):
    a("s_cmp_lg_u32 s3, 0")
    a("s_cbranch_scc1 L_pf_done_%s" % tag)
    a("s_load_dwordx2 s[%d:%d], s[0:1], 128" % (sreg, sreg + 1))
    a("v_lshlrev_b32 v72, 2, v2")
    a("s_mov_b32 s%d, 4" % (sreg + 4))
    a("s_mov_b32 s%d, 0x40000" % (sreg + 5))
    a("s_waitcnt lgkmcnt(0)")
    a("s_mov_b32 s%d, 256" % (sreg + 2))
    a("s_mov_b32 s%d, 0x00020000" % (sreg + 3))
    a.lab("L_pf_loop_%s" % tag)
    a("buffer_load_dword v73, v72, s[%d:%d], 0 offen sc1" % (sreg, sreg + 3))
    a("s_waitcnt vmcnt(0)")
    a("v_cmp_ne_u32 vcc, s%d, v73" % (sreg + 4))
    a("s_nop 4")
    a("s_cbranch_vccz L_pf_done_%s" % tag)
    a("s_sleep %d" % (64 if "slow" in X else 4))
    a("s_sub_u32 s%d, s%d, 1" % (sreg + 5, sreg + 5))
    a("s_cmp_lg_u32 s%d, 0" % (sreg + 5))
    a("s_cbranch_scc1 L_pf_loop_%s" % tag)
    a.lab("L_pf_done_%s" % tag)
    if "trace" in X:
        a("s_memrealtime s[90:91]")
        a("s_waitcnt lgkmcnt(0)")


def srd(a, d, base, nbytes, off=0):
    if off:
        a("s_add_u32 s%d, s%d, 0x%x" % (d, base, off))
        a("s_addc_u32 s%d, s%d, 0" % (d + 1, base + 1))
    else:
        a("s_mov_b32 s%d, s%d" % (d, base))
        a("s_mov_b32 s%d, s%d" % (d + 1, base + 1))
    a("s_mov_b32 s%d, 0x%x" % (d + 2, nbytes))
    a("s_mov_b32 s%d, 0x00020000" % (d + 3))


def bf16r(a, v):
    a("v_cvt_pk_bf16_f32 v%d, v%d, v%d" % (v, v, v))
    a("v_lshlrev_b32 v%d, 16, v%d" % (v, v))


def wave_reduce(a, regs):
    assert len(regs) >= 3
    steps = ["quad_perm:[1,0,3,2] row_mask:0xf bank_mask:0xf",
             "quad_perm:[2,3,0,1] row_mask:0xf bank_mask:0xf",
             "row_half_mirror row_mask:0xf bank_mask:0xf",
             "row_mirror row_mask:0xf bank_mask:0xf",
             "row_bcast:15 row_mask:0xa bank_mask:0xf",
             "row_bcast:31 row_mask:0xc bank_mask:0xf"]
    a.nop(2)
    for st in steps:
        for r in regs:
            a("v_add_f32_dpp v%d, v%d, v%d %s" % (r, r, r, st))
    a.nop(1)


RP = 1024 + 64
UTP = 128 + 64
TBP = 528
XT = 0
YT = 41 * TBP
KT = 45056 if FUSED else 82 * TBP
K1_LDS = KT + 2576
DSTEPS = ["quad_perm:[1,0,3,2] row_mask:0xf bank_mask:0xf",
          "quad_perm:[2,3,0,1] row_mask:0xf bank_mask:0xf",
          "row_half_mirror row_mask:0xf bank_mask:0xf",
          "row_mirror row_mask:0xf bank_mask:0xf",
          "row_bcast:15 row_mask:0xa bank_mask:0xf",
          "row_bcast:31 row_mask:0xc bank_mask:0xf"]


def prep_row(R, SR):
    a = A()
    XV, T, M = R + 8, R + 16, R + 24
    GW = 24
    for q in range(4):
        a("v_lshlrev_b32 v%d, 16, v%d" % (XV + 2 * q, R + q))
        a("v_and_b32 v%d, s27, v%d" % (XV + 2 * q + 1, R + q))
    for q in range(4):
        a("v_pk_mul_f32 v[%d:%d], v[%d:%d], v[%d:%d]" % (T + 2 * q, T + 2 * q + 1, XV + 2 * q, XV + 2 * q + 1, GW + 2 * q, GW + 2 * q + 1))
    a("v_pk_add_f32 v[%d:%d], v[%d:%d], v[%d:%d]" % (M, M + 1, XV, XV + 1, XV + 2, XV + 3))
    a("v_pk_add_f32 v[%d:%d], v[%d:%d], v[%d:%d]" % (M + 2, M + 3, XV + 4, XV + 5, XV + 6, XV + 7))
    for q in range(4):
        a("v_cvt_pk_bf16_f32 v%d, v%d, v%d" % (M + 4 + q, T + 2 * q, T + 2 * q + 1))
    a("v_pk_add_f32 v[%d:%d], v[%d:%d], v[%d:%d]" % (M, M + 1, M, M + 1, M + 2, M + 3))
    for q in range(4):
        a("v_lshlrev_b32 v%d, 16, v%d" % (T + 2 * q, M + 4 + q))
        a("v_and_b32 v%d, s27, v%d" % (T + 2 * q + 1, M + 4 + q))
    a("v_add_f32 v%d, v%d, v%d" % (M, M, M + 1))
    a("v_pk_add_f32 v[%d:%d], v[%d:%d], v[%d:%d]" % (M + 2, M + 3, T, T + 1, T + 2, T + 3))
    a("v_pk_add_f32 v[%d:%d], v[%d:%d], v[%d:%d]" % (M + 4, M + 5, T + 4, T + 5, T + 6, T + 7))
    a("v_pk_add_f32 v[%d:%d], v[%d:%d], v[%d:%d]" % (M + 2, M + 3, M + 2, M + 3, M + 4, M + 5))
    a("v_add_f32 v%d, v%d, v%d" % (M + 1, M + 2, M + 3))
    a.nop(1)
    for st in DSTEPS:
        a("v_add_f32_dpp v%d, v%d, v%d %s" % (M, M, M, st))
        a("v_add_f32_dpp v%d, v%d, v%d %s" % (M + 1, M + 1, M + 1, st))
        a.nop(1)
    a("v_readlane_b32 s%d, v%d, 63" % (SR, M))
    a("v_readlane_b32 s%d, v%d, 63" % (SR + 1, M + 1))
    a.nop(2)
    G = M + 10
    a("v_mul_f32 v%d, s%d, v60" % (M + 2, SR))
    a("v_mul_f32 v%d, s%d, v60" % (M + 3, SR))
    a("v_mov_b32 v%d, s%d" % (G, SR + 1))
    for q in range(4):
        a("v_pk_add_f32 v[%d:%d], v[%d:%d], v[%d:%d] neg_lo:[0,1] neg_hi:[0,1]" % (T + 2 * q, T + 2 * q + 1, XV + 2 * q, XV + 2 * q + 1, M + 2, M + 3))
    a("v_pk_mul_f32 v[%d:%d], v[%d:%d], v[%d:%d]" % (M + 4, M + 5, T, T + 1, T, T + 1))
    a("v_pk_mul_f32 v[%d:%d], v[%d:%d], v[%d:%d]" % (M + 6, M + 7, T + 2, T + 3, T + 2, T + 3))
    a("v_pk_fma_f32 v[%d:%d], v[%d:%d], v[%d:%d], v[%d:%d]" % (M + 4, M + 5, T + 4, T + 5, T + 4, T + 5, M + 4, M + 5))
    a("v_pk_fma_f32 v[%d:%d], v[%d:%d], v[%d:%d], v[%d:%d]" % (M + 6, M + 7, T + 6, T + 7, T + 6, T + 7, M + 6, M + 7))
    bf16r(a, G)
    a("v_pk_add_f32 v[%d:%d], v[%d:%d], v[%d:%d]" % (M + 4, M + 5, M + 4, M + 5, M + 6, M + 7))
    a("v_mul_f32 v%d, 0x%x, v%d" % (G, f32(-1.4426950408889634), G))
    a("v_add_f32 v%d, v%d, v%d" % (M + 4, M + 4, M + 5))
    a("v_exp_f32 v%d, v%d" % (G, G))
    bf16r(a, M + 2)
    for k, st in enumerate(DSTEPS):
        a("v_add_f32_dpp v%d, v%d, v%d %s" % (M + 4, M + 4, M + 4, st))
        if k == 0:
            a("v_add_f32 v%d, 1.0, v%d" % (G, G))
            a("v_mov_b32 v%d, v%d" % (M + 3, M + 2))
        elif k == 1:
            a("v_rcp_f32 v%d, v%d" % (G, G))
            a.nop(1)
        else:
            a.nop(2)
    a("v_readlane_b32 s%d, v%d, 63" % (SR + 2, M + 4))
    for q in range(4):
        a("v_pk_add_f32 v[%d:%d], v[%d:%d], v[%d:%d] neg_lo:[0,1] neg_hi:[0,1]" % (XV + 2 * q, XV + 2 * q + 1, XV + 2 * q, XV + 2 * q + 1, M + 2, M + 3))
    a("v_mul_f32 v%d, s%d, v60" % (M + 4, SR + 2))
    for q in range(4):
        a("v_cvt_pk_bf16_f32 v%d, v%d, v%d" % (T + q, XV + 2 * q, XV + 2 * q + 1))
    bf16r(a, M + 4)
    bf16r(a, G)
    a("v_add_f32 v%d, v%d, v61" % (M + 4, M + 4))
    for q in range(4):
        a("v_lshlrev_b32 v%d, 16, v%d" % (XV + 2 * q, T + q))
        a("v_and_b32 v%d, s27, v%d" % (XV + 2 * q + 1, T + q))
    bf16r(a, M + 4)
    a("v_sqrt_f32 v%d, v%d" % (M + 4, M + 4))
    a.nop(1)
    bf16r(a, M + 4)
    a("v_rcp_f32 v%d, v%d" % (M + 4, M + 4))
    a.nop(1)
    a("v_mov_b32 v%d, v%d" % (M + 5, M + 4))
    for q in range(4):
        a("v_pk_mul_f32 v[%d:%d], v[%d:%d], v[%d:%d]" % (XV + 2 * q, XV + 2 * q + 1, XV + 2 * q, XV + 2 * q + 1, M + 4, M + 5))
    for q in range(4):
        a("v_cvt_pk_bf16_f32 v%d, v%d, v%d" % (T + q, XV + 2 * q, XV + 2 * q + 1))
    return a.L, T, G


def gen_prep(a, first_wg):
    a.c("---- prep role: wave handles 2 rows, WG = 8 rows")
    a.cur = "prep"
    if not FUSED:
        trace_begin(a)
    stamp(a)
    if first_wg:
        a("s_sub_u32 s2, s2, %d" % first_wg)
    a("s_load_dwordx2 s[4:5], s[0:1], 0")
    a("s_load_dwordx2 s[6:7], s[0:1], 112")
    a("s_load_dwordx2 s[8:9], s[0:1], 136")
    a("v_lshrrev_b32 v1, 6, v0")
    a("v_and_b32 v2, 63, v0")
    a("v_readfirstlane_b32 s3, v1")
    a("v_lshlrev_b32 v3, 4, v2")
    a("s_lshl_b32 s24, s2, 3")
    a("s_lshl_b32 s25, s3, 1")
    a("s_add_u32 s24, s24, s25")
    a("s_lshl_b32 s25, s24, 10")
    a("s_mov_b32 s27, 0xffff0000")
    a("s_waitcnt lgkmcnt(0)")
    srd(a, 12, 4, 2 * MB)
    srd(a, 16, 6, 1024)
    R0, R1 = 64, 104
    a("buffer_load_dwordx4 v[%d:%d], v3, s[12:15], s25 offen" % (R0, R0 + 3))
    a("buffer_load_dwordx4 v[%d:%d], v3, s[12:15], s25 offen offset:1024" % (R1, R1 + 3))
    a("buffer_load_dwordx4 v[12:15], v3, s[16:19], 0 offen")
    a("s_lshr_b32 s40, s2, 3")
    a("s_and_b32 s41, s2, 7")
    a("s_lshl_b32 s42, s40, 16")
    a("s_lshl_b32 s43, s41, 7")
    a("s_add_u32 s42, s42, s43")
    a("v_lshrrev_b32 v44, 3, v0")
    a("v_and_b32 v45, 7, v0")
    a("v_lshlrev_b32 v43, 10, v44")
    a("v_lshl_add_u32 v43, v45, 4, v43")
    a("buffer_load_dwordx4 v[32:35], v43, s[12:15], s42 offen")
    a("s_add_u32 s43, s42, 32768")
    a("buffer_load_dwordx4 v[36:39], v43, s[12:15], s43 offen")
    a("v_mul_u32_u24 v40, %d, v44" % UTP)
    a("v_lshl_add_u32 v40, v45, 4, v40")
    a("v_and_b32 v44, 15, v2")
    a("v_lshrrev_b32 v41, 2, v44")
    a("s_lshl_b32 s44, s3, 4")
    a("v_add_u32 v41, s44, v41")
    a("v_mul_u32_u24 v41, %d, v41" % UTP)
    a("v_and_b32 v44, 3, v44")
    a("v_lshl_add_u32 v41, v44, 3, v41")
    a("v_lshrrev_b32 v44, 4, v2")
    a("v_lshl_add_u32 v41, v44, 5, v41")
    a("v_lshlrev_b32 v42, 12, v2")
    a("s_lshl_b32 s44, s41, 18")
    a("s_lshl_b32 s45, s40, 7")
    a("s_add_u32 s44, s44, s45")
    a("s_lshl_b32 s45, s3, 5")
    a("s_add_u32 s44, s44, s45")
    a("s_add_u32 s44, s44, 0x%x" % WS_UF)
    srd(a, 20, 8, WS_SIZE)
    a("s_mul_i32 s26, s3, %d" % (2 * RP))
    a("v_add_u32 v4, s26, v3")
    a("v_and_b32 v5, 15, v2")
    a("v_lshrrev_b32 v6, 2, v5")
    a("v_mul_u32_u24 v6, %d, v6" % RP)
    a("v_and_b32 v5, 3, v5")
    a("v_lshl_add_u32 v6, v5, 3, v6")
    a("v_lshrrev_b32 v5, 4, v2")
    a("v_lshl_add_u32 v6, v5, 5, v6")
    a("s_lshl_b32 s26, s3, 8")
    a("v_add_u32 v6, s26, v6")
    a("v_lshrrev_b32 v7, 5, v2")
    a("s_lshl_b32 s26, s3, 2")
    a("v_add_u32 v7, s26, v7")
    a("v_lshlrev_b32 v7, 17, v7")
    a("v_and_b32 v5, 31, v2")
    a("v_lshl_add_u32 v7, v5, 4, v7")
    a("s_lshl_b32 s28, s2, 9")
    a("s_add_u32 s29, s28, %d" % (2 * 131072))
    a("v_mov_b32 v60, 0x%x" % f32(1.0 / 512))
    a("v_mov_b32 v61, 0x%x" % f32(1e-5))
    a("s_lshl_b32 s30, s24, 2")
    a("s_add_u32 s30, s30, 0x%x" % WS_GT)
    a("v_mov_b32 v8, 0")
    a("s_waitcnt vmcnt(2)")
    stamp(a)
    for q in range(4):
        a("v_lshlrev_b32 v%d, 16, v%d" % (24 + 2 * q, 12 + q))
        a("v_and_b32 v%d, s27, v%d" % (25 + 2 * q, 12 + q))
    L0, T0, G0 = prep_row(R0, 32)
    L1, T1, G1 = prep_row(R1, 36)
    for x, y in zip(L0, L1):
        if "s_nop 0" in x:
            continue
        if "s_nop 1" in x:
            a("s_nop 0")
            continue
        a.L.append(x)
        a.L.append(y)
    a("s_waitcnt vmcnt(0)")
    a("ds_write_b128 v40, v[32:35] offset:%d" % (8 * RP))
    a("ds_write_b128 v40, v[36:39] offset:%d" % (8 * RP + 32 * UTP))
    a("ds_write_b128 v4, v[%d:%d]" % (T0, T0 + 3))
    a("ds_write_b128 v4, v[%d:%d] offset:%d" % (T1, T1 + 3, RP))
    GL = 8 * RP + 64 * UTP
    a("s_lshl_b32 s31, s3, 3")
    a("v_mov_b32 v9, s31")
    a("s_mov_b64 exec, 1")
    a("ds_write2_b32 v9, v%d, v%d offset0:%d offset1:%d" % (G0, G1, 0, 1) if False else "v_add_u32 v9, %d, v9" % GL)
    a("ds_write2_b32 v9, v%d, v%d offset0:0 offset1:1" % (G0, G1))
    a("s_mov_b64 exec, -1")
    a("s_waitcnt lgkmcnt(0)")
    a("s_barrier")
    stamp(a)
    for p in range(2):
        a("ds_read_b64_tr_b16 v[%d:%d], v6 offset:%d" % (8 + 4 * p, 9 + 4 * p, 128 * p))
        a("ds_read_b64_tr_b16 v[%d:%d], v6 offset:%d" % (10 + 4 * p, 11 + 4 * p, 4 * RP + 128 * p))
    for p in range(2):
        for h in range(2):
            a("ds_read_b64_tr_b16 v[%d:%d], v41 offset:%d" % (32 + 4 * p + 2 * h, 33 + 4 * p + 2 * h, 8 * RP + (8 * p + 4 * h) * UTP))
    a("s_waitcnt lgkmcnt(6)")
    a("buffer_store_dwordx4 v[8:11], v7, s[20:23], s28 offen" + SC)
    a("s_waitcnt lgkmcnt(4)")
    a("buffer_store_dwordx4 v[12:15], v7, s[20:23], s29 offen" + SC)
    a("v_mul_u32_u24 v42, 144, v2")
    a("s_lshl_b32 s45, s3, 5")
    a("v_add_u32 v42, s45, v42")
    a("s_waitcnt lgkmcnt(0)")
    a("ds_write_b128 v42, v[32:35] offset:%d" % (GL + 64))
    a("ds_write_b128 v42, v[36:39] offset:%d" % (GL + 64 + 16))
    a("v_lshrrev_b32 v44, 3, v0")
    a("v_and_b32 v45, 7, v0")
    a("v_mul_u32_u24 v42, 144, v44")
    a("v_lshl_add_u32 v42, v45, 4, v42")
    a("v_lshlrev_b32 v43, 12, v44")
    a("v_lshl_add_u32 v43, v45, 4, v43")
    a("s_lshl_b32 s44, s41, 18")
    a("s_lshl_b32 s45, s40, 7")
    a("s_add_u32 s44, s44, s45")
    a("s_add_u32 s44, s44, 0x%x" % WS_UF)
    a("s_add_u32 s45, s44, %d" % (32 * 4096))
    a("v_lshlrev_b32 v9, 2, v2")
    a("s_lshl_b32 s30, s2, 5")
    a("s_add_u32 s30, s30, 0x%x" % WS_GT)
    a("s_waitcnt lgkmcnt(0)")
    a("s_barrier")
    a("ds_read_b128 v[32:35], v42 offset:%d" % (GL + 64))
    a("ds_read_b128 v[36:39], v42 offset:%d" % (GL + 64 + 32 * 144))
    a("ds_read_b32 v10, v9 offset:%d" % GL)
    a("s_waitcnt lgkmcnt(2)")
    a("buffer_store_dwordx4 v[32:35], v43, s[20:23], s44 offen" + SC)
    a("s_waitcnt lgkmcnt(1)")
    a("buffer_store_dwordx4 v[36:39], v43, s[20:23], s45 offen" + SC)
    a("s_waitcnt lgkmcnt(0)")
    a("s_cmp_lg_u32 s3, 0")
    a("s_cbranch_scc1 L_prep_nog")
    a("s_mov_b64 exec, 0xff")
    a("buffer_store_dword v10, v9, s[20:23], s30 offen" + SC)
    a("s_mov_b64 exec, -1")
    a.lab("L_prep_nog")
    if FUSED:
        a("s_load_dwordx2 s[40:41], s[0:1], 128")
        a("s_waitcnt vmcnt(0) lgkmcnt(0)")
        a("s_barrier")
        a("s_mov_b32 s42, 256")
        a("s_mov_b32 s43, 0x00020000")
        a("s_cmp_lg_u32 s3, 0")
        a("s_cbranch_scc1 L_prep_noflag")
        a("v_mov_b32 v9, 1")
        a("v_mov_b32 v8, 0")
        a("s_mov_b64 exec, 1")
        a("s_and_b32 s44, s2, 63")
        a("s_lshl_b32 s44, s44, 2")
        a("buffer_atomic_add v9, v8, s[40:43], s44 offen sc1")
        a("s_mov_b64 exec, -1")
        a.lab("L_prep_noflag")
        if "trace" in X:
            a("s_memrealtime s[86:87]")
            a("s_waitcnt lgkmcnt(0)")
        return
    stamp(a)
    dump_stamps(a, 5)
    trace_end(a, 0)
    a("s_endpgm")


def gen_utr(a, first_wg):
    a.c("---- U transposer role: tile 64 s x 64 d -> UT[d][s]")
    a.cur = "utr"
    trace_begin(a)
    a("s_sub_u32 s2, s2, %d" % first_wg)
    a("s_load_dwordx2 s[4:5], s[0:1], 0")
    a("s_load_dwordx2 s[8:9], s[0:1], 136")
    a("v_lshrrev_b32 v1, 6, v0")
    a("v_and_b32 v2, 63, v0")
    a("v_readfirstlane_b32 s3, v1")
    a("s_lshr_b32 s20, s2, 3")
    a("s_and_b32 s21, s2, 7")
    a("s_lshl_b32 s22, s20, 16")
    a("s_lshl_b32 s23, s21, 7")
    a("s_add_u32 s22, s22, s23")
    a("v_lshrrev_b32 v3, 3, v0")
    a("v_and_b32 v4, 7, v0")
    a("v_lshlrev_b32 v5, 10, v3")
    a("v_lshl_add_u32 v5, v4, 4, v5")
    a("v_mul_u32_u24 v6, %d, v3" % UTP)
    a("v_lshl_add_u32 v6, v4, 4, v6")
    a("s_waitcnt lgkmcnt(0)")
    srd(a, 12, 4, 2 * MB)
    a("buffer_load_dwordx4 v[8:11], v5, s[12:15], s22 offen")
    a("s_add_u32 s23, s22, 32768")
    a("buffer_load_dwordx4 v[12:15], v5, s[12:15], s23 offen")
    srd(a, 16, 8, WS_SIZE)
    a("v_and_b32 v3, 15, v2")
    a("v_lshrrev_b32 v4, 2, v3")
    a("s_lshl_b32 s24, s3, 4")
    a("v_add_u32 v4, s24, v4")
    a("v_mul_u32_u24 v4, %d, v4" % UTP)
    a("v_and_b32 v3, 3, v3")
    a("v_lshl_add_u32 v4, v3, 3, v4")
    a("v_lshrrev_b32 v3, 4, v2")
    a("v_lshl_add_u32 v4, v3, 5, v4")
    a("v_lshlrev_b32 v7, 12, v2")
    a("s_lshl_b32 s24, s21, 18")
    a("s_lshl_b32 s25, s20, 7")
    a("s_add_u32 s24, s24, s25")
    a("s_lshl_b32 s25, s3, 5")
    a("s_add_u32 s24, s24, s25")
    a("s_add_u32 s24, s24, 0x%x" % WS_UF)
    a("s_waitcnt vmcnt(1)")
    a("ds_write_b128 v6, v[8:11]")
    a("s_waitcnt vmcnt(0)")
    a("ds_write_b128 v6, v[12:15] offset:%d" % (32 * UTP))
    a("s_waitcnt lgkmcnt(0)")
    a("s_barrier")
    for p in range(2):
        for h in range(2):
            a("ds_read_b64_tr_b16 v[%d:%d], v4 offset:%d" % (8 + 4 * p + 2 * h, 9 + 4 * p + 2 * h, (8 * p + 4 * h) * UTP))
    a("s_waitcnt lgkmcnt(2)")
    a("buffer_store_dwordx4 v[8:11], v7, s[16:19], s24 offen")
    a("s_waitcnt lgkmcnt(0)")
    a("buffer_store_dwordx4 v[12:15], v7, s[16:19], s24 offen offset:16")
    trace_end(a, 0)
    a("s_endpgm")


def gen_kgen(a, first_wg):
    a.c("---- kgen role: one channel per workgroup")
    a.cur = "kgen"
    if not FUSED:
        trace_begin(a)
    stamp(a)
    if first_wg:
        a("s_sub_u32 s2, s2, %d" % first_wg)
    a("s_load_dwordx4 s[28:31], s[0:1], 8")
    a("s_load_dwordx4 s[32:35], s[0:1], 24")
    a("s_load_dwordx4 s[36:39], s[0:1], 40")
    a("s_load_dwordx2 s[40:41], s[0:1], 56")
    a("s_load_dwordx2 s[4:5], s[0:1], 136")
    a("s_load_dwordx2 s[6:7], s[0:1], 80")
    a("v_lshrrev_b32 v1, 6, v0")
    a("v_and_b32 v2, 63, v0")
    a("v_readfirstlane_b32 s3, v1")
    a("v_and_b32 v3, 127, v0")
    a("v_lshlrev_b32 v4, 1, v3")
    a("s_lshl_b32 s20, s2, 8")
    a("s_lshl_b32 s25, s2, 1")
    a("v_mov_b32 v6, 0")
    a("s_waitcnt lgkmcnt(0)")
    for k in range(6):
        srd(a, 44 + 4 * k, 28 + 2 * k, 131072)
        a("buffer_load_ushort v%d, v4, s[%d:%d], s20 offen" % (10 + k, 44 + 4 * k, 47 + 4 * k))
    srd(a, 12, 40, 1024)
    a("buffer_load_ushort v16, v6, s[12:15], s25 offen")
    if "pf1" in X:
        srd(a, 68, 6, 2048 * 1792 * 2)
        a("s_lshl_b32 s26, s2, 14")
        a("v_lshlrev_b32 v5, 4, v0")
        for k in range(4):
            a("buffer_load_dwordx4 v[%d:%d], v5, s[68:71], s26 offen" % (128 + 4 * k, 131 + 4 * k))
            if k < 3:
                a("s_add_u32 s26, s26, 4096")
    srd(a, 8, 4, WS_SIZE)
    a("s_cmp_ge_u32 s3, 2")
    a("s_cselect_b32 s26, %d, %d" % (XT, YT))
    a("s_cselect_b32 s27, 0x%x, 0x%x" % (f32(16.0), f32(1.0)))
    a("s_cselect_b32 s36, 0x%x, 0x%x" % (f32(0.15915494309189535), f32(-0.15915494309189535)))
    a("v_lshlrev_b32 v8, 2, v3")
    a("v_add_u32 v8, s26, v8")
    a("v_lshlrev_b32 v28, 3, v0")
    a("v_sub_u32 v28, 2047, v28")
    a("s_mov_b32 s28, 0xffff")
    a("s_mov_b32 s29, %d" % (0x4300 - 128))
    for j in range(8):
        a("v_subrev_u32 v%d, %d, v28" % (48 + j, j))
        a("v_cvt_f32_u32 v%d, v%d" % (56 + j, 48 + j))
    for j in range(0, 8, 2):
        a("v_cvt_pk_bf16_f32 v%d, v%d, v%d" % (56 + j, 56 + j, 57 + j))
    for j in range(0, 8, 2):
        a("v_lshrrev_b32 v%d, 16, v%d" % (57 + j, 56 + j))
        a("v_and_b32 v%d, s28, v%d" % (56 + j, 56 + j))
    for j in range(8):
        a("v_subrev_u32 v%d, s29, v%d" % (56 + j, 56 + j))
    for j in range(8):
        a("v_cmp_gt_u32 vcc, 128, v%d" % (48 + j))
        a.nop(2)
        a("v_cndmask_b32 v%d, v%d, v%d, vcc" % (56 + j, 56 + j, 48 + j))
        a("v_lshlrev_b32 v%d, 2, v%d" % (56 + j, 56 + j))
    a("v_and_b32 v9, 15, v2")
    a("v_lshrrev_b32 v17, 4, v2")
    a("s_lshl_b32 s26, s3, 3")
    a("s_add_u32 s26, s26, 8")
    a("s_cmp_eq_u32 s3, 0")
    a("s_cselect_b32 s26, 0, s26")
    a("v_add_u32 v18, s26, v9")
    a("v_mul_u32_u24 v18, %d, v18" % TBP)
    a("v_lshl_add_u32 v18, v17, 4, v18")
    a("v_lshlrev_b32 v19, s3, v9")
    a("v_or_b32 v29, 8, v19")
    a("v_ffbh_u32 v29, v29")
    a("v_sub_u32 v29, 28, v29")
    a("v_lshrrev_b32 v19, v29, v19")
    a("v_lshl_add_u32 v19, v29, 3, v19")
    a("v_mul_u32_u24 v19, %d, v19" % TBP)
    a("v_lshl_add_u32 v19, v17, 4, v19")
    a("s_waitcnt vmcnt(%d)" % (4 if "pf1" in X else 0))
    for k in range(7):
        a("v_lshlrev_b32 v%d, 16, v%d" % (10 + k, 10 + k))
    a("v_mul_f32 v16, 0x%x, v16" % f32(1.4426950408889634))
    a("v_exp_f32 v16, v16")
    a.nop(1)
    bf16r(a, 16)
    a("v_mul_f32 v20, v16, v10")
    a("v_mul_f32 v21, v16, v11")
    a("v_mul_f32 v12, v16, v12")
    a("v_mul_f32 v13, v16, v13")
    a("v_mul_f32 v20, 0x%x, v20" % f32(1.4426950408889634))
    a("v_mul_f32 v21, s36, v21")
    a("v_mul_f32 v20, s27, v20")
    a("v_mul_f32 v21, s27, v21")
    a("v_mul_f32 v22, v14, v12")
    a("v_mul_f32 v23, v14, v13")
    a("v_fract_f32 v21, v21")
    a("v_exp_f32 v20, v20")
    a("v_fma_f32 v22, -v15, v13, v22")
    a("v_fma_f32 v23, v15, v12, v23")
    a("v_cos_f32 v24, v21")
    a("v_sin_f32 v25, v21")
    a("v_mov_b32 v26, 1.0")
    a("v_mov_b32 v27, 0")
    a("v_mul_f32 v24, v20, v24")
    a("v_mul_f32 v25, v20, v25")
    a("s_cmp_ge_u32 s3, 2")
    a("s_cbranch_scc0 L_kg_y")
    a("v_mov_b32 v26, v22")
    a("v_mov_b32 v27, v23")
    a.lab("L_kg_y")

    def cmul(dst, x, w):
        a("v_pk_mul_f32 v[30:31], v[%d:%d], v[%d:%d] op_sel:[0,0] op_sel_hi:[1,0]" % (x, x + 1, w, w + 1))
        a("v_pk_fma_f32 v[%d:%d], v[%d:%d], v[%d:%d], v[30:31] op_sel:[1,1,0] op_sel_hi:[0,1,1] neg_lo:[1,0,0]" %
          (dst, dst + 1, x, x + 1, w, w + 1))

    W = [24, 32, 34, 36]
    for k in range(1, 4):
        cmul(W[k], W[k - 1], W[k - 1])
    for row in range(41):
        a("v_cvt_pk_bf16_f32 v%d, v26, v27" % (40 + (row & 3)))
        if row < 40:
            cmul(26, 26, W[0] if row < 16 else (W[1] if row < 24 else (W[2] if row < 32 else W[3])))
        if row & 1:
            a("ds_write2_b32 v8, v%d, v%d offset0:%d offset1:%d" % (40 + ((row - 1) & 3), 40 + (row & 3), 0, TBP // 4))
            if row < 40:
                a("v_add_u32 v8, %d, v8" % (2 * TBP))
        elif row == 40:
            a("ds_write_b32 v8, v%d" % (40 + (row & 3)))
    a("s_waitcnt lgkmcnt(0)")
    a("s_barrier")
    stamp(a)
    for kap in range(8):
        a("ds_read_b128 v[%d:%d], v18 offset:%d" % (64 + 8 * kap, 67 + 8 * kap, XT + 64 * kap))
        a("ds_read_b128 v[%d:%d], v19 offset:%d" % (68 + 8 * kap, 71 + 8 * kap, YT + 64 * kap))
    a("s_lshl_b32 s26, s3, 7")
    a("s_add_u32 s26, s26, 128")
    a("s_cmp_eq_u32 s3, 0")
    a("s_cselect_b32 s26, 0, s26")
    a("s_mov_b32 s27, 128")
    a("s_cselect_b32 s27, 256, s27")
    a("s_cmp_eq_u32 s3, 3")
    a("s_cselect_b32 s27, 129, s27")
    a("v_lshl_add_u32 v13, v17, 6, v9")
    a("v_add_u32 v15, s26, v13")
    a("v_lshlrev_b32 v15, 2, v15")
    for kap in range(8):
        a("s_waitcnt lgkmcnt(%d)" % (14 - 2 * kap))
        c0 = "0" if kap == 0 else "v[44:47]"
        a("v_mfma_f32_16x16x32_bf16 v[44:47], v[%d:%d], v[%d:%d], %s" % (64 + 8 * kap, 67 + 8 * kap, 68 + 8 * kap, 71 + 8 * kap, c0))
    a("s_lshl_b32 s22, s2, 12")
    a("s_add_u32 s22, s22, 0x%x" % WS_RK)
    a("v_lshlrev_b32 v3, 4, v0")
    a.nop(5)
    for reg in range(4):
        a("v_add_u32 v14, %d, v13" % (16 * reg))
        a("v_cmp_gt_u32 vcc, s27, v14")
        a("s_and_saveexec_b64 s[30:31], vcc")
        a("ds_write_b32 v15, v%d offset:%d" % (44 + reg, KT + 64 * reg))
        a("s_mov_b64 exec, s[30:31]")
    if FUSED:
        poll_flags(a, "cv")
    a("s_waitcnt lgkmcnt(0)")
    a("s_barrier")
    stamp(a)
    if FUSED:
        return
    for j in range(8):
        a("ds_read_b32 v%d, v%d offset:%d" % (64 + j, 56 + j, KT))
    a("s_waitcnt lgkmcnt(0)")
    for q in range(4):
        a("v_cvt_pk_bf16_f32 v%d, v%d, v%d" % (8 + q, 64 + 2 * q, 65 + 2 * q))
    a("buffer_store_dwordx4 v[8:11], v3, s[8:11], s22 offen")
    stamp(a)
    dump_stamps(a, 77, 64)
    trace_end(a, 0)
    a("s_endpgm")


CP = 4416
UB = 8 * CP
UP = 144
K2_LDS = 49152


def gen_conv(a, first_wg):
    a.c("---- conv role: one channel per workgroup")
    a.cur = "conv"
    if not FUSED:
        trace_begin(a)
    stamp(a)
    if FUSED:
        for j in range(8):
            a("ds_read_b32 v%d, v%d offset:%d" % (64 + j, 56 + j, KT))
    if first_wg:
        a("s_sub_u32 s2, s2, %d" % first_wg)
    a("s_load_dwordx2 s[4:5], s[0:1], 136")
    a("s_load_dwordx2 s[6:7], s[0:1], 96")
    a("s_load_dwordx2 s[42:43], s[0:1], 64")
    a("v_lshrrev_b32 v1, 6, v0")
    a("v_and_b32 v2, 63, v0")
    a("v_readfirstlane_b32 s3, v1")
    a("s_lshl_b32 s25, s2, 1")
    a("v_mov_b32 v6, 0")
    a("v_lshlrev_b32 v3, 4, v0")
    a("s_lshl_b32 s21, s2, 12")
    a("s_add_u32 s20, s21, 0x%x" % WS_RK)
    a("s_add_u32 s22, s21, 0x%x" % WS_UF)
    a("s_add_u32 s23, s21, 0x%x" % WS_AF)
    a("s_waitcnt lgkmcnt(0)")
    if not FUSED:
        a("s_add_u32 s12, s4, s20")
        a("s_addc_u32 s13, s5, 0")
        a("s_mov_b32 s14, 4096")
        a("s_mov_b32 s15, 0x00020000")
        a("buffer_load_dwordx4 v[8:11], v3, s[12:15], 0 offen")
        a("buffer_load_dwordx4 v[12:15], v3, s[12:15], 0 offen offset:16")
    else:
        for q in range(4):
            a("v_cvt_pk_bf16_f32 v%d, v%d, v%d" % (8 + q, 64 + 2 * q, 65 + 2 * q))
        a("ds_write_b128 v3, v[8:11]")
    srd(a, 8, 4, WS_SIZE)
    a("buffer_load_dwordx4 v[152:155], v3, s[8:11], s22 offen")
    srd(a, 16, 42, 1024)
    a("v_lshlrev_b32 v7, 5, v0")
    a("s_mov_b32 s24, 0x%x" % WS_GT)
    a("buffer_load_dwordx4 v[156:159], v7, s[8:11], s24 offen")
    a("buffer_load_dwordx4 v[160:163], v7, s[8:11], s24 offen offset:16")
    a("buffer_load_ushort v164, v6, s[16:19], s25 offen")
    NPF = 0
    if "nopf" not in X:
        NPF = 4
        srd(a, 68, 6, 2048 * 1792 * 2)
        a("s_lshl_b32 s26, s2, 14")
        for k in range(4):
            a("buffer_load_dwordx4 v[%d:%d], v3, s[68:71], s26 offen" % (128 + 4 * k, 131 + 4 * k))
            if k < 3:
                a("s_add_u32 s26, s26, 4096")
    for k in range(4):
        a("v_mov_b32 v%d, 0" % (48 + k))
    a("ds_write_b128 v3, v[48:51] offset:%d" % UB)
    a("v_lshrrev_b32 v4, 3, v2")
    a("v_mul_u32_u24 v4, %d, v4" % CP)
    a("v_and_b32 v7, 7, v2")
    a("v_lshl_add_u32 v4, v7, 4, v4")
    a("v_add_u32 v4, 4096, v4")
    a("v_add_u32 v5, %d, v3" % (UB + 4096))
    a("s_cmp_eq_u32 s3, 0")
    a("s_cbranch_scc1 L_cv_z0")
    a("s_cmp_eq_u32 s3, 1")
    a("s_cbranch_scc0 L_cv_z1")
    a("ds_write_b128 v4, v[48:51]")
    a("s_branch L_cv_z1")
    a.lab("L_cv_z0")
    a("s_mov_b64 exec, 0xffffffff")
    a("ds_write_b128 v5, v[48:51]")
    a("s_mov_b64 exec, -1")
    a.lab("L_cv_z1")
    a("v_lshrrev_b32 v6, 3, v0")
    a("v_mul_u32_u24 v6, %d, v6" % UP)
    a("v_and_b32 v7, 7, v0")
    a("v_lshl_add_u32 v6, v7, 4, v6")
    a("v_and_b32 v20, 31, v2")
    a("v_lshrrev_b32 v21, 5, v2")
    a("v_and_b32 v22, 7, v20")
    a("v_sub_u32 v22, 7, v22")
    a("v_mul_u32_u24 v22, %d, v22" % CP)
    a("v_lshrrev_b32 v23, 3, v20")
    a("v_sub_u32 v23, v21, v23")
    a("v_lshl_add_u32 v22, v23, 4, v22")
    a("s_lshl_b32 s28, s3, 10")
    a("s_sub_u32 s28, %d, s28" % (16 * 255 - 128 * 7 - 64))
    a("v_add_u32 v18, s28, v22")
    a("v_mul_u32_u24 v23, %d, v20" % UP)
    a("v_lshl_add_u32 v23, v21, 4, v23")
    a("s_mul_i32 s29, s3, %d" % (8 * UP))
    a("s_sub_u32 s29, %d, s29" % (UB + UP * 25))
    a("v_add_u32 v19, s29, v23")
    if FUSED:
        a("s_waitcnt lgkmcnt(0)")
        a("s_barrier")
        a("ds_read_b128 v[12:15], v3 offset:16")
        a("s_waitcnt lgkmcnt(0)")
    else:
        a("s_waitcnt vmcnt(%d)" % (4 + NPF))
    for k in range(1, 8):
        a("v_mov_b32 v%d, v%d" % (65 + k, 8 + k))
    for k in range(7):
        a("v_alignbit_b32 v%d, v%d, v%d, 16" % (74 + k, 9 + k, 8 + k))
    for k in range(1, 7):
        a("v_alignbit_b32 v%d, v%d, v%d, 16" % (83 + k, 9 + k, 8 + k))
    src = {0: 8, 2: 66, 4: 10, 6: 68, 1: 74, 3: 84, 5: 76, 7: 86}
    for s in range(1 if FUSED else 0, 8):
        a("ds_write_b128 v3, v[%d:%d] offset:%d" % (src[s], src[s] + 3, s * CP))
    a("s_waitcnt vmcnt(%d)" % (3 + NPF))
    a("ds_write_b128 v6, v[152:155] offset:%d" % (UB + 32 * UP))
    a("s_waitcnt lgkmcnt(0)")
    a("s_barrier")
    stamp(a)
    ACC = [64, 80]
    FA = [24 + 4 * k for k in range(10)]
    FB = [[96 + 4 * k for k in range(4)], [112 + 4 * k for k in range(4)]]
    free = list(range(10))
    cur = {}

    def loadA(dl, rel):
        sl = free.pop(0)
        a("ds_read_b128 v[%d:%d], v18 offset:%d" % (FA[sl], FA[sl] + 3, 128 * (7 - dl) + 64 - 2 * rel))
        return sl

    def loadB(dl):
        for k in range(4):
            a("ds_read_b128 v[%d:%d], v19 offset:%d" % (FB[dl & 1][k], FB[dl & 1][k] + 3, UP * (7 - dl) + 32 * k))

    for rel in (-48, -32, -16, 0, 16, 32):
        cur[rel] = loadA(0, rel)
    loadB(0)
    for dl in range(8):
        nxt = {}
        if dl < 7:
            nxt[-48] = cur[16]
            nxt[-32] = cur[32]
            for rel in (-16, 0, 16, 32):
                nxt[rel] = loadA(dl + 1, rel)
            loadB(dl + 1)
            a("s_waitcnt lgkmcnt(8)")
        else:
            a("s_waitcnt lgkmcnt(0)")
        for k in range(4):
            for beta in range(2):
                rel = 32 * beta - 16 * k
                c = "0" if (dl == 0 and k == 0) else "v[%d:%d]" % (ACC[beta], ACC[beta] + 15)
                a("v_mfma_f32_32x32x16_bf16 v[%d:%d], v[%d:%d], v[%d:%d], %s" %
                  (ACC[beta], ACC[beta] + 15, FA[cur[rel]], FA[cur[rel]] + 3, FB[dl & 1][k], FB[dl & 1][k] + 3, c))
        for rel in (-48, -32, -16, 0):
            free.append(cur[rel])
        cur = nxt
    a("v_mul_u32_u24 v24, 272, v20")
    a("v_lshl_add_u32 v24, v21, 4, v24")
    a("s_mul_i32 s28, s3, 8704")
    a("v_add_u32 v24, s28, v24")
    a("v_lshrrev_b32 v25, 3, v0")
    a("v_mul_u32_u24 v25, 272, v25")
    a("v_and_b32 v26, 7, v0")
    a("v_lshl_add_u32 v25, v26, 5, v25")
    a("s_mov_b32 s27, 0xffff0000")
    a("s_waitcnt vmcnt(0)")
    a("s_barrier")
    if "cv3" in X:
        trace_end(a, 1)
        a("s_endpgm")
    stamp(a)
    a.nop(4)
    for beta in range(2):
        for rq in range(4):
            a("ds_write_b128 v24, v[%d:%d] offset:%d" % (ACC[beta] + 4 * rq, ACC[beta] + 4 * rq + 3, (32 * beta + 8 * rq) * 4))
    a("v_lshlrev_b32 v164, 16, v164")
    a("v_mov_b32 v165, v164")
    for q in range(4):
        a("v_lshlrev_b32 v%d, 16, v%d" % (128 + 2 * q, 152 + q))
        a("v_and_b32 v%d, s27, v%d" % (129 + 2 * q, 152 + q))
    for q in range(4):
        a("v_pk_mul_f32 v[%d:%d], v[%d:%d], v[164:165]" % (128 + 2 * q, 129 + 2 * q, 128 + 2 * q, 129 + 2 * q))
    for q in range(4):
        a("v_cvt_pk_bf16_f32 v%d, v%d, v%d" % (136 + q, 128 + 2 * q, 129 + 2 * q))
    for q in range(4):
        a("v_lshlrev_b32 v%d, 16, v%d" % (128 + 2 * q, 136 + q))
        a("v_and_b32 v%d, s27, v%d" % (129 + 2 * q, 136 + q))
    a("s_waitcnt lgkmcnt(0)")
    a("s_barrier")
    for w in range(4):
        a("ds_read_b128 v[%d:%d], v25 offset:%d" % (32 + 8 * w, 35 + 8 * w, w * 8704))
        a("ds_read_b128 v[%d:%d], v25 offset:%d" % (36 + 8 * w, 39 + 8 * w, w * 8704 + 16))
    a("s_waitcnt lgkmcnt(4)")
    for q in range(4):
        a("v_pk_add_f32 v[%d:%d], v[%d:%d], v[%d:%d]" % (32 + 2 * q, 33 + 2 * q, 32 + 2 * q, 33 + 2 * q, 40 + 2 * q, 41 + 2 * q))
    a("s_waitcnt lgkmcnt(0)")
    for q in range(4):
        a("v_pk_add_f32 v[%d:%d], v[%d:%d], v[%d:%d]" % (48 + 2 * q, 49 + 2 * q, 48 + 2 * q, 49 + 2 * q, 56 + 2 * q, 57 + 2 * q))
    for q in range(4):
        a("v_pk_add_f32 v[%d:%d], v[%d:%d], v[%d:%d]" % (32 + 2 * q, 33 + 2 * q, 32 + 2 * q, 33 + 2 * q, 48 + 2 * q, 49 + 2 * q))
    for q in range(4):
        a("v_cvt_pk_bf16_f32 v%d, v%d, v%d" % (72 + q, 32 + 2 * q, 33 + 2 * q))
    for q in range(4):
        a("v_lshlrev_b32 v%d, 16, v%d" % (32 + 2 * q, 72 + q))
        a("v_and_b32 v%d, s27, v%d" % (33 + 2 * q, 72 + q))
    for q in range(4):
        a("v_pk_add_f32 v[%d:%d], v[%d:%d], v[%d:%d]" % (32 + 2 * q, 33 + 2 * q, 32 + 2 * q, 33 + 2 * q, 128 + 2 * q, 129 + 2 * q))
    for q in range(4):
        a("v_cvt_pk_bf16_f32 v%d, v%d, v%d" % (72 + q, 32 + 2 * q, 33 + 2 * q))
    for q in range(4):
        a("v_lshlrev_b32 v%d, 16, v%d" % (32 + 2 * q, 72 + q))
        a("v_and_b32 v%d, s27, v%d" % (33 + 2 * q, 72 + q))
    for q in range(4):
        a("v_pk_mul_f32 v[%d:%d], v[%d:%d], v[%d:%d]" % (32 + 2 * q, 33 + 2 * q, 32 + 2 * q, 33 + 2 * q, 156 + 2 * q, 157 + 2 * q))
    for q in range(4):
        a("v_cvt_pk_bf16_f32 v%d, v%d, v%d" % (72 + q, 32 + 2 * q, 33 + 2 * q))
    a("buffer_store_dwordx4 v[72:75], v3, s[8:11], s23 offen")
    stamp(a)
    dump_stamps(a, 77, 64)
    trace_end(a, 0 if FUSED else 1)
    a("s_endpgm")


TP = 144
RED = 49152
K3_LDS = 65536 + 64 * TP


def gen_gemm(a, which):
    g1 = (which == 1)
    NOCT = 256 if g1 else 224
    S = 32 if g1 else 28
    NS = 6 if g1 else 8
    PW = 3584 if g1 else 4096
    WOFF = 80 if g1 else 96
    WBYTES = 2048 * 1792 * 2
    DOFF = WS_HF if g1 else WS_GF
    TPITCH = NOCT * 512
    NQ = 28 if g1 else 32
    TBASE = 65536
    a.c("---- gemm%d role" % which)
    a.cur = "g%d" % which
    trace_begin(a)
    stamp(a)
    a("s_load_dwordx2 s[4:5], s[0:1], %d" % WOFF)
    a("s_load_dwordx2 s[6:7], s[0:1], 136")
    a("s_load_dwordx2 s[36:37], s[0:1], %d" % (88 if g1 else 104))
    if not g1:
        a("s_load_dwordx2 s[38:39], s[0:1], 120")
    a("v_lshrrev_b32 v1, 6, v0")
    a("v_and_b32 v2, 63, v0")
    a("v_readfirstlane_b32 s3, v1")
    a("s_and_b32 s20, s2, 7")
    a("s_lshr_b32 s21, s2, 3")
    a("s_mul_i32 s20, s20, %d" % NQ)
    a("s_add_u32 s20, s20, s21")
    a("s_lshr_b32 s21, s20, 3")
    a("s_and_b32 s22, s20, 7")
    a("s_mul_i32 s23, s22, %d" % (2 * TPITCH))
    a("s_mul_i32 s24, s3, %d" % (S * 1024))
    a("s_add_u32 s23, s23, s24")
    a("s_add_u32 s23, s23, 0x%x" % DOFF)
    a("v_lshlrev_b32 v3, 4, v2")
    a("v_add_u32 v4, %d, v3" % TPITCH)
    a("v_lshrrev_b32 v5, 3, v2")
    a("v_and_b32 v6, 7, v2")
    a("v_lshlrev_b32 v7, 1, v5")
    a("v_and_b32 v7, 4, v7")
    a("v_xor_b32 v6, v6, v7")
    a("v_mul_u32_u24 v5, %d, v5" % PW)
    a("v_lshl_add_u32 v5, v6, 4, v5")
    a("s_lshl_b32 s24, s21, 7")
    a("v_add_u32 v5, s24, v5")
    a("s_mul_i32 s25, s3, %d" % (S * 16 * PW))
    a("s_mul_i32 s26, s3, %d" % (NS * 2048))
    a("s_waitcnt lgkmcnt(0)")
    srd(a, 8, 4, WBYTES)
    srd(a, 12, 6, WS_SIZE)
    ACC = [[16, 32], [48, 64]]
    DF = [80 + 8 * k for k in range(NS)]
    WFB = 80 + 8 * NS
    XR = WFB + 16

    a("s_and_b32 s48, s21, 3")
    a("s_lshl2_add_u32 s48, s22, s48")
    if "norot" in X:
        a("s_mov_b32 s48, 0")
    a("s_sub_u32 s49, s48, %d" % S)
    a("s_cmp_ge_u32 s48, %d" % S)
    a("s_cselect_b32 s48, s49, s48")

    def issue(st):
        sl = st % NS
        a("s_mul_i32 s27, s48, %d" % (16 * PW))
        a("s_add_u32 m0, s26, %d" % (sl * 2048))
        a("s_add_u32 s27, s27, s25")
        if "wreg" in X:
            a("buffer_load_dwordx4 v[%d:%d], v5, s[8:11], s27 offen" % (WFB + 8 * (st & 1), WFB + 8 * (st & 1) + 3))
        else:
            a("buffer_load_dwordx4 v5, s[8:11], s27 offen lds" + WH)
        a("s_add_u32 m0, s26, %d" % (sl * 2048 + 1024))
        a("s_add_u32 s27, s27, %d" % (8 * PW))
        a("s_lshl_b32 s28, s48, 10")
        if "wreg" in X:
            a("buffer_load_dwordx4 v[%d:%d], v5, s[8:11], s27 offen" % (WFB + 8 * (st & 1) + 4, WFB + 8 * (st & 1) + 7))
        else:
            a("buffer_load_dwordx4 v5, s[8:11], s27 offen lds" + WH)
        a("s_add_u32 s28, s28, s23")
        a("s_add_u32 s48, s48, 1")
        for t in range(2):
            r = DF[sl] + 4 * t
            a("buffer_load_dwordx4 v[%d:%d], v%d, s[12:15], s28 offen" % (r, r + 3, 3 + t) + DH)
        a("s_cmp_lg_u32 s48, %d" % S)
        a("s_cselect_b32 s48, s48, 0")

    if g1 and FUSED:
        a("s_mov_b32 s51, s48")
        for st in range(NS):
            a("s_mul_i32 s27, s51, %d" % (16 * PW))
            a("s_add_u32 s27, s27, s25")
            a("buffer_load_dwordx4 v[%d:%d], v5, s[8:11], s27 offen" % (DF[st], DF[st] + 3))
            a("s_add_u32 s27, s27, %d" % (8 * PW))
            a("s_add_u32 s51, s51, 1")
            a("buffer_load_dwordx4 v[%d:%d], v5, s[8:11], s27 offen" % (DF[st] + 4, DF[st] + 7))
            a("s_cmp_lg_u32 s51, %d" % S)
            a("s_cselect_b32 s51, s51, 0")
        poll_flags(a, "g1")
        a("s_waitcnt vmcnt(0)")
        a("s_barrier")
    issue(0)
    issue(1)
    srd(a, 40, 36, 3584 if g1 else 4096)
    if not g1:
        srd(a, 44, 38, 2 * MB)
    for st in range(2, NS):
        issue(st)
    a("v_lshrrev_b32 v8, 4, v2")
    a("v_and_b32 v9, 15, v2")
    a("v_lshrrev_b32 v10, 2, v9")
    a("v_and_b32 v11, 3, v9")
    a("v_lshrrev_b32 v12, 1, v8")
    a("v_lshl_add_u32 v12, v12, 3, v10")
    a("v_lshlrev_b32 v12, 7, v12")
    a("v_and_b32 v13, 1, v8")
    a("v_lshlrev_b32 v13, 1, v13")
    a("v_lshrrev_b32 v14, 1, v11")
    a("v_add_u32 v13, v13, v14")
    a("v_lshlrev_b32 v14, 1, v10")
    a("v_and_b32 v14, 4, v14")
    a("v_xor_b32 v13, v13, v14")
    a("v_lshl_add_u32 v12, v13, 4, v12")
    a("v_and_b32 v14, 1, v11")
    a("v_lshl_add_u32 v12, v14, 3, v12")
    a("v_add_u32 v12, s26, v12")
    a("v_xor_b32 v13, 64, v12")
    a("s_lshr_b32 s29, s3, 1")
    a("s_and_b32 s30, s3, 1")
    a("v_and_b32 v6, 31, v2")
    a("v_lshrrev_b32 v7, 5, v2")
    NX = 0
    if g1:
        a("s_lshl_b32 s31, s21, 7")
        a("s_lshl_b32 s32, s29, 6")
        a("s_add_u32 s31, s31, s32")
        a("v_lshlrev_b32 v14, 3, v7")
        for rq in range(4):
            a("buffer_load_dwordx2 v[%d:%d], v14, s[40:43], s31 offen offset:%d" % (XR + 2 * rq, XR + 2 * rq + 1, 16 * rq))
        NX = 4
    else:
        a("s_lshl_b32 s31, s22, 18")
        a("s_lshl_b32 s32, s21, 7")
        a("s_add_u32 s31, s31, s32")
        a("s_add_u32 s31, s31, 0x%x" % WS_AF)
        a("s_add_u32 s32, s31, 131072")
        a("v_lshrrev_b32 v14, 3, v0")
        a("v_and_b32 v15, 7, v0")
        a("v_lshlrev_b32 v15, 4, v15")
        a("v_lshl_add_u32 v15, v14, 12, v15")
        a("buffer_load_dwordx4 v[%d:%d], v15, s[12:15], s31 offen" % (XR, XR + 3))
        a("buffer_load_dwordx4 v[%d:%d], v15, s[12:15], s32 offen" % (XR + 4, XR + 7))
        a("s_lshl_b32 s33, s21, 6")
        a("s_lshl_b32 s34, s30, 5")
        a("s_add_u32 s33, s33, s34")
        a("v_add_u32 v14, s33, v6")
        a("v_lshlrev_b32 v15, 2, v14")
        a("s_mov_b32 s34, 0x%x" % WS_GT)
        a("buffer_load_dword v%d, v15, s[12:15], s34 offen" % (XR + 8))
        a("v_lshlrev_b32 v15, 1, v14")
        a("buffer_load_ushort v%d, v15, s[40:43], 0 offen" % (XR + 9))
        NX = 4
    stamp(a)

    def trreads(st):
        if "wreg" in X:
            return
        sl = st % NS
        for nu in range(2):
            for h in range(2):
                r = WFB + 8 * (st & 1) + 4 * nu + 2 * h
                a("ds_read_b64_tr_b16 v[%d:%d], v%d offset:%d" % (r, r + 1, 12 + nu, sl * 2048 + h * 512))

    def stage(st, sl, par, do_issue, wait_next, first=False):
        if wait_next is not None:
            a("s_waitcnt vmcnt(%d)" % wait_next)
            trreads2((sl + 1) % NS, par ^ 1)
            a("s_waitcnt lgkmcnt(4)")
        else:
            a("s_waitcnt lgkmcnt(0)")
        for nu in range(2):
            for t in range(2):
                wf = WFB + 8 * par + 4 * nu
                df = DF[sl] + 4 * t
                if g1:
                    acc = ACC[nu][t]
                    A_, B_ = wf, df
                else:
                    acc = ACC[t][nu]
                    A_, B_ = df, wf
                a("v_mfma_f32_32x32x16_bf16 v[%d:%d], v[%d:%d], v[%d:%d], v[%d:%d]" % (acc, acc + 15, A_, A_ + 3, B_, B_ + 3, acc, acc + 15))
        if do_issue:
            issue(sl)

    def trreads2(sl, par):
        if "wreg" in X:
            return
        for nu in range(2):
            for h in range(2):
                r = WFB + 8 * par + 4 * nu + 2 * h
                a("ds_read_b64_tr_b16 v[%d:%d], v%d offset:%d" % (r, r + 1, 12 + nu, sl * 2048 + h * 512))

    assert NS % 2 == 0
    for r in range(16, 80):
        a("v_mov_b32 v%d, 0" % r)
    NL = (S - NS) // NS
    a("s_mov_b32 s50, %d" % NL)
    a("s_waitcnt vmcnt(%d)" % (4 * (NS - 1) + NX))
    trreads2(0, 0)
    a.lab("L_g%d_loop" % which)
    for k in range(NS):
        stage(k, k, k & 1, True, 4 * (NS - 2))
    a("s_sub_u32 s50, s50, 1")
    a("s_cmp_lg_u32 s50, 0")
    a("s_cbranch_scc1 L_g%d_loop" % which)
    for st in range(NL * NS, S):
        k = st % NS
        iss = st + NS < S
        later = min(S - 1, st + NS - 1) - (st + 1)
        stage(st, k, st & 1, iss, (4 * later) if st + 1 < S else None)
    stamp(a)
    F = 80
    a("s_mov_b32 s27, 0xffff0000")
    if not g1:
        a("v_lshrrev_b32 v9, 3, v0")
        a("v_mul_u32_u24 v9, %d, v9" % TP)
        a("v_and_b32 v10, 7, v0")
        a("v_lshl_add_u32 v9, v10, 4, v9")
        a("v_add_u32 v9, %d, v9" % TBASE)
        a("s_waitcnt vmcnt(0)")
        a("ds_write_b128 v9, v[%d:%d]" % (XR, XR + 3))
        a("ds_write_b128 v9, v[%d:%d] offset:%d" % (XR + 4, XR + 7, 32 * TP))
    a("s_barrier")
    a.nop(4)
    for qd in range(4):
        acc = ACC[qd >> 1][qd & 1]
        a("s_cmp_eq_u32 s3, %d" % qd)
        a("s_cbranch_scc1 L_g%d_own%d" % (which, qd))
        a("s_sub_u32 s28, s3, %d" % (qd + 1))
        a("s_and_b32 s28, s28, 3")
        a("s_add_u32 s28, s28, %d" % (qd * 3))
        a("s_lshl_b32 s28, s28, 12")
        a("v_add_u32 v8, s28, v3")
        for rq in range(4):
            a("ds_write_b128 v8, v[%d:%d] offset:%d" % (acc + 4 * rq, acc + 4 * rq + 3, rq * 1024))
        a("s_branch L_g%d_nx%d" % (which, qd))
        a.lab("L_g%d_own%d" % (which, qd))
        for k in range(8):
            a("v_pk_add_f32 v[%d:%d], v[%d:%d], 0" % (F + 2 * k, F + 2 * k + 1, acc + 2 * k, acc + 2 * k + 1))
        a.lab("L_g%d_nx%d" % (which, qd))
    a("s_mul_i32 s28, s3, %d" % (3 * 4096))
    a("v_add_u32 v8, s28, v3")
    if g1:
        a("s_lshl_b32 s32, s22, 1")
        a("s_add_u32 s32, s32, s30")
        a("s_mul_i32 s32, s32, %d" % (224 * 512))
        a("s_lshl_b32 s33, s21, 12")
        a("s_add_u32 s32, s32, s33")
        a("s_lshl_b32 s33, s29, 11")
        a("s_add_u32 s32, s32, s33")
        a("s_add_u32 s32, s32, 0x%x" % WS_GF)
        a("v_lshlrev_b32 v11, 4, v6")
        a("v_lshl_add_u32 v11, v7, 3, v11")
    else:
        a("v_lshrrev_b32 v9, 4, v2")
        a("v_and_b32 v10, 15, v2")
        a("v_lshrrev_b32 v13, 2, v10")
        a("v_lshl_add_u32 v13, v7, 2, v13")
        a("v_mul_u32_u24 v13, %d, v13" % TP)
        a("v_and_b32 v10, 3, v10")
        a("v_lshl_add_u32 v13, v10, 3, v13")
        a("v_and_b32 v9, 1, v9")
        a("v_lshl_add_u32 v13, v9, 5, v13")
        a("s_mul_i32 s32, s29, %d" % (32 * TP))
        a("s_lshl_b32 s33, s30, 6")
        a("s_add_u32 s32, s32, s33")
        a("s_add_u32 s32, s32, %d" % TBASE)
        a("v_add_u32 v13, s32, v13")
        a("v_lshlrev_b32 v14, 10, v14")
        a("v_lshl_add_u32 v14, v7, 3, v14")
        a("s_lshl_b32 s33, s22, 7")
        a("s_lshl_b32 s34, s29, 6")
        a("s_add_u32 s33, s33, s34")
    a("s_waitcnt lgkmcnt(0)")
    a("s_barrier")
    P = 96
    for rq in range(4):
        for k in range(3):
            a("ds_read_b128 v[%d:%d], v8 offset:%d" % (P + 16 * k + 4 * rq, P + 16 * k + 4 * rq + 3, k * 4096 + rq * 1024))
    if not g1:
        for rq in range(4):
            a("ds_read_b64_tr_b16 v[%d:%d], v13 offset:%d" % (16 + 2 * rq, 17 + 2 * rq, 8 * rq * TP))
        a("v_lshlrev_b32 v%d, 16, v%d" % (XR + 9, XR + 9))
        a("v_sub_f32 v%d, 1.0, v%d" % (XR + 8, XR + 8))
        bf16r(a, XR + 8)
        a("v_mov_b32 v%d, v%d" % (XR + 11, XR + 9))
        a("v_mov_b32 v%d, v%d" % (XR + 10, XR + 9))
        a("v_mov_b32 v%d, v%d" % (XR + 9, XR + 8))
    else:
        a("s_waitcnt vmcnt(0)")
        k1 = -2.0 * 0.7978845608028654 * 1.4426950408889634
        a("v_mov_b32 v16, 0x%x" % f32(k1))
        a("v_mov_b32 v17, 0x%x" % f32(k1))
        a("v_mov_b32 v18, 0x%x" % f32(k1 * 0.044715))
        a("v_mov_b32 v19, 0x%x" % f32(k1 * 0.044715))
        a("v_mov_b32 v20, 1.0")
        a("v_mov_b32 v21, 1.0")
    nrd = 12 + (0 if g1 else 4)

    def pk(op, d, x, y):
        a("v_pk_%s_f32 v[%d:%d], v[%d:%d], v[%d:%d]" % (op, d, d + 1, x, x + 1, y, y + 1))

    def rnd(base, n, tmp):
        for k in range(n // 2):
            a("v_cvt_pk_bf16_f32 v%d, v%d, v%d" % (tmp + k, base + 2 * k, base + 2 * k + 1))
        for k in range(n // 2):
            a("v_lshlrev_b32 v%d, 16, v%d" % (base + 2 * k, tmp + k))
            a("v_and_b32 v%d, s27, v%d" % (base + 2 * k + 1, tmp + k))

    for half in range(2):
        a("s_waitcnt lgkmcnt(%d)" % (nrd - 6 * (half + 1)))
        for k in range(3):
            for e in range(4):
                pk("add", F + 8 * half + 2 * e, F + 8 * half + 2 * e, P + 16 * k + 8 * half + 2 * e)
    TM = 48
    B = 32
    rnd(F, 16, TM)
    if g1:
        for k in range(8):
            a("v_lshlrev_b32 v%d, 16, v%d" % (B + 2 * k, XR + k))
            a("v_and_b32 v%d, s27, v%d" % (B + 2 * k + 1, XR + k))
        for e in range(8):
            pk("add", F + 2 * e, F + 2 * e, B + 2 * e)
        rnd(F, 16, TM)
        for e in range(8):
            pk("mul", B + 2 * e, F + 2 * e, F + 2 * e)
        for e in range(8):
            a("v_pk_fma_f32 v[%d:%d], v[%d:%d], v[18:19], v[16:17]" % (B + 2 * e, B + 2 * e + 1, B + 2 * e, B + 2 * e + 1))
        for e in range(8):
            pk("mul", B + 2 * e, B + 2 * e, F + 2 * e)
        for j in range(16):
            a("v_exp_f32 v%d, v%d" % (B + j, B + j))
        for e in range(8):
            pk("add", B + 2 * e, B + 2 * e, 20)
        for j in range(16):
            a("v_rcp_f32 v%d, v%d" % (B + j, B + j))
        a.nop(1)
        for e in range(8):
            pk("mul", F + 2 * e, F + 2 * e, B + 2 * e)
        for k in range(8):
            a("v_cvt_pk_bf16_f32 v%d, v%d, v%d" % (TM + k, F + 2 * k, F + 2 * k + 1))
        for rq in range(4):
            a("buffer_store_dwordx2 v[%d:%d], v11, s[12:15], s32 offen offset:%d" % (TM + 2 * rq, TM + 2 * rq + 1, 512 * rq))
    else:
        for e in range(8):
            pk("add", F + 2 * e, F + 2 * e, XR + 10)
        rnd(F, 16, TM)
        for e in range(8):
            pk("mul", F + 2 * e, F + 2 * e, XR + 8)
        rnd(F, 16, TM)
        a("s_waitcnt lgkmcnt(0)")
        for k in range(8):
            a("v_lshlrev_b32 v%d, 16, v%d" % (B + 2 * k, 16 + k))
            a("v_and_b32 v%d, s27, v%d" % (B + 2 * k + 1, 16 + k))
        for e in range(8):
            pk("add", F + 2 * e, F + 2 * e, B + 2 * e)
        for k in range(8):
            a("v_cvt_pk_bf16_f32 v%d, v%d, v%d" % (TM + k, F + 2 * k, F + 2 * k + 1))
        for rq in range(4):
            a("buffer_store_dwordx2 v[%d:%d], v14, s[44:47], s33 offen offset:%d" % (TM + 2 * rq, TM + 2 * rq + 1, 16 * rq))
    stamp(a)
    dump_stamps(a, 9)
    trace_end(a, which - (1 if FUSED else 0))
    a("s_endpgm")


def kd(name, vgpr, sgpr=102):
    acc = (vgpr + 3) // 4 * 4
    return """.amdhsa_kernel %s
  .amdhsa_next_free_vgpr %d
  .amdhsa_next_free_sgpr %d
  .amdhsa_accum_offset %d
  .amdhsa_group_segment_fixed_size 0
  .amdhsa_kernarg_size 144
  .amdhsa_user_sgpr_count 2
  .amdhsa_user_sgpr_kernarg_segment_ptr 1
  .amdhsa_system_sgpr_workgroup_id_x 1
.end_amdhsa_kernel
""" % (name, vgpr, sgpr, acc)


def main(out):
    ref = open("cdna_kernels/%s.s.ref" % NAME).read()
    head = []
    for ln in ref.splitlines():
        if ln.startswith("; @launch"):
            break
        if ln.startswith("; Override") or ln.startswith("; grid=ceil"):
            continue
        head.append(ln)
    a = A()
    K1, K2, K3 = "k1_prep_kernel", "k2_gemm1_conv_kernel", "k3_gemm2_kernel"
    if not FUSED:
        head.append("; @launch kernel=%s grid=(%d,1,1) block=(256,1,1) lds=%d" % (K1, 768, K1_LDS))
    head.append("; @launch kernel=%s grid=(%d,1,1) block=(256,1,1) lds=%d" % (K2, 224 + 512, K2_LDS))
    head.append("; @launch kernel=%s grid=(%d,1,1) block=(256,1,1) lds=%d" % (K3, 256, K3_LDS))
    a.L += head
    a.L.append('.amdgcn_target "amdgcn-amd-amdhsa--gfx950"')
    a.L.append(".text")

    def start(k):
        a.L.append(".globl %s" % k)
        a.L.append(".p2align 8")
        a.L.append(".type %s,@function" % k)
        a.lab(k)

    if not FUSED:
        start(K1)
        a("s_cmp_ge_u32 s2, 768")
        a("s_cbranch_scc1 L_k1_exit")
        a("s_cmp_ge_u32 s2, 512")
        a("s_cbranch_scc1 L_k1_prep")
        gen_kgen(a, 0)
        a.lab("L_k1_exit")
        a("s_endpgm")
        a.lab("L_k1_prep")
        gen_prep(a, 512)

    start(K2)
    a("s_cmp_ge_u32 s2, %d" % (224 + 512))
    a("s_cbranch_scc1 L_k2_exit")
    a("s_cmp_lt_u32 s2, 512")
    a("s_cbranch_scc1 L_k2_conv")
    a("s_sub_u32 s2, s2, 512")
    gen_gemm(a, 1)
    a.lab("L_k2_exit")
    a("s_endpgm")
    a.lab("L_k2_conv")
    if FUSED:
        a.cur = "conv"
        trace_begin(a)
        a("s_cmp_ge_u32 s2, 256")
        a("s_cbranch_scc1 L_k2_kgen")
        gen_prep(a, 0)
        a.lab("L_k2_kgen")
        gen_kgen(a, 0)
    gen_conv(a, 0)

    start(K3)
    a("s_cmp_ge_u32 s2, 256")
    a("s_cbranch_scc1 L_k3_exit")
    gen_gemm(a, 2)
    a.lab("L_k3_exit")
    a("s_endpgm")

    a.L.append('.section .rodata,"a"')
    for k, v in ((K1, 144), (K2, 168), (K3, 176))[1 if FUSED else 0:]:
        a.L.append(".p2align 6")
        a.L.append(kd(k, v))
    open(out, "w").write("\n".join(a.L) + "\n")


if __name__ == "__main__":
    main(sys.argv[1] if len(sys.argv) > 1 else "cdna_kernels/%s.s" % NAME)
```

```python
import struct, sys, os
X = os.environ.get("GENX", "")
GX = X
FUSED = "fuse" in X
SC = " sc1" if FUSED else ""
WH = " nt" if "wnt" in X else (" sc1" if "wsc1" in X else "")
DH = " nt" if "dnt" in X else (" sc1" if "dsc1" in X else "")

NAME = "gated_mix__ssm_conv_s4__mixer_token_mlp__prompt"

MB = 1 << 20
WS_HF = 0
WS_UF = 2 * MB
WS_GF = 4 * MB
WS_AF = 6 * MB
WS_GT = 8 * MB
WS_RK = 9 * MB
WS_SIZE = 268435456

NPREP = 64
HILO = True


def f32(x):
    return struct.unpack("<I", struct.pack("<f", x))[0]


class A:
    def __init__(self):
        self.L = []
        self.cur = ""

    def __call__(self, s):
        self.L.append("    " + s)

    def lab(self, s):
        self.L.append(s + ":")

    def nop(self, n):
        while n > 0:
            k = min(n, 16)
            self("s_nop %d" % (k - 1))
            n -= k

    def c(self, s):
        self.L.append("    ; " + s)


STAMPS = [0]
def stamp(a):
    if "stamp" not in X:
        return
    k = STAMPS[0]
    a("s_memtime s[%d:%d]" % (72 + 2 * k, 73 + 2 * k))
    STAMPS[0] += 1


def dump_stamps(a, wg, off=0):
    if "stamp" not in X:
        return
    n = STAMPS[0]
    STAMPS[0] = 0
    a("s_waitcnt vmcnt(0) lgkmcnt(0)")
    a("s_memtime s[%d:%d]" % (72 + 2 * n, 73 + 2 * n))
    n += 1
    a("s_load_dwordx2 s[96:97], s[0:1], 128")
    a("s_waitcnt lgkmcnt(0)")
    a("s_mov_b32 s98, 256")
    a("s_mov_b32 s99, 0x00020000")
    a("s_mov_b64 exec, -1")
    a("v_lshrrev_b32 v1, 6, v0")
    a("s_nop 1")
    a("v_readfirstlane_b32 s95, v1")
    a("s_cmp_lg_u32 s95, 0")
    a("s_cbranch_scc1 L_nostamp%d" % len(a.L))
    lab = "L_nostamp%d" % (len(a.L) - 1)
    a("s_cmp_lg_u32 s2, %d" % wg)
    a("s_cbranch_scc1 %s" % lab)
    a("s_mov_b64 exec, 1")
    a("v_mov_b32 v1, 0")
    for k in range(n):
        a("v_mov_b32 v2, s%d" % (72 + 2 * k))
        a("buffer_store_dword v2, v1, s[96:99], 0 offen offset:%d" % (off + 4 * k))
    a.lab(lab)


def trace_begin(a):
    if "trace" not in X:
        return
    a("s_memrealtime s[88:89]")
    a("s_memtime s[90:91]")
    a("s_mov_b32 s94, s2")
    a("s_mov_b32 s86, 0")
    if a.cur == "g1":
        a("s_add_u32 s94, s94, 512")


def trace_end(a, launch):
    if "trace" not in X:
        return
    a("s_waitcnt vmcnt(0) lgkmcnt(0)")
    a("s_memrealtime s[92:93]")
    if FUSED:
        a("s_mov_b32 s84, s86")
    else:
        a("s_memtime s[84:85]")
    a("s_load_dwordx2 s[96:97], s[0:1], 136")
    a("s_waitcnt lgkmcnt(0)")
    a("s_mov_b32 s98, 0x%x" % WS_SIZE)
    a("s_mov_b32 s99, 0x00020000")
    a("s_mov_b64 exec, -1")
    a("v_lshrrev_b32 v1, 6, v0")
    a("s_nop 1")
    a("v_readfirstlane_b32 s95, v1")
    a("s_cmp_lg_u32 s95, 0")
    a("s_cbranch_scc1 L_notr%d" % len(a.L))
    lab = "L_notr%d" % (len(a.L) - 1)
    a("s_lshl_b32 s94, s94, 4")
    a("s_add_u32 s94, s94, 0x%x" % (64 * MB + launch * 65536))
    a("s_mov_b64 exec, 1")
    a("v_mov_b32 v1, 0")
    a("v_mov_b32 v4, s88")
    a("v_mov_b32 v5, s92")
    if "hwid" in X:
        a("s_getreg_b32 s90, hwreg(HW_REG_HW_ID)")
        a("s_getreg_b32 s84, hwreg(HW_REG_XCC_ID)")
    a("v_mov_b32 v6, s90")
    a("v_mov_b32 v7, s84")
    a("buffer_store_dwordx4 v[4:7], v1, s[96:99], s94 offen")
    a.lab(lab)


def poll_flags(a, tag, sreg=72):
    a("s_cmp_lg_u32 s3, 0")
    a("s_cbranch_scc1 L_pf_done_%s" % tag)
    a("s_load_dwordx2 s[%d:%d], s[0:1], 128" % (sreg, sreg + 1))
    a("v_lshlrev_b32 v72, 2, v2")
    a("s_mov_b32 s%d, 4" % (sreg + 4))
    a("s_mov_b32 s%d, 0x40000" % (sreg + 5))
    a("s_waitcnt lgkmcnt(0)")
    a("s_mov_b32 s%d, 256" % (sreg + 2))
    a("s_mov_b32 s%d, 0x00020000" % (sreg + 3))
    a.lab("L_pf_loop_%s" % tag)
    a("buffer_load_dword v73, v72, s[%d:%d], 0 offen sc1" % (sreg, sreg + 3))
    a("s_waitcnt vmcnt(0)")
    a("v_cmp_ne_u32 vcc, s%d, v73" % (sreg + 4))
    a("s_nop 4")
    a("s_cbranch_vccz L_pf_done_%s" % tag)
    a("s_sleep %d" % (64 if "slow" in X else 4))
    a("s_sub_u32 s%d, s%d, 1" % (sreg + 5, sreg + 5))
    a("s_cmp_lg_u32 s%d, 0" % (sreg + 5))
    a("s_cbranch_scc1 L_pf_loop_%s" % tag)
    a.lab("L_pf_done_%s" % tag)
    if "trace" in X:
        a("s_memrealtime s[90:91]")
        a("s_waitcnt lgkmcnt(0)")


def srd(a, d, base, nbytes, off=0):
    if off:
        a("s_add_u32 s%d, s%d, 0x%x" % (d, base, off))
        a("s_addc_u32 s%d, s%d, 0" % (d + 1, base + 1))
    else:
        a("s_mov_b32 s%d, s%d" % (d, base))
        a("s_mov_b32 s%d, s%d" % (d + 1, base + 1))
    a("s_mov_b32 s%d, 0x%x" % (d + 2, nbytes))
    a("s_mov_b32 s%d, 0x00020000" % (d + 3))


def bf16r(a, v):
    a("v_cvt_pk_bf16_f32 v%d, v%d, v%d" % (v, v, v))
    a("v_lshlrev_b32 v%d, 16, v%d" % (v, v))


def wave_reduce(a, regs):
    assert len(regs) >= 3
    steps = ["quad_perm:[1,0,3,2] row_mask:0xf bank_mask:0xf",
             "quad_perm:[2,3,0,1] row_mask:0xf bank_mask:0xf",
             "row_half_mirror row_mask:0xf bank_mask:0xf",
             "row_mirror row_mask:0xf bank_mask:0xf",
             "row_bcast:15 row_mask:0xa bank_mask:0xf",
             "row_bcast:31 row_mask:0xc bank_mask:0xf"]
    a.nop(2)
    for st in steps:
        for r in regs:
            a("v_add_f32_dpp v%d, v%d, v%d %s" % (r, r, r, st))
    a.nop(1)


RP = 1024 + 64
UTP = 128 + 64
TBP = 528
XT = 0
YT = 41 * TBP
KT = 45056 if FUSED else 82 * TBP
K1_LDS = KT + 2576
DSTEPS = ["quad_perm:[1,0,3,2] row_mask:0xf bank_mask:0xf",
          "quad_perm:[2,3,0,1] row_mask:0xf bank_mask:0xf",
          "row_half_mirror row_mask:0xf bank_mask:0xf",
          "row_mirror row_mask:0xf bank_mask:0xf",
          "row_bcast:15 row_mask:0xa bank_mask:0xf",
          "row_bcast:31 row_mask:0xc bank_mask:0xf"]


def prep_row(R, SR):
    a = A()
    XV, T, M = R + 8, R + 16, R + 24
    GW = 24
    for q in range(4):
        a("v_lshlrev_b32 v%d, 16, v%d" % (XV + 2 * q, R + q))
        a("v_and_b32 v%d, s27, v%d" % (XV + 2 * q + 1, R + q))
    for q in range(4):
        a("v_pk_mul_f32 v[%d:%d], v[%d:%d], v[%d:%d]" % (T + 2 * q, T + 2 * q + 1, XV + 2 * q, XV + 2 * q + 1, GW + 2 * q, GW + 2 * q + 1))
    a("v_pk_add_f32 v[%d:%d], v[%d:%d], v[%d:%d]" % (M, M + 1, XV, XV + 1, XV + 2, XV + 3))
    a("v_pk_add_f32 v[%d:%d], v[%d:%d], v[%d:%d]" % (M + 2, M + 3, XV + 4, XV + 5, XV + 6, XV + 7))
    for q in range(4):
        a("v_cvt_pk_bf16_f32 v%d, v%d, v%d" % (M + 4 + q, T + 2 * q, T + 2 * q + 1))
    a("v_pk_add_f32 v[%d:%d], v[%d:%d], v[%d:%d]" % (M, M + 1, M, M + 1, M + 2, M + 3))
    for q in range(4):
        a("v_lshlrev_b32 v%d, 16, v%d" % (T + 2 * q, M + 4 + q))
        a("v_and_b32 v%d, s27, v%d" % (T + 2 * q + 1, M + 4 + q))
    a("v_add_f32 v%d, v%d, v%d" % (M, M, M + 1))
    a("v_pk_add_f32 v[%d:%d], v[%d:%d], v[%d:%d]" % (M + 2, M + 3, T, T + 1, T + 2, T + 3))
    a("v_pk_add_f32 v[%d:%d], v[%d:%d], v[%d:%d]" % (M + 4, M + 5, T + 4, T + 5, T + 6, T + 7))
    a("v_pk_add_f32 v[%d:%d], v[%d:%d], v[%d:%d]" % (M + 2, M + 3, M + 2, M + 3, M + 4, M + 5))
    a("v_add_f32 v%d, v%d, v%d" % (M + 1, M + 2, M + 3))
    a.nop(1)
    for st in DSTEPS:
        a("v_add_f32_dpp v%d, v%d, v%d %s" % (M, M, M, st))
        a("v_add_f32_dpp v%d, v%d, v%d %s" % (M + 1, M + 1, M + 1, st))
        a.nop(1)
    a("v_readlane_b32 s%d, v%d, 63" % (SR, M))
    a("v_readlane_b32 s%d, v%d, 63" % (SR + 1, M + 1))
    a.nop(2)
    G = M + 10
    a("v_mul_f32 v%d, s%d, v60" % (M + 2, SR))
    a("v_mul_f32 v%d, s%d, v60" % (M + 3, SR))
    a("v_mov_b32 v%d, s%d" % (G, SR + 1))
    for q in range(4):
        a("v_pk_add_f32 v[%d:%d], v[%d:%d], v[%d:%d] neg_lo:[0,1] neg_hi:[0,1]" % (T + 2 * q, T + 2 * q + 1, XV + 2 * q, XV + 2 * q + 1, M + 2, M + 3))
    a("v_pk_mul_f32 v[%d:%d], v[%d:%d], v[%d:%d]" % (M + 4, M + 5, T, T + 1, T, T + 1))
    a("v_pk_mul_f32 v[%d:%d], v[%d:%d], v[%d:%d]" % (M + 6, M + 7, T + 2, T + 3, T + 2, T + 3))
    a("v_pk_fma_f32 v[%d:%d], v[%d:%d], v[%d:%d], v[%d:%d]" % (M + 4, M + 5, T + 4, T + 5, T + 4, T + 5, M + 4, M + 5))
    a("v_pk_fma_f32 v[%d:%d], v[%d:%d], v[%d:%d], v[%d:%d]" % (M + 6, M + 7, T + 6, T + 7, T + 6, T + 7, M + 6, M + 7))
    bf16r(a, G)
    a("v_pk_add_f32 v[%d:%d], v[%d:%d], v[%d:%d]" % (M + 4, M + 5, M + 4, M + 5, M + 6, M + 7))
    a("v_mul_f32 v%d, 0x%x, v%d" % (G, f32(-1.4426950408889634), G))
    a("v_add_f32 v%d, v%d, v%d" % (M + 4, M + 4, M + 5))
    a("v_exp_f32 v%d, v%d" % (G, G))
    bf16r(a, M + 2)
    for k, st in enumerate(DSTEPS):
        a("v_add_f32_dpp v%d, v%d, v%d %s" % (M + 4, M + 4, M + 4, st))
        if k == 0:
            a("v_add_f32 v%d, 1.0, v%d" % (G, G))
            a("v_mov_b32 v%d, v%d" % (M + 3, M + 2))
        elif k == 1:
            a("v_rcp_f32 v%d, v%d" % (G, G))
            a.nop(1)
        else:
            a.nop(2)
    a("v_readlane_b32 s%d, v%d, 63" % (SR + 2, M + 4))
    for q in range(4):
        a("v_pk_add_f32 v[%d:%d], v[%d:%d], v[%d:%d] neg_lo:[0,1] neg_hi:[0,1]" % (XV + 2 * q, XV + 2 * q + 1, XV + 2 * q, XV + 2 * q + 1, M + 2, M + 3))
    a("v_mul_f32 v%d, s%d, v60" % (M + 4, SR + 2))
    for q in range(4):
        a("v_cvt_pk_bf16_f32 v%d, v%d, v%d" % (T + q, XV + 2 * q, XV + 2 * q + 1))
    bf16r(a, M + 4)
    bf16r(a, G)
    a("v_add_f32 v%d, v%d, v61" % (M + 4, M + 4))
    for q in range(4):
        a("v_lshlrev_b32 v%d, 16, v%d" % (XV + 2 * q, T + q))
        a("v_and_b32 v%d, s27, v%d" % (XV + 2 * q + 1, T + q))
    bf16r(a, M + 4)
    a("v_sqrt_f32 v%d, v%d" % (M + 4, M + 4))
    a.nop(1)
    bf16r(a, M + 4)
    a("v_rcp_f32 v%d, v%d" % (M + 4, M + 4))
    a.nop(1)
    a("v_mov_b32 v%d, v%d" % (M + 5, M + 4))
    for q in range(4):
        a("v_pk_mul_f32 v[%d:%d], v[%d:%d], v[%d:%d]" % (XV + 2 * q, XV + 2 * q + 1, XV + 2 * q, XV + 2 * q + 1, M + 4, M + 5))
    for q in range(4):
        a("v_cvt_pk_bf16_f32 v%d, v%d, v%d" % (T + q, XV + 2 * q, XV + 2 * q + 1))
    return a.L, T, G


def gen_prep(a, first_wg):
    a.c("---- prep role: wave handles 2 rows, WG = 8 rows")
    a.cur = "prep"
    if not FUSED:
        trace_begin(a)
    stamp(a)
    if first_wg:
        a("s_sub_u32 s2, s2, %d" % first_wg)
    a("s_load_dwordx2 s[4:5], s[0:1], 0")
    a("s_load_dwordx2 s[6:7], s[0:1], 112")
    a("s_load_dwordx2 s[8:9], s[0:1], 136")
    a("v_lshrrev_b32 v1, 6, v0")
    a("v_and_b32 v2, 63, v0")
    a("v_readfirstlane_b32 s3, v1")
    a("v_lshlrev_b32 v3, 4, v2")
    a("s_lshl_b32 s24, s2, 3")
    a("s_lshl_b32 s25, s3, 1")
    a("s_add_u32 s24, s24, s25")
    a("s_lshl_b32 s25, s24, 10")
    a("s_mov_b32 s27, 0xffff0000")
    a("s_waitcnt lgkmcnt(0)")
    srd(a, 12, 4, 2 * MB)
    srd(a, 16, 6, 1024)
    R0, R1 = 64, 104
    a("buffer_load_dwordx4 v[%d:%d], v3, s[12:15], s25 offen" % (R0, R0 + 3))
    a("buffer_load_dwordx4 v[%d:%d], v3, s[12:15], s25 offen offset:1024" % (R1, R1 + 3))
    a("buffer_load_dwordx4 v[12:15], v3, s[16:19], 0 offen")
    a("s_lshr_b32 s40, s2, 3")
    a("s_and_b32 s41, s2, 7")
    a("s_lshl_b32 s42, s40, 16")
    a("s_lshl_b32 s43, s41, 7")
    a("s_add_u32 s42, s42, s43")
    a("v_lshrrev_b32 v44, 3, v0")
    a("v_and_b32 v45, 7, v0")
    a("v_lshlrev_b32 v43, 10, v44")
    a("v_lshl_add_u32 v43, v45, 4, v43")
    a("buffer_load_dwordx4 v[32:35], v43, s[12:15], s42 offen")
    a("s_add_u32 s43, s42, 32768")
    a("buffer_load_dwordx4 v[36:39], v43, s[12:15], s43 offen")
    a("v_mul_u32_u24 v40, %d, v44" % UTP)
    a("v_lshl_add_u32 v40, v45, 4, v40")
    a("v_and_b32 v44, 15, v2")
    a("v_lshrrev_b32 v41, 2, v44")
    a("s_lshl_b32 s44, s3, 4")
    a("v_add_u32 v41, s44, v41")
    a("v_mul_u32_u24 v41, %d, v41" % UTP)
    a("v_and_b32 v44, 3, v44")
    a("v_lshl_add_u32 v41, v44, 3, v41")
    a("v_lshrrev_b32 v44, 4, v2")
    a("v_lshl_add_u32 v41, v44, 5, v41")
    a("v_lshlrev_b32 v42, 12, v2")
    a("s_lshl_b32 s44, s41, 18")
    a("s_lshl_b32 s45, s40, 7")
    a("s_add_u32 s44, s44, s45")
    a("s_lshl_b32 s45, s3, 5")
    a("s_add_u32 s44, s44, s45")
    a("s_add_u32 s44, s44, 0x%x" % WS_UF)
    srd(a, 20, 8, WS_SIZE)
    a("s_mul_i32 s26, s3, %d" % (2 * RP))
    a("v_add_u32 v4, s26, v3")
    a("v_and_b32 v5, 15, v2")
    a("v_lshrrev_b32 v6, 2, v5")
    a("v_mul_u32_u24 v6, %d, v6" % RP)
    a("v_and_b32 v5, 3, v5")
    a("v_lshl_add_u32 v6, v5, 3, v6")
    a("v_lshrrev_b32 v5, 4, v2")
    a("v_lshl_add_u32 v6, v5, 5, v6")
    a("s_lshl_b32 s26, s3, 8")
    a("v_add_u32 v6, s26, v6")
    a("v_lshrrev_b32 v7, 5, v2")
    a("s_lshl_b32 s26, s3, 2")
    a("v_add_u32 v7, s26, v7")
    a("v_lshlrev_b32 v7, 17, v7")
    a("v_and_b32 v5, 31, v2")
    a("v_lshl_add_u32 v7, v5, 4, v7")
    a("s_lshl_b32 s28, s2, 9")
    a("s_add_u32 s29, s28, %d" % (2 * 131072))
    a("v_mov_b32 v60, 0x%x" % f32(1.0 / 512))
    a("v_mov_b32 v61, 0x%x" % f32(1e-5))
    a("s_lshl_b32 s30, s24, 2")
    a("s_add_u32 s30, s30, 0x%x" % WS_GT)
    a("v_mov_b32 v8, 0")
    a("s_waitcnt vmcnt(2)")
    stamp(a)
    for q in range(4):
        a("v_lshlrev_b32 v%d, 16, v%d" % (24 + 2 * q, 12 + q))
        a("v_and_b32 v%d, s27, v%d" % (25 + 2 * q, 12 + q))
    L0, T0, G0 = prep_row(R0, 32)
    L1, T1, G1 = prep_row(R1, 36)
    for x, y in zip(L0, L1):
        if "s_nop 0" in x:
            continue
        if "s_nop 1" in x:
            a("s_nop 0")
            continue
        a.L.append(x)
        a.L.append(y)
    a("s_waitcnt vmcnt(0)")
    a("ds_write_b128 v40, v[32:35] offset:%d" % (8 * RP))
    a("ds_write_b128 v40, v[36:39] offset:%d" % (8 * RP + 32 * UTP))
    a("ds_write_b128 v4, v[%d:%d]" % (T0, T0 + 3))
    a("ds_write_b128 v4, v[%d:%d] offset:%d" % (T1, T1 + 3, RP))
    GL = 8 * RP + 64 * UTP
    a("s_lshl_b32 s31, s3, 3")
    a("v_mov_b32 v9, s31")
    a("s_mov_b64 exec, 1")
    a("ds_write2_b32 v9, v%d, v%d offset0:%d offset1:%d" % (G0, G1, 0, 1) if False else "v_add_u32 v9, %d, v9" % GL)
    a("ds_write2_b32 v9, v%d, v%d offset0:0 offset1:1" % (G0, G1))
    a("s_mov_b64 exec, -1")
    a("s_waitcnt lgkmcnt(0)")
    a("s_barrier")
    stamp(a)
    for p in range(2):
        a("ds_read_b64_tr_b16 v[%d:%d], v6 offset:%d" % (8 + 4 * p, 9 + 4 * p, 128 * p))
        a("ds_read_b64_tr_b16 v[%d:%d], v6 offset:%d" % (10 + 4 * p, 11 + 4 * p, 4 * RP + 128 * p))
    for p in range(2):
        for h in range(2):
            a("ds_read_b64_tr_b16 v[%d:%d], v41 offset:%d" % (32 + 4 * p + 2 * h, 33 + 4 * p + 2 * h, 8 * RP + (8 * p + 4 * h) * UTP))
    a("s_waitcnt lgkmcnt(6)")
    a("buffer_store_dwordx4 v[8:11], v7, s[20:23], s28 offen" + SC)
    a("s_waitcnt lgkmcnt(4)")
    a("buffer_store_dwordx4 v[12:15], v7, s[20:23], s29 offen" + SC)
    a("v_mul_u32_u24 v42, 144, v2")
    a("s_lshl_b32 s45, s3, 5")
    a("v_add_u32 v42, s45, v42")
    a("s_waitcnt lgkmcnt(0)")
    a("ds_write_b128 v42, v[32:35] offset:%d" % (GL + 64))
    a("ds_write_b128 v42, v[36:39] offset:%d" % (GL + 64 + 16))
    a("v_lshrrev_b32 v44, 3, v0")
    a("v_and_b32 v45, 7, v0")
    a("v_mul_u32_u24 v42, 144, v44")
    a("v_lshl_add_u32 v42, v45, 4, v42")
    a("v_lshlrev_b32 v43, 12, v44")
    a("v_lshl_add_u32 v43, v45, 4, v43")
    a("s_lshl_b32 s44, s41, 18")
    a("s_lshl_b32 s45, s40, 7")
    a("s_add_u32 s44, s44, s45")
    a("s_add_u32 s44, s44, 0x%x" % WS_UF)
    a("s_add_u32 s45, s44, %d" % (32 * 4096))
    a("v_lshlrev_b32 v9, 2, v2")
    a("s_lshl_b32 s30, s2, 5")
    a("s_add_u32 s30, s30, 0x%x" % WS_GT)
    a("s_waitcnt lgkmcnt(0)")
    a("s_barrier")
    a("ds_read_b128 v[32:35], v42 offset:%d" % (GL + 64))
    a("ds_read_b128 v[36:39], v42 offset:%d" % (GL + 64 + 32 * 144))
    a("ds_read_b32 v10, v9 offset:%d" % GL)
    a("s_waitcnt lgkmcnt(2)")
    a("buffer_store_dwordx4 v[32:35], v43, s[20:23], s44 offen" + SC)
    a("s_waitcnt lgkmcnt(1)")
    a("buffer_store_dwordx4 v[36:39], v43, s[20:23], s45 offen" + SC)
    a("s_waitcnt lgkmcnt(0)")
    a("s_cmp_lg_u32 s3, 0")
    a("s_cbranch_scc1 L_prep_nog")
    a("s_mov_b64 exec, 0xff")
    a("buffer_store_dword v10, v9, s[20:23], s30 offen" + SC)
    a("s_mov_b64 exec, -1")
    a.lab("L_prep_nog")
    if FUSED:
        a("s_load_dwordx2 s[40:41], s[0:1], 128")
        a("s_waitcnt vmcnt(0) lgkmcnt(0)")
        a("s_barrier")
        a("s_mov_b32 s42, 256")
        a("s_mov_b32 s43, 0x00020000")
        a("s_cmp_lg_u32 s3, 0")
        a("s_cbranch_scc1 L_prep_noflag")
        a("v_mov_b32 v9, 1")
        a("v_mov_b32 v8, 0")
        a("s_mov_b64 exec, 1")
        a("s_and_b32 s44, s2, 63")
        a("s_lshl_b32 s44, s44, 2")
        a("buffer_atomic_add v9, v8, s[40:43], s44 offen sc1")
        a("s_mov_b64 exec, -1")
        a.lab("L_prep_noflag")
        if "trace" in X:
            a("s_memrealtime s[86:87]")
            a("s_waitcnt lgkmcnt(0)")
        return
    stamp(a)
    dump_stamps(a, 5)
    trace_end(a, 0)
    a("s_endpgm")


def gen_utr(a, first_wg):
    a.c("---- U transposer role: tile 64 s x 64 d -> UT[d][s]")
    a.cur = "utr"
    trace_begin(a)
    a("s_sub_u32 s2, s2, %d" % first_wg)
    a("s_load_dwordx2 s[4:5], s[0:1], 0")
    a("s_load_dwordx2 s[8:9], s[0:1], 136")
    a("v_lshrrev_b32 v1, 6, v0")
    a("v_and_b32 v2, 63, v0")
    a("v_readfirstlane_b32 s3, v1")
    a("s_lshr_b32 s20, s2, 3")
    a("s_and_b32 s21, s2, 7")
    a("s_lshl_b32 s22, s20, 16")
    a("s_lshl_b32 s23, s21, 7")
    a("s_add_u32 s22, s22, s23")
    a("v_lshrrev_b32 v3, 3, v0")
    a("v_and_b32 v4, 7, v0")
    a("v_lshlrev_b32 v5, 10, v3")
    a("v_lshl_add_u32 v5, v4, 4, v5")
    a("v_mul_u32_u24 v6, %d, v3" % UTP)
    a("v_lshl_add_u32 v6, v4, 4, v6")
    a("s_waitcnt lgkmcnt(0)")
    srd(a, 12, 4, 2 * MB)
    a("buffer_load_dwordx4 v[8:11], v5, s[12:15], s22 offen")
    a("s_add_u32 s23, s22, 32768")
    a("buffer_load_dwordx4 v[12:15], v5, s[12:15], s23 offen")
    srd(a, 16, 8, WS_SIZE)
    a("v_and_b32 v3, 15, v2")
    a("v_lshrrev_b32 v4, 2, v3")
    a("s_lshl_b32 s24, s3, 4")
    a("v_add_u32 v4, s24, v4")
    a("v_mul_u32_u24 v4, %d, v4" % UTP)
    a("v_and_b32 v3, 3, v3")
    a("v_lshl_add_u32 v4, v3, 3, v4")
    a("v_lshrrev_b32 v3, 4, v2")
    a("v_lshl_add_u32 v4, v3, 5, v4")
    a("v_lshlrev_b32 v7, 12, v2")
    a("s_lshl_b32 s24, s21, 18")
    a("s_lshl_b32 s25, s20, 7")
    a("s_add_u32 s24, s24, s25")
    a("s_lshl_b32 s25, s3, 5")
    a("s_add_u32 s24, s24, s25")
    a("s_add_u32 s24, s24, 0x%x" % WS_UF)
    a("s_waitcnt vmcnt(1)")
    a("ds_write_b128 v6, v[8:11]")
    a("s_waitcnt vmcnt(0)")
    a("ds_write_b128 v6, v[12:15] offset:%d" % (32 * UTP))
    a("s_waitcnt lgkmcnt(0)")
    a("s_barrier")
    for p in range(2):
        for h in range(2):
            a("ds_read_b64_tr_b16 v[%d:%d], v4 offset:%d" % (8 + 4 * p + 2 * h, 9 + 4 * p + 2 * h, (8 * p + 4 * h) * UTP))
    a("s_waitcnt lgkmcnt(2)")
    a("buffer_store_dwordx4 v[8:11], v7, s[16:19], s24 offen")
    a("s_waitcnt lgkmcnt(0)")
    a("buffer_store_dwordx4 v[12:15], v7, s[16:19], s24 offen offset:16")
    trace_end(a, 0)
    a("s_endpgm")


def gen_kgen(a, first_wg):
    a.c("---- kgen role: one channel per workgroup")
    a.cur = "kgen"
    if not FUSED:
        trace_begin(a)
    stamp(a)
    if first_wg:
        a("s_sub_u32 s2, s2, %d" % first_wg)
    a("s_load_dwordx4 s[28:31], s[0:1], 8")
    a("s_load_dwordx4 s[32:35], s[0:1], 24")
    a("s_load_dwordx4 s[36:39], s[0:1], 40")
    a("s_load_dwordx2 s[40:41], s[0:1], 56")
    a("s_load_dwordx2 s[4:5], s[0:1], 136")
    a("s_load_dwordx2 s[6:7], s[0:1], 80")
    a("v_lshrrev_b32 v1, 6, v0")
    a("v_and_b32 v2, 63, v0")
    a("v_readfirstlane_b32 s3, v1")
    a("v_and_b32 v3, 127, v0")
    a("v_lshlrev_b32 v4, 1, v3")
    a("s_lshl_b32 s20, s2, 8")
    a("s_lshl_b32 s25, s2, 1")
    a("v_mov_b32 v6, 0")
    a("s_waitcnt lgkmcnt(0)")
    for k in range(6):
        srd(a, 44 + 4 * k, 28 + 2 * k, 131072)
        a("buffer_load_ushort v%d, v4, s[%d:%d], s20 offen" % (10 + k, 44 + 4 * k, 47 + 4 * k))
    srd(a, 12, 40, 1024)
    a("buffer_load_ushort v16, v6, s[12:15], s25 offen")
    if "pf1" in X:
        srd(a, 68, 6, 2048 * 1792 * 2)
        a("s_lshl_b32 s26, s2, 14")
        a("v_lshlrev_b32 v5, 4, v0")
        for k in range(4):
            a("buffer_load_dwordx4 v[%d:%d], v5, s[68:71], s26 offen" % (128 + 4 * k, 131 + 4 * k))
            if k < 3:
                a("s_add_u32 s26, s26, 4096")
    srd(a, 8, 4, WS_SIZE)
    a("s_cmp_ge_u32 s3, 2")
    a("s_cselect_b32 s26, %d, %d" % (XT, YT))
    a("s_cselect_b32 s27, 0x%x, 0x%x" % (f32(16.0), f32(1.0)))
    a("s_cselect_b32 s36, 0x%x, 0x%x" % (f32(0.15915494309189535), f32(-0.15915494309189535)))
    a("v_lshlrev_b32 v8, 2, v3")
    a("v_add_u32 v8, s26, v8")
    a("v_lshlrev_b32 v28, 3, v0")
    a("v_sub_u32 v28, 2047, v28")
    a("s_mov_b32 s28, 0xffff")
    a("s_mov_b32 s29, %d" % (0x4300 - 128))
    for j in range(8):
        a("v_subrev_u32 v%d, %d, v28" % (48 + j, j))
        a("v_cvt_f32_u32 v%d, v%d" % (56 + j, 48 + j))
    for j in range(0, 8, 2):
        a("v_cvt_pk_bf16_f32 v%d, v%d, v%d" % (56 + j, 56 + j, 57 + j))
    for j in range(0, 8, 2):
        a("v_lshrrev_b32 v%d, 16, v%d" % (57 + j, 56 + j))
        a("v_and_b32 v%d, s28, v%d" % (56 + j, 56 + j))
    for j in range(8):
        a("v_subrev_u32 v%d, s29, v%d" % (56 + j, 56 + j))
    for j in range(8):
        a("v_cmp_gt_u32 vcc, 128, v%d" % (48 + j))
        a.nop(2)
        a("v_cndmask_b32 v%d, v%d, v%d, vcc" % (56 + j, 56 + j, 48 + j))
        a("v_lshlrev_b32 v%d, 2, v%d" % (56 + j, 56 + j))
    a("v_and_b32 v9, 15, v2")
    a("v_lshrrev_b32 v17, 4, v2")
    a("s_lshl_b32 s26, s3, 3")
    a("s_add_u32 s26, s26, 8")
    a("s_cmp_eq_u32 s3, 0")
    a("s_cselect_b32 s26, 0, s26")
    a("v_add_u32 v18, s26, v9")
    a("v_mul_u32_u24 v18, %d, v18" % TBP)
    a("v_lshl_add_u32 v18, v17, 4, v18")
    a("v_lshlrev_b32 v19, s3, v9")
    a("v_or_b32 v29, 8, v19")
    a("v_ffbh_u32 v29, v29")
    a("v_sub_u32 v29, 28, v29")
    a("v_lshrrev_b32 v19, v29, v19")
    a("v_lshl_add_u32 v19, v29, 3, v19")
    a("v_mul_u32_u24 v19, %d, v19" % TBP)
    a("v_lshl_add_u32 v19, v17, 4, v19")
    a("s_waitcnt vmcnt(%d)" % (4 if "pf1" in X else 0))
    for k in range(7):
        a("v_lshlrev_b32 v%d, 16, v%d" % (10 + k, 10 + k))
    a("v_mul_f32 v16, 0x%x, v16" % f32(1.4426950408889634))
    a("v_exp_f32 v16, v16")
    a.nop(1)
    bf16r(a, 16)
    a("v_mul_f32 v20, v16, v10")
    a("v_mul_f32 v21, v16, v11")
    a("v_mul_f32 v12, v16, v12")
    a("v_mul_f32 v13, v16, v13")
    a("v_mul_f32 v20, 0x%x, v20" % f32(1.4426950408889634))
    a("v_mul_f32 v21, s36, v21")
    a("v_mul_f32 v20, s27, v20")
    a("v_mul_f32 v21, s27, v21")
    a("v_mul_f32 v22, v14, v12")
    a("v_mul_f32 v23, v14, v13")
    a("v_fract_f32 v21, v21")
    a("v_exp_f32 v20, v20")
    a("v_fma_f32 v22, -v15, v13, v22")
    a("v_fma_f32 v23, v15, v12, v23")
    a("v_cos_f32 v24, v21")
    a("v_sin_f32 v25, v21")
    a("v_mov_b32 v26, 1.0")
    a("v_mov_b32 v27, 0")
    a("v_mul_f32 v24, v20, v24")
    a("v_mul_f32 v25, v20, v25")
    a("s_cmp_ge_u32 s3, 2")
    a("s_cbranch_scc0 L_kg_y")
    a("v_mov_b32 v26, v22")
    a("v_mov_b32 v27, v23")
    a.lab("L_kg_y")

    def cmul(dst, x, w):
        a("v_pk_mul_f32 v[30:31], v[%d:%d], v[%d:%d] op_sel:[0,0] op_sel_hi:[1,0]" % (x, x + 1, w, w + 1))
        a("v_pk_fma_f32 v[%d:%d], v[%d:%d], v[%d:%d], v[30:31] op_sel:[1,1,0] op_sel_hi:[0,1,1] neg_lo:[1,0,0]" %
          (dst, dst + 1, x, x + 1, w, w + 1))

    W = [24, 32, 34, 36]
    for k in range(1, 4):
        cmul(W[k], W[k - 1], W[k - 1])
    for row in range(41):
        a("v_cvt_pk_bf16_f32 v%d, v26, v27" % (40 + (row & 3)))
        if row < 40:
            cmul(26, 26, W[0] if row < 16 else (W[1] if row < 24 else (W[2] if row < 32 else W[3])))
        if row & 1:
            a("ds_write2_b32 v8, v%d, v%d offset0:%d offset1:%d" % (40 + ((row - 1) & 3), 40 + (row & 3), 0, TBP // 4))
            if row < 40:
                a("v_add_u32 v8, %d, v8" % (2 * TBP))
        elif row == 40:
            a("ds_write_b32 v8, v%d" % (40 + (row & 3)))
    a("s_waitcnt lgkmcnt(0)")
    a("s_barrier")
    stamp(a)
    for kap in range(8):
        a("ds_read_b128 v[%d:%d], v18 offset:%d" % (64 + 8 * kap, 67 + 8 * kap, XT + 64 * kap))
        a("ds_read_b128 v[%d:%d], v19 offset:%d" % (68 + 8 * kap, 71 + 8 * kap, YT + 64 * kap))
    a("s_lshl_b32 s26, s3, 7")
    a("s_add_u32 s26, s26, 128")
    a("s_cmp_eq_u32 s3, 0")
    a("s_cselect_b32 s26, 0, s26")
    a("s_mov_b32 s27, 128")
    a("s_cselect_b32 s27, 256, s27")
    a("s_cmp_eq_u32 s3, 3")
    a("s_cselect_b32 s27, 129, s27")
    a("v_lshl_add_u32 v13, v17, 6, v9")
    a("v_add_u32 v15, s26, v13")
    a("v_lshlrev_b32 v15, 2, v15")
    for kap in range(8):
        a("s_waitcnt lgkmcnt(%d)" % (14 - 2 * kap))
        c0 = "0" if kap == 0 else "v[44:47]"
        a("v_mfma_f32_16x16x32_bf16 v[44:47], v[%d:%d], v[%d:%d], %s" % (64 + 8 * kap, 67 + 8 * kap, 68 + 8 * kap, 71 + 8 * kap, c0))
    a("s_lshl_b32 s22, s2, 12")
    a("s_add_u32 s22, s22, 0x%x" % WS_RK)
    a("v_lshlrev_b32 v3, 4, v0")
    a.nop(5)
    for reg in range(4):
        a("v_add_u32 v14, %d, v13" % (16 * reg))
        a("v_cmp_gt_u32 vcc, s27, v14")
        a("s_and_saveexec_b64 s[30:31], vcc")
        a("ds_write_b32 v15, v%d offset:%d" % (44 + reg, KT + 64 * reg))
        a("s_mov_b64 exec, s[30:31]")
    if FUSED:
        poll_flags(a, "cv")
    a("s_waitcnt lgkmcnt(0)")
    a("s_barrier")
    stamp(a)
    if FUSED:
        return
    for j in range(8):
        a("ds_read_b32 v%d, v%d offset:%d" % (64 + j, 56 + j, KT))
    a("s_waitcnt lgkmcnt(0)")
    for q in range(4):
        a("v_cvt_pk_bf16_f32 v%d, v%d, v%d" % (8 + q, 64 + 2 * q, 65 + 2 * q))
    a("buffer_store_dwordx4 v[8:11], v3, s[8:11], s22 offen")
    stamp(a)
    dump_stamps(a, 77, 64)
    trace_end(a, 0)
    a("s_endpgm")


CP = 4416
UB = 8 * CP
UP = 144
K2_LDS = 49152


def gen_conv(a, first_wg):
    a.c("---- conv role: one channel per workgroup")
    a.cur = "conv"
    if not FUSED:
        trace_begin(a)
    stamp(a)
    if FUSED:
        for j in range(8):
            a("ds_read_b32 v%d, v%d offset:%d" % (64 + j, 56 + j, KT))
    if first_wg:
        a("s_sub_u32 s2, s2, %d" % first_wg)
    a("s_load_dwordx2 s[4:5], s[0:1], 136")
    a("s_load_dwordx2 s[6:7], s[0:1], 96")
    a("s_load_dwordx2 s[42:43], s[0:1], 64")
    a("v_lshrrev_b32 v1, 6, v0")
    a("v_and_b32 v2, 63, v0")
    a("v_readfirstlane_b32 s3, v1")
    a("s_lshl_b32 s25, s2, 1")
    a("v_mov_b32 v6, 0")
    a("v_lshlrev_b32 v3, 4, v0")
    a("s_lshl_b32 s21, s2, 12")
    a("s_add_u32 s20, s21, 0x%x" % WS_RK)
    a("s_add_u32 s22, s21, 0x%x" % WS_UF)
    a("s_add_u32 s23, s21, 0x%x" % WS_AF)
    a("s_waitcnt lgkmcnt(0)")
    if not FUSED:
        a("s_add_u32 s12, s4, s20")
        a("s_addc_u32 s13, s5, 0")
        a("s_mov_b32 s14, 4096")
        a("s_mov_b32 s15, 0x00020000")
        a("buffer_load_dwordx4 v[8:11], v3, s[12:15], 0 offen")
        a("buffer_load_dwordx4 v[12:15], v3, s[12:15], 0 offen offset:16")
    else:
        for q in range(4):
            a("v_cvt_pk_bf16_f32 v%d, v%d, v%d" % (8 + q, 64 + 2 * q, 65 + 2 * q))
        a("ds_write_b128 v3, v[8:11]")
    srd(a, 8, 4, WS_SIZE)
    a("buffer_load_dwordx4 v[152:155], v3, s[8:11], s22 offen")
    srd(a, 16, 42, 1024)
    a("v_lshlrev_b32 v7, 5, v0")
    a("s_mov_b32 s24, 0x%x" % WS_GT)
    a("buffer_load_dwordx4 v[156:159], v7, s[8:11], s24 offen")
    a("buffer_load_dwordx4 v[160:163], v7, s[8:11], s24 offen offset:16")
    a("buffer_load_ushort v164, v6, s[16:19], s25 offen")
    NPF = 0
    if "pf2" in X:
        NPF = 4
        srd(a, 68, 6, 2048 * 1792 * 2)
        a("s_lshl_b32 s26, s2, 14")
        for k in range(4):
            a("buffer_load_dwordx4 v[%d:%d], v3, s[68:71], s26 offen" % (128 + 4 * k, 131 + 4 * k))
            if k < 3:
                a("s_add_u32 s26, s26, 4096")
    for k in range(4):
        a("v_mov_b32 v%d, 0" % (48 + k))
    a("ds_write_b128 v3, v[48:51] offset:%d" % UB)
    a("v_lshrrev_b32 v4, 3, v2")
    a("v_mul_u32_u24 v4, %d, v4" % CP)
    a("v_and_b32 v7, 7, v2")
    a("v_lshl_add_u32 v4, v7, 4, v4")
    a("v_add_u32 v4, 4096, v4")
    a("v_add_u32 v5, %d, v3" % (UB + 4096))
    a("s_cmp_eq_u32 s3, 0")
    a("s_cbranch_scc1 L_cv_z0")
    a("s_cmp_eq_u32 s3, 1")
    a("s_cbranch_scc0 L_cv_z1")
    a("ds_write_b128 v4, v[48:51]")
    a("s_branch L_cv_z1")
    a.lab("L_cv_z0")
    a("s_mov_b64 exec, 0xffffffff")
    a("ds_write_b128 v5, v[48:51]")
    a("s_mov_b64 exec, -1")
    a.lab("L_cv_z1")
    a("v_lshrrev_b32 v6, 3, v0")
    a("v_mul_u32_u24 v6, %d, v6" % UP)
    a("v_and_b32 v7, 7, v0")
    a("v_lshl_add_u32 v6, v7, 4, v6")
    a("v_and_b32 v20, 31, v2")
    a("v_lshrrev_b32 v21, 5, v2")
    a("v_and_b32 v22, 7, v20")
    a("v_sub_u32 v22, 7, v22")
    a("v_mul_u32_u24 v22, %d, v22" % CP)
    a("v_lshrrev_b32 v23, 3, v20")
    a("v_sub_u32 v23, v21, v23")
    a("v_lshl_add_u32 v22, v23, 4, v22")
    a("s_lshl_b32 s28, s3, 10")
    a("s_sub_u32 s28, %d, s28" % (16 * 255 - 128 * 7 - 64))
    a("v_add_u32 v18, s28, v22")
    a("v_mul_u32_u24 v23, %d, v20" % UP)
    a("v_lshl_add_u32 v23, v21, 4, v23")
    a("s_mul_i32 s29, s3, %d" % (8 * UP))
    a("s_sub_u32 s29, %d, s29" % (UB + UP * 25))
    a("v_add_u32 v19, s29, v23")
    if FUSED:
        a("s_waitcnt lgkmcnt(0)")
        a("s_barrier")
        a("ds_read_b128 v[12:15], v3 offset:16")
        a("s_waitcnt lgkmcnt(0)")
    else:
        a("s_waitcnt vmcnt(%d)" % (4 + NPF))
    for k in range(1, 8):
        a("v_mov_b32 v%d, v%d" % (65 + k, 8 + k))
    for k in range(7):
        a("v_alignbit_b32 v%d, v%d, v%d, 16" % (74 + k, 9 + k, 8 + k))
    for k in range(1, 7):
        a("v_alignbit_b32 v%d, v%d, v%d, 16" % (83 + k, 9 + k, 8 + k))
    src = {0: 8, 2: 66, 4: 10, 6: 68, 1: 74, 3: 84, 5: 76, 7: 86}
    for s in range(1 if FUSED else 0, 8):
        a("ds_write_b128 v3, v[%d:%d] offset:%d" % (src[s], src[s] + 3, s * CP))
    a("s_waitcnt vmcnt(%d)" % (3 + NPF))
    a("ds_write_b128 v6, v[152:155] offset:%d" % (UB + 32 * UP))
    a("s_waitcnt lgkmcnt(0)")
    a("s_barrier")
    stamp(a)
    ACC = [64, 80]
    FA = [24 + 4 * k for k in range(10)]
    FB = [[96 + 4 * k for k in range(4)], [112 + 4 * k for k in range(4)]]
    free = list(range(10))
    cur = {}

    def loadA(dl, rel):
        sl = free.pop(0)
        a("ds_read_b128 v[%d:%d], v18 offset:%d" % (FA[sl], FA[sl] + 3, 128 * (7 - dl) + 64 - 2 * rel))
        return sl

    def loadB(dl):
        for k in range(4):
            a("ds_read_b128 v[%d:%d], v19 offset:%d" % (FB[dl & 1][k], FB[dl & 1][k] + 3, UP * (7 - dl) + 32 * k))

    for rel in (-48, -32, -16, 0, 16, 32):
        cur[rel] = loadA(0, rel)
    loadB(0)
    for dl in range(8):
        nxt = {}
        if dl < 7:
            nxt[-48] = cur[16]
            nxt[-32] = cur[32]
            for rel in (-16, 0, 16, 32):
                nxt[rel] = loadA(dl + 1, rel)
            loadB(dl + 1)
            a("s_waitcnt lgkmcnt(8)")
        else:
            a("s_waitcnt lgkmcnt(0)")
        for k in range(4):
            for beta in range(2):
                rel = 32 * beta - 16 * k
                c = "0" if (dl == 0 and k == 0) else "v[%d:%d]" % (ACC[beta], ACC[beta] + 15)
                a("v_mfma_f32_32x32x16_bf16 v[%d:%d], v[%d:%d], v[%d:%d], %s" %
                  (ACC[beta], ACC[beta] + 15, FA[cur[rel]], FA[cur[rel]] + 3, FB[dl & 1][k], FB[dl & 1][k] + 3, c))
        for rel in (-48, -32, -16, 0):
            free.append(cur[rel])
        cur = nxt
    a("v_mul_u32_u24 v24, 272, v20")
    a("v_lshl_add_u32 v24, v21, 4, v24")
    a("s_mul_i32 s28, s3, 8704")
    a("v_add_u32 v24, s28, v24")
    a("v_lshrrev_b32 v25, 3, v0")
    a("v_mul_u32_u24 v25, 272, v25")
    a("v_and_b32 v26, 7, v0")
    a("v_lshl_add_u32 v25, v26, 5, v25")
    a("s_mov_b32 s27, 0xffff0000")
    a("s_waitcnt vmcnt(0)")
    a("s_barrier")
    if "cv3" in X:
        trace_end(a, 1)
        a("s_endpgm")
    stamp(a)
    a.nop(4)
    for beta in range(2):
        for rq in range(4):
            a("ds_write_b128 v24, v[%d:%d] offset:%d" % (ACC[beta] + 4 * rq, ACC[beta] + 4 * rq + 3, (32 * beta + 8 * rq) * 4))
    a("v_lshlrev_b32 v164, 16, v164")
    a("v_mov_b32 v165, v164")
    for q in range(4):
        a("v_lshlrev_b32 v%d, 16, v%d" % (128 + 2 * q, 152 + q))
        a("v_and_b32 v%d, s27, v%d" % (129 + 2 * q, 152 + q))
    for q in range(4):
        a("v_pk_mul_f32 v[%d:%d], v[%d:%d], v[164:165]" % (128 + 2 * q, 129 + 2 * q, 128 + 2 * q, 129 + 2 * q))
    for q in range(4):
        a("v_cvt_pk_bf16_f32 v%d, v%d, v%d" % (136 + q, 128 + 2 * q, 129 + 2 * q))
    for q in range(4):
        a("v_lshlrev_b32 v%d, 16, v%d" % (128 + 2 * q, 136 + q))
        a("v_and_b32 v%d, s27, v%d" % (129 + 2 * q, 136 + q))
    a("s_waitcnt lgkmcnt(0)")
    a("s_barrier")
    for w in range(4):
        a("ds_read_b128 v[%d:%d], v25 offset:%d" % (32 + 8 * w, 35 + 8 * w, w * 8704))
        a("ds_read_b128 v[%d:%d], v25 offset:%d" % (36 + 8 * w, 39 + 8 * w, w * 8704 + 16))
    a("s_waitcnt lgkmcnt(4)")
    for q in range(4):
        a("v_pk_add_f32 v[%d:%d], v[%d:%d], v[%d:%d]" % (32 + 2 * q, 33 + 2 * q, 32 + 2 * q, 33 + 2 * q, 40 + 2 * q, 41 + 2 * q))
    a("s_waitcnt lgkmcnt(0)")
    for q in range(4):
        a("v_pk_add_f32 v[%d:%d], v[%d:%d], v[%d:%d]" % (48 + 2 * q, 49 + 2 * q, 48 + 2 * q, 49 + 2 * q, 56 + 2 * q, 57 + 2 * q))
    for q in range(4):
        a("v_pk_add_f32 v[%d:%d], v[%d:%d], v[%d:%d]" % (32 + 2 * q, 33 + 2 * q, 32 + 2 * q, 33 + 2 * q, 48 + 2 * q, 49 + 2 * q))
    for q in range(4):
        a("v_cvt_pk_bf16_f32 v%d, v%d, v%d" % (72 + q, 32 + 2 * q, 33 + 2 * q))
    for q in range(4):
        a("v_lshlrev_b32 v%d, 16, v%d" % (32 + 2 * q, 72 + q))
        a("v_and_b32 v%d, s27, v%d" % (33 + 2 * q, 72 + q))
    for q in range(4):
        a("v_pk_add_f32 v[%d:%d], v[%d:%d], v[%d:%d]" % (32 + 2 * q, 33 + 2 * q, 32 + 2 * q, 33 + 2 * q, 128 + 2 * q, 129 + 2 * q))
    for q in range(4):
        a("v_cvt_pk_bf16_f32 v%d, v%d, v%d" % (72 + q, 32 + 2 * q, 33 + 2 * q))
    for q in range(4):
        a("v_lshlrev_b32 v%d, 16, v%d" % (32 + 2 * q, 72 + q))
        a("v_and_b32 v%d, s27, v%d" % (33 + 2 * q, 72 + q))
    for q in range(4):
        a("v_pk_mul_f32 v[%d:%d], v[%d:%d], v[%d:%d]" % (32 + 2 * q, 33 + 2 * q, 32 + 2 * q, 33 + 2 * q, 156 + 2 * q, 157 + 2 * q))
    for q in range(4):
        a("v_cvt_pk_bf16_f32 v%d, v%d, v%d" % (72 + q, 32 + 2 * q, 33 + 2 * q))
    a("buffer_store_dwordx4 v[72:75], v3, s[8:11], s23 offen")
    stamp(a)
    dump_stamps(a, 77, 64)
    trace_end(a, 0 if FUSED else 1)
    a("s_endpgm")


TP = 144
RED = 49152
K3_LDS = 98304 + 64 * TP


def gen_gemm(a, which):
    g1 = (which == 1)
    NOCT = 256 if g1 else 224
    S = 32 if g1 else 28
    NS = 6 if g1 else 8
    for tok in X.split(","):
        if tok.startswith("ns%d=" % which):
            NS = int(tok[4:])
    PW = 3584 if g1 else 4096
    WOFF = 80 if g1 else 96
    WBYTES = 2048 * 1792 * 2
    DOFF = WS_HF if g1 else WS_GF
    TPITCH = NOCT * 512
    NQ = 28 if g1 else 32
    TBASE = 98304
    a.c("---- gemm%d role" % which)
    a.cur = "g%d" % which
    trace_begin(a)
    stamp(a)
    a("s_load_dwordx2 s[4:5], s[0:1], %d" % WOFF)
    a("s_load_dwordx2 s[6:7], s[0:1], 136")
    a("s_load_dwordx2 s[36:37], s[0:1], %d" % (88 if g1 else 104))
    if not g1:
        a("s_load_dwordx2 s[38:39], s[0:1], 120")
    a("v_lshrrev_b32 v1, 6, v0")
    a("v_and_b32 v2, 63, v0")
    a("v_readfirstlane_b32 s3, v1")
    a("s_and_b32 s20, s2, 7")
    a("s_lshr_b32 s21, s2, 3")
    a("s_mul_i32 s20, s20, %d" % NQ)
    a("s_add_u32 s20, s20, s21")
    a("s_lshr_b32 s21, s20, 3")
    a("s_and_b32 s22, s20, 7")
    a("s_mul_i32 s23, s22, %d" % (2 * TPITCH))
    a("s_mul_i32 s24, s3, %d" % (S * 1024))
    a("s_add_u32 s23, s23, s24")
    a("s_add_u32 s23, s23, 0x%x" % DOFF)
    a("v_lshlrev_b32 v3, 4, v2")
    a("v_add_u32 v4, %d, v3" % TPITCH)
    a("v_lshrrev_b32 v5, 3, v2")
    a("v_and_b32 v6, 7, v2")
    a("v_lshlrev_b32 v7, 1, v5")
    a("v_and_b32 v7, 4, v7")
    a("v_xor_b32 v6, v6, v7")
    a("v_mul_u32_u24 v5, %d, v5" % PW)
    a("v_lshl_add_u32 v5, v6, 4, v5")
    a("s_lshl_b32 s24, s21, 7")
    a("v_add_u32 v5, s24, v5")
    a("s_mul_i32 s25, s3, %d" % (S * 16 * PW))
    a("s_mul_i32 s26, s3, %d" % (NS * 2048))
    a("s_waitcnt lgkmcnt(0)")
    srd(a, 8, 4, WBYTES)
    srd(a, 12, 6, WS_SIZE)
    ACC = [[16, 32], [48, 64]]
    DF = [80 + 8 * k for k in range(NS)]
    WFB = 80 + 8 * NS
    XR = WFB + 16

    a("s_and_b32 s48, s21, 3")
    a("s_lshl2_add_u32 s48, s22, s48")
    if "norot" in X:
        a("s_mov_b32 s48, 0")
    a("s_sub_u32 s49, s48, %d" % S)
    a("s_cmp_ge_u32 s48, %d" % S)
    a("s_cselect_b32 s48, s49, s48")

    def issue(st):
        sl = st % NS
        a("s_mul_i32 s27, s48, %d" % (16 * PW))
        a("s_add_u32 m0, s26, %d" % (sl * 2048))
        a("s_add_u32 s27, s27, s25")
        if "wreg" in X:
            a("buffer_load_dwordx4 v[%d:%d], v5, s[8:11], s27 offen" % (WFB + 8 * (st & 1), WFB + 8 * (st & 1) + 3))
        else:
            a("buffer_load_dwordx4 v5, s[8:11], s27 offen lds" + WH)
        a("s_add_u32 m0, s26, %d" % (sl * 2048 + 1024))
        a("s_add_u32 s27, s27, %d" % (8 * PW))
        a("s_lshl_b32 s28, s48, 10")
        if "wreg" in X:
            a("buffer_load_dwordx4 v[%d:%d], v5, s[8:11], s27 offen" % (WFB + 8 * (st & 1) + 4, WFB + 8 * (st & 1) + 7))
        else:
            a("buffer_load_dwordx4 v5, s[8:11], s27 offen lds" + WH)
        a("s_add_u32 s28, s28, s23")
        a("s_add_u32 s48, s48, 1")
        for t in range(2):
            r = DF[sl] + 4 * t
            a("buffer_load_dwordx4 v[%d:%d], v%d, s[12:15], s28 offen" % (r, r + 3, 3 + t) + DH)
        a("s_cmp_lg_u32 s48, %d" % S)
        a("s_cselect_b32 s48, s48, 0")

    if g1 and FUSED:
        a("s_mov_b32 s51, s48")
        for st in range(NS):
            a("s_mul_i32 s27, s51, %d" % (16 * PW))
            a("s_add_u32 s27, s27, s25")
            a("buffer_load_dwordx4 v[%d:%d], v5, s[8:11], s27 offen" % (DF[st], DF[st] + 3))
            a("s_add_u32 s27, s27, %d" % (8 * PW))
            a("s_add_u32 s51, s51, 1")
            a("buffer_load_dwordx4 v[%d:%d], v5, s[8:11], s27 offen" % (DF[st] + 4, DF[st] + 7))
            a("s_cmp_lg_u32 s51, %d" % S)
            a("s_cselect_b32 s51, s51, 0")
        poll_flags(a, "g1")
        a("s_waitcnt vmcnt(0)")
        a("s_barrier")
    issue(0)
    issue(1)
    srd(a, 40, 36, 3584 if g1 else 4096)
    if not g1:
        srd(a, 44, 38, 2 * MB)
    for st in range(2, NS):
        issue(st)
    a("v_lshrrev_b32 v8, 4, v2")
    a("v_and_b32 v9, 15, v2")
    a("v_lshrrev_b32 v10, 2, v9")
    a("v_and_b32 v11, 3, v9")
    a("v_lshrrev_b32 v12, 1, v8")
    a("v_lshl_add_u32 v12, v12, 3, v10")
    a("v_lshlrev_b32 v12, 7, v12")
    a("v_and_b32 v13, 1, v8")
    a("v_lshlrev_b32 v13, 1, v13")
    a("v_lshrrev_b32 v14, 1, v11")
    a("v_add_u32 v13, v13, v14")
    a("v_lshlrev_b32 v14, 1, v10")
    a("v_and_b32 v14, 4, v14")
    a("v_xor_b32 v13, v13, v14")
    a("v_lshl_add_u32 v12, v13, 4, v12")
    a("v_and_b32 v14, 1, v11")
    a("v_lshl_add_u32 v12, v14, 3, v12")
    a("v_add_u32 v12, s26, v12")
    a("v_xor_b32 v13, 64, v12")
    a("s_lshr_b32 s29, s3, 1")
    a("s_and_b32 s30, s3, 1")
    a("v_and_b32 v6, 31, v2")
    a("v_lshrrev_b32 v7, 5, v2")
    NX = 0
    if g1:
        a("s_lshl_b32 s31, s21, 7")
        a("s_lshl_b32 s32, s29, 6")
        a("s_add_u32 s31, s31, s32")
        a("v_lshlrev_b32 v14, 3, v7")
        for rq in range(4):
            a("buffer_load_dwordx2 v[%d:%d], v14, s[40:43], s31 offen offset:%d" % (XR + 2 * rq, XR + 2 * rq + 1, 16 * rq))
        NX = 4
    else:
        a("s_lshl_b32 s31, s22, 18")
        a("s_lshl_b32 s32, s21, 7")
        a("s_add_u32 s31, s31, s32")
        a("s_add_u32 s31, s31, 0x%x" % WS_AF)
        a("s_add_u32 s32, s31, 131072")
        a("v_lshrrev_b32 v14, 3, v0")
        a("v_and_b32 v15, 7, v0")
        a("v_lshlrev_b32 v15, 4, v15")
        a("v_lshl_add_u32 v15, v14, 12, v15")
        a("buffer_load_dwordx4 v[%d:%d], v15, s[12:15], s31 offen" % (XR, XR + 3))
        a("buffer_load_dwordx4 v[%d:%d], v15, s[12:15], s32 offen" % (XR + 4, XR + 7))
        a("s_lshl_b32 s33, s21, 6")
        a("s_lshl_b32 s34, s30, 5")
        a("s_add_u32 s33, s33, s34")
        a("v_add_u32 v14, s33, v6")
        a("v_lshlrev_b32 v15, 2, v14")
        a("s_mov_b32 s34, 0x%x" % WS_GT)
        a("buffer_load_dword v%d, v15, s[12:15], s34 offen" % (XR + 8))
        a("v_lshlrev_b32 v15, 1, v14")
        a("buffer_load_ushort v%d, v15, s[40:43], 0 offen" % (XR + 9))
        NX = 4
    stamp(a)

    def trreads(st):
        if "wreg" in X:
            return
        sl = st % NS
        for nu in range(2):
            for h in range(2):
                r = WFB + 8 * (st & 1) + 4 * nu + 2 * h
                a("ds_read_b64_tr_b16 v[%d:%d], v%d offset:%d" % (r, r + 1, 12 + nu, sl * 2048 + h * 512))

    def stage(st, sl, par, do_issue, wait_next, first=False):
        if wait_next is not None:
            a("s_waitcnt vmcnt(%d)" % wait_next)
            trreads2((sl + 1) % NS, par ^ 1)
            a("s_waitcnt lgkmcnt(4)")
        else:
            a("s_waitcnt lgkmcnt(0)")
        for nu in range(2):
            for t in range(2):
                wf = WFB + 8 * par + 4 * nu
                df = DF[sl] + 4 * t
                if g1:
                    acc = ACC[nu][t]
                    A_, B_ = wf, df
                else:
                    acc = ACC[t][nu]
                    A_, B_ = df, wf
                a("v_mfma_f32_32x32x16_bf16 v[%d:%d], v[%d:%d], v[%d:%d], v[%d:%d]" % (acc, acc + 15, A_, A_ + 3, B_, B_ + 3, acc, acc + 15))
        if do_issue:
            issue(sl)

    def trreads2(sl, par):
        if "wreg" in X:
            return
        for nu in range(2):
            for h in range(2):
                r = WFB + 8 * par + 4 * nu + 2 * h
                a("ds_read_b64_tr_b16 v[%d:%d], v%d offset:%d" % (r, r + 1, 12 + nu, sl * 2048 + h * 512))

    assert NS % 2 == 0
    for r in range(16, 80):
        a("v_mov_b32 v%d, 0" % r)
    NL = (S - NS) // NS
    a("s_mov_b32 s50, %d" % NL)
    a("s_waitcnt vmcnt(%d)" % (4 * (NS - 1) + NX))
    trreads2(0, 0)
    a.lab("L_g%d_loop" % which)
    for k in range(NS):
        stage(k, k, k & 1, True, 4 * (NS - 2))
    a("s_sub_u32 s50, s50, 1")
    a("s_cmp_lg_u32 s50, 0")
    a("s_cbranch_scc1 L_g%d_loop" % which)
    for st in range(NL * NS, S):
        k = st % NS
        iss = st + NS < S
        later = min(S - 1, st + NS - 1) - (st + 1)
        stage(st, k, st & 1, iss, (4 * later) if st + 1 < S else None)
    stamp(a)
    F = 80
    a("s_mov_b32 s27, 0xffff0000")
    if not g1:
        a("v_lshrrev_b32 v9, 3, v0")
        a("v_mul_u32_u24 v9, %d, v9" % TP)
        a("v_and_b32 v10, 7, v0")
        a("v_lshl_add_u32 v9, v10, 4, v9")
        a("v_add_u32 v9, %d, v9" % TBASE)
        a("s_waitcnt vmcnt(0)")
        a("ds_write_b128 v9, v[%d:%d]" % (XR, XR + 3))
        a("ds_write_b128 v9, v[%d:%d] offset:%d" % (XR + 4, XR + 7, 32 * TP))
    a("s_barrier")
    a.nop(4)
    for qd in range(4):
        acc = ACC[qd >> 1][qd & 1]
        a("s_cmp_eq_u32 s3, %d" % qd)
        a("s_cbranch_scc1 L_g%d_own%d" % (which, qd))
        a("s_sub_u32 s28, s3, %d" % (qd + 1))
        a("s_and_b32 s28, s28, 3")
        a("s_add_u32 s28, s28, %d" % (qd * 3))
        a("s_lshl_b32 s28, s28, 12")
        a("v_add_u32 v8, s28, v3")
        for rq in range(4):
            a("ds_write_b128 v8, v[%d:%d] offset:%d" % (acc + 4 * rq, acc + 4 * rq + 3, rq * 1024))
        a("s_branch L_g%d_nx%d" % (which, qd))
        a.lab("L_g%d_own%d" % (which, qd))
        for k in range(8):
            a("v_pk_add_f32 v[%d:%d], v[%d:%d], 0" % (F + 2 * k, F + 2 * k + 1, acc + 2 * k, acc + 2 * k + 1))
        a.lab("L_g%d_nx%d" % (which, qd))
    a("s_mul_i32 s28, s3, %d" % (3 * 4096))
    a("v_add_u32 v8, s28, v3")
    if g1:
        a("s_lshl_b32 s32, s22, 1")
        a("s_add_u32 s32, s32, s30")
        a("s_mul_i32 s32, s32, %d" % (224 * 512))
        a("s_lshl_b32 s33, s21, 12")
        a("s_add_u32 s32, s32, s33")
        a("s_lshl_b32 s33, s29, 11")
        a("s_add_u32 s32, s32, s33")
        a("s_add_u32 s32, s32, 0x%x" % WS_GF)
        a("v_lshlrev_b32 v11, 4, v6")
        a("v_lshl_add_u32 v11, v7, 3, v11")
    else:
        a("v_lshrrev_b32 v9, 4, v2")
        a("v_and_b32 v10, 15, v2")
        a("v_lshrrev_b32 v13, 2, v10")
        a("v_lshl_add_u32 v13, v7, 2, v13")
        a("v_mul_u32_u24 v13, %d, v13" % TP)
        a("v_and_b32 v10, 3, v10")
        a("v_lshl_add_u32 v13, v10, 3, v13")
        a("v_and_b32 v9, 1, v9")
        a("v_lshl_add_u32 v13, v9, 5, v13")
        a("s_mul_i32 s32, s29, %d" % (32 * TP))
        a("s_lshl_b32 s33, s30, 6")
        a("s_add_u32 s32, s32, s33")
        a("s_add_u32 s32, s32, %d" % TBASE)
        a("v_add_u32 v13, s32, v13")
        a("v_lshlrev_b32 v14, 10, v14")
        a("v_lshl_add_u32 v14, v7, 3, v14")
        a("s_lshl_b32 s33, s22, 7")
        a("s_lshl_b32 s34, s29, 6")
        a("s_add_u32 s33, s33, s34")
    a("s_waitcnt lgkmcnt(0)")
    a("s_barrier")
    P = 96
    for rq in range(4):
        for k in range(3):
            a("ds_read_b128 v[%d:%d], v8 offset:%d" % (P + 16 * k + 4 * rq, P + 16 * k + 4 * rq + 3, k * 4096 + rq * 1024))
    if not g1:
        for rq in range(4):
            a("ds_read_b64_tr_b16 v[%d:%d], v13 offset:%d" % (16 + 2 * rq, 17 + 2 * rq, 8 * rq * TP))
        a("v_lshlrev_b32 v%d, 16, v%d" % (XR + 9, XR + 9))
        a("v_sub_f32 v%d, 1.0, v%d" % (XR + 8, XR + 8))
        bf16r(a, XR + 8)
        a("v_mov_b32 v%d, v%d" % (XR + 11, XR + 9))
        a("v_mov_b32 v%d, v%d" % (XR + 10, XR + 9))
        a("v_mov_b32 v%d, v%d" % (XR + 9, XR + 8))
    else:
        a("s_waitcnt vmcnt(0)")
        k1 = -2.0 * 0.7978845608028654 * 1.4426950408889634
        a("v_mov_b32 v16, 0x%x" % f32(k1))
        a("v_mov_b32 v17, 0x%x" % f32(k1))
        a("v_mov_b32 v18, 0x%x" % f32(k1 * 0.044715))
        a("v_mov_b32 v19, 0x%x" % f32(k1 * 0.044715))
        a("v_mov_b32 v20, 1.0")
        a("v_mov_b32 v21, 1.0")
    nrd = 12 + (0 if g1 else 4)

    def pk(op, d, x, y):
        a("v_pk_%s_f32 v[%d:%d], v[%d:%d], v[%d:%d]" % (op, d, d + 1, x, x + 1, y, y + 1))

    def rnd(base, n, tmp):
        for k in range(n // 2):
            a("v_cvt_pk_bf16_f32 v%d, v%d, v%d" % (tmp + k, base + 2 * k, base + 2 * k + 1))
        for k in range(n // 2):
            a("v_lshlrev_b32 v%d, 16, v%d" % (base + 2 * k, tmp + k))
            a("v_and_b32 v%d, s27, v%d" % (base + 2 * k + 1, tmp + k))

    for half in range(2):
        a("s_waitcnt lgkmcnt(%d)" % (nrd - 6 * (half + 1)))
        for k in range(3):
            for e in range(4):
                pk("add", F + 8 * half + 2 * e, F + 8 * half + 2 * e, P + 16 * k + 8 * half + 2 * e)
    TM = 48
    B = 32
    rnd(F, 16, TM)
    if g1:
        for k in range(8):
            a("v_lshlrev_b32 v%d, 16, v%d" % (B + 2 * k, XR + k))
            a("v_and_b32 v%d, s27, v%d" % (B + 2 * k + 1, XR + k))
        for e in range(8):
            pk("add", F + 2 * e, F + 2 * e, B + 2 * e)
        rnd(F, 16, TM)
        for e in range(8):
            pk("mul", B + 2 * e, F + 2 * e, F + 2 * e)
        for e in range(8):
            a("v_pk_fma_f32 v[%d:%d], v[%d:%d], v[18:19], v[16:17]" % (B + 2 * e, B + 2 * e + 1, B + 2 * e, B + 2 * e + 1))
        for e in range(8):
            pk("mul", B + 2 * e, B + 2 * e, F + 2 * e)
        for j in range(16):
            a("v_exp_f32 v%d, v%d" % (B + j, B + j))
        for e in range(8):
            pk("add", B + 2 * e, B + 2 * e, 20)
        for j in range(16):
            a("v_rcp_f32 v%d, v%d" % (B + j, B + j))
        a.nop(1)
        for e in range(8):
            pk("mul", F + 2 * e, F + 2 * e, B + 2 * e)
        for k in range(8):
            a("v_cvt_pk_bf16_f32 v%d, v%d, v%d" % (TM + k, F + 2 * k, F + 2 * k + 1))
        for rq in range(4):
            a("buffer_store_dwordx2 v[%d:%d], v11, s[12:15], s32 offen offset:%d" % (TM + 2 * rq, TM + 2 * rq + 1, 512 * rq))
    else:
        for e in range(8):
            pk("add", F + 2 * e, F + 2 * e, XR + 10)
        rnd(F, 16, TM)
        for e in range(8):
            pk("mul", F + 2 * e, F + 2 * e, XR + 8)
        rnd(F, 16, TM)
        a("s_waitcnt lgkmcnt(0)")
        for k in range(8):
            a("v_lshlrev_b32 v%d, 16, v%d" % (B + 2 * k, 16 + k))
            a("v_and_b32 v%d, s27, v%d" % (B + 2 * k + 1, 16 + k))
        for e in range(8):
            pk("add", F + 2 * e, F + 2 * e, B + 2 * e)
        for k in range(8):
            a("v_cvt_pk_bf16_f32 v%d, v%d, v%d" % (TM + k, F + 2 * k, F + 2 * k + 1))
        for rq in range(4):
            a("buffer_store_dwordx2 v[%d:%d], v14, s[44:47], s33 offen offset:%d" % (TM + 2 * rq, TM + 2 * rq + 1, 16 * rq))
    stamp(a)
    dump_stamps(a, 9)
    trace_end(a, which - (1 if FUSED else 0))
    a("s_endpgm")


def kd(name, vgpr, sgpr=102):
    acc = (vgpr + 3) // 4 * 4
    return """.amdhsa_kernel %s
  .amdhsa_next_free_vgpr %d
  .amdhsa_next_free_sgpr %d
  .amdhsa_accum_offset %d
  .amdhsa_group_segment_fixed_size 0
  .amdhsa_kernarg_size 144
  .amdhsa_user_sgpr_count 2
  .amdhsa_user_sgpr_kernarg_segment_ptr 1
  .amdhsa_system_sgpr_workgroup_id_x 1
.end_amdhsa_kernel
""" % (name, vgpr, sgpr, acc)


def main(out):
    ref = open("cdna_kernels/%s.s.ref" % NAME).read()
    head = []
    for ln in ref.splitlines():
        if ln.startswith("; @launch"):
            break
        if ln.startswith("; Override") or ln.startswith("; grid=ceil"):
            continue
        head.append(ln)
    a = A()
    K1, K2, K3 = "k1_prep_kernel", "k2_gemm1_conv_kernel", "k3_gemm2_kernel"
    if not FUSED:
        head.append("; @launch kernel=%s grid=(%d,1,1) block=(256,1,1) lds=%d" % (K1, 768, K1_LDS))
    head.append("; @launch kernel=%s grid=(%d,1,1) block=(256,1,1) lds=%d" % (K2, 224 + 512, K2_LDS))
    head.append("; @launch kernel=%s grid=(%d,1,1) block=(256,1,1) lds=%d" % (K3, 256, K3_LDS))
    a.L += head
    a.L.append('.amdgcn_target "amdgcn-amd-amdhsa--gfx950"')
    a.L.append(".text")

    def start(k):
        a.L.append(".globl %s" % k)
        a.L.append(".p2align 8")
        a.L.append(".type %s,@function" % k)
        a.lab(k)

    if not FUSED:
        start(K1)
        a("s_cmp_ge_u32 s2, 768")
        a("s_cbranch_scc1 L_k1_exit")
        a("s_cmp_ge_u32 s2, 512")
        a("s_cbranch_scc1 L_k1_prep")
        gen_kgen(a, 0)
        a.lab("L_k1_exit")
        a("s_endpgm")
        a.lab("L_k1_prep")
        gen_prep(a, 512)

    start(K2)
    a("s_cmp_ge_u32 s2, %d" % (224 + 512))
    a("s_cbranch_scc1 L_k2_exit")
    a("s_cmp_lt_u32 s2, 512")
    a("s_cbranch_scc1 L_k2_conv")
    a("s_sub_u32 s2, s2, 512")
    if "prio" in X:
        a("s_setprio 3")
    gen_gemm(a, 1)
    a.lab("L_k2_exit")
    a("s_endpgm")
    a.lab("L_k2_conv")
    if FUSED:
        a.cur = "conv"
        trace_begin(a)
        a("s_cmp_ge_u32 s2, 256")
        a("s_cbranch_scc1 L_k2_kgen")
        gen_prep(a, 0)
        a.lab("L_k2_kgen")
        gen_kgen(a, 0)
    gen_conv(a, 0)

    start(K3)
    a("s_cmp_ge_u32 s2, 256")
    a("s_cbranch_scc1 L_k3_exit")
    gen_gemm(a, 2)
    a.lab("L_k3_exit")
    a("s_endpgm")

    a.L.append('.section .rodata,"a"')
    for k, v in ((K1, 144), (K2, 168), (K3, 208))[1 if FUSED else 0:]:
        a.L.append(".p2align 6")
        a.L.append(kd(k, v))
    open(out, "w").write("\n".join(a.L) + "\n")


if __name__ == "__main__":
    main(sys.argv[1] if len(sys.argv) > 1 else "cdna_kernels/%s.s" % NAME)
```

```python
import struct, sys, os
X = os.environ.get("GENX", "")
GX = X
FUSED = "fuse" in X
SC = " sc1" if FUSED else ""
WH = " nt" if "wnt" in X else (" sc1" if "wsc1" in X else "")
DH = " nt" if "dnt" in X else (" sc1" if "dsc1" in X else "")

NAME = "gated_mix__ssm_conv_s4__mixer_token_mlp__prompt"

MB = 1 << 20
WS_HF = 0
WS_UF = 2 * MB
WS_GF = 4 * MB
WS_AF = 6 * MB
WS_GT = 8 * MB
WS_RK = 9 * MB
WS_SIZE = 268435456

NPREP = 64
HILO = True


def f32(x):
    return struct.unpack("<I", struct.pack("<f", x))[0]


class A:
    def __init__(self):
        self.L = []
        self.cur = ""

    def __call__(self, s):
        self.L.append("    " + s)

    def lab(self, s):
        self.L.append(s + ":")

    def nop(self, n):
        while n > 0:
            k = min(n, 16)
            self("s_nop %d" % (k - 1))
            n -= k

    def c(self, s):
        self.L.append("    ; " + s)


STAMPS = [0]
def stamp(a):
    if "stamp" not in X:
        return
    k = STAMPS[0]
    a("s_memtime s[%d:%d]" % (72 + 2 * k, 73 + 2 * k))
    STAMPS[0] += 1


def dump_stamps(a, wg, off=0):
    if "stamp" not in X:
        return
    n = STAMPS[0]
    STAMPS[0] = 0
    a("s_waitcnt vmcnt(0) lgkmcnt(0)")
    a("s_memtime s[%d:%d]" % (72 + 2 * n, 73 + 2 * n))
    n += 1
    a("s_load_dwordx2 s[96:97], s[0:1], 128")
    a("s_waitcnt lgkmcnt(0)")
    a("s_mov_b32 s98, 256")
    a("s_mov_b32 s99, 0x00020000")
    a("s_mov_b64 exec, -1")
    a("v_lshrrev_b32 v1, 6, v0")
    a("s_nop 1")
    a("v_readfirstlane_b32 s95, v1")
    a("s_cmp_lg_u32 s95, 0")
    a("s_cbranch_scc1 L_nostamp%d" % len(a.L))
    lab = "L_nostamp%d" % (len(a.L) - 1)
    a("s_cmp_lg_u32 s2, %d" % wg)
    a("s_cbranch_scc1 %s" % lab)
    a("s_mov_b64 exec, 1")
    a("v_mov_b32 v1, 0")
    for k in range(n):
        a("v_mov_b32 v2, s%d" % (72 + 2 * k))
        a("buffer_store_dword v2, v1, s[96:99], 0 offen offset:%d" % (off + 4 * k))
    a.lab(lab)


def trace_begin(a):
    if "trace" not in X:
        return
    a("s_memrealtime s[88:89]")
    a("s_memtime s[90:91]")
    a("s_mov_b32 s94, s2")
    a("s_mov_b32 s86, 0")
    if a.cur == "g1":
        a("s_add_u32 s94, s94, 512")


def trace_end(a, launch):
    if "trace" not in X:
        return
    a("s_waitcnt vmcnt(0) lgkmcnt(0)")
    a("s_memrealtime s[92:93]")
    if FUSED:
        a("s_mov_b32 s84, s86")
    else:
        a("s_memtime s[84:85]")
    a("s_load_dwordx2 s[96:97], s[0:1], 136")
    a("s_waitcnt lgkmcnt(0)")
    a("s_mov_b32 s98, 0x%x" % WS_SIZE)
    a("s_mov_b32 s99, 0x00020000")
    a("s_mov_b64 exec, -1")
    a("v_lshrrev_b32 v1, 6, v0")
    a("s_nop 1")
    a("v_readfirstlane_b32 s95, v1")
    a("s_cmp_lg_u32 s95, 0")
    a("s_cbranch_scc1 L_notr%d" % len(a.L))
    lab = "L_notr%d" % (len(a.L) - 1)
    a("s_lshl_b32 s94, s94, 4")
    a("s_add_u32 s94, s94, 0x%x" % (64 * MB + launch * 65536))
    a("s_mov_b64 exec, 1")
    a("v_mov_b32 v1, 0")
    a("v_mov_b32 v4, s88")
    a("v_mov_b32 v5, s92")
    if "hwid" in X:
        a("s_getreg_b32 s90, hwreg(HW_REG_HW_ID)")
        a("s_getreg_b32 s84, hwreg(HW_REG_XCC_ID)")
    a("v_mov_b32 v6, s90")
    a("v_mov_b32 v7, s84")
    a("buffer_store_dwordx4 v[4:7], v1, s[96:99], s94 offen")
    a.lab(lab)


def poll_flags(a, tag, sreg=72):
    a("s_cmp_lg_u32 s3, 0")
    a("s_cbranch_scc1 L_pf_done_%s" % tag)
    a("s_load_dwordx2 s[%d:%d], s[0:1], 128" % (sreg, sreg + 1))
    a("v_lshlrev_b32 v72, 2, v2")
    a("s_mov_b32 s%d, 4" % (sreg + 4))
    a("s_mov_b32 s%d, 0x40000" % (sreg + 5))
    a("s_waitcnt lgkmcnt(0)")
    a("s_mov_b32 s%d, 256" % (sreg + 2))
    a("s_mov_b32 s%d, 0x00020000" % (sreg + 3))
    a.lab("L_pf_loop_%s" % tag)
    a("buffer_load_dword v73, v72, s[%d:%d], 0 offen sc1" % (sreg, sreg + 3))
    a("s_waitcnt vmcnt(0)")
    a("v_cmp_ne_u32 vcc, s%d, v73" % (sreg + 4))
    a("s_nop 4")
    a("s_cbranch_vccz L_pf_done_%s" % tag)
    a("s_sleep %d" % (64 if "slow" in X else 4))
    a("s_sub_u32 s%d, s%d, 1" % (sreg + 5, sreg + 5))
    a("s_cmp_lg_u32 s%d, 0" % (sreg + 5))
    a("s_cbranch_scc1 L_pf_loop_%s" % tag)
    a.lab("L_pf_done_%s" % tag)
    if "trace" in X:
        a("s_memrealtime s[90:91]")
        a("s_waitcnt lgkmcnt(0)")


def srd(a, d, base, nbytes, off=0):
    if off:
        a("s_add_u32 s%d, s%d, 0x%x" % (d, base, off))
        a("s_addc_u32 s%d, s%d, 0" % (d + 1, base + 1))
    else:
        a("s_mov_b32 s%d, s%d" % (d, base))
        a("s_mov_b32 s%d, s%d" % (d + 1, base + 1))
    a("s_mov_b32 s%d, 0x%x" % (d + 2, nbytes))
    a("s_mov_b32 s%d, 0x00020000" % (d + 3))


def bf16r(a, v):
    a("v_cvt_pk_bf16_f32 v%d, v%d, v%d" % (v, v, v))
    a("v_lshlrev_b32 v%d, 16, v%d" % (v, v))


def wave_reduce(a, regs):
    assert len(regs) >= 3
    steps = ["quad_perm:[1,0,3,2] row_mask:0xf bank_mask:0xf",
             "quad_perm:[2,3,0,1] row_mask:0xf bank_mask:0xf",
             "row_half_mirror row_mask:0xf bank_mask:0xf",
             "row_mirror row_mask:0xf bank_mask:0xf",
             "row_bcast:15 row_mask:0xa bank_mask:0xf",
             "row_bcast:31 row_mask:0xc bank_mask:0xf"]
    a.nop(2)
    for st in steps:
        for r in regs:
            a("v_add_f32_dpp v%d, v%d, v%d %s" % (r, r, r, st))
    a.nop(1)


RP = 1024 + 64
UTP = 128 + 64
TBP = 528
XT = 0
YT = 41 * TBP
KT = 45056 if FUSED else 82 * TBP
K1_LDS = KT + 2576
DSTEPS = ["quad_perm:[1,0,3,2] row_mask:0xf bank_mask:0xf",
          "quad_perm:[2,3,0,1] row_mask:0xf bank_mask:0xf",
          "row_half_mirror row_mask:0xf bank_mask:0xf",
          "row_mirror row_mask:0xf bank_mask:0xf",
          "row_bcast:15 row_mask:0xa bank_mask:0xf",
          "row_bcast:31 row_mask:0xc bank_mask:0xf"]


def prep_row(R, SR):
    a = A()
    XV, T, M = R + 8, R + 16, R + 24
    GW = 24
    for q in range(4):
        a("v_lshlrev_b32 v%d, 16, v%d" % (XV + 2 * q, R + q))
        a("v_and_b32 v%d, s27, v%d" % (XV + 2 * q + 1, R + q))
    for q in range(4):
        a("v_pk_mul_f32 v[%d:%d], v[%d:%d], v[%d:%d]" % (T + 2 * q, T + 2 * q + 1, XV + 2 * q, XV + 2 * q + 1, GW + 2 * q, GW + 2 * q + 1))
    a("v_pk_add_f32 v[%d:%d], v[%d:%d], v[%d:%d]" % (M, M + 1, XV, XV + 1, XV + 2, XV + 3))
    a("v_pk_add_f32 v[%d:%d], v[%d:%d], v[%d:%d]" % (M + 2, M + 3, XV + 4, XV + 5, XV + 6, XV + 7))
    for q in range(4):
        a("v_cvt_pk_bf16_f32 v%d, v%d, v%d" % (M + 4 + q, T + 2 * q, T + 2 * q + 1))
    a("v_pk_add_f32 v[%d:%d], v[%d:%d], v[%d:%d]" % (M, M + 1, M, M + 1, M + 2, M + 3))
    for q in range(4):
        a("v_lshlrev_b32 v%d, 16, v%d" % (T + 2 * q, M + 4 + q))
        a("v_and_b32 v%d, s27, v%d" % (T + 2 * q + 1, M + 4 + q))
    a("v_add_f32 v%d, v%d, v%d" % (M, M, M + 1))
    a("v_pk_add_f32 v[%d:%d], v[%d:%d], v[%d:%d]" % (M + 2, M + 3, T, T + 1, T + 2, T + 3))
    a("v_pk_add_f32 v[%d:%d], v[%d:%d], v[%d:%d]" % (M + 4, M + 5, T + 4, T + 5, T + 6, T + 7))
    a("v_pk_add_f32 v[%d:%d], v[%d:%d], v[%d:%d]" % (M + 2, M + 3, M + 2, M + 3, M + 4, M + 5))
    a("v_add_f32 v%d, v%d, v%d" % (M + 1, M + 2, M + 3))
    a.nop(1)
    for st in DSTEPS:
        a("v_add_f32_dpp v%d, v%d, v%d %s" % (M, M, M, st))
        a("v_add_f32_dpp v%d, v%d, v%d %s" % (M + 1, M + 1, M + 1, st))
        a.nop(1)
    a("v_readlane_b32 s%d, v%d, 63" % (SR, M))
    a("v_readlane_b32 s%d, v%d, 63" % (SR + 1, M + 1))
    a.nop(2)
    G = M + 10
    a("v_mul_f32 v%d, s%d, v60" % (M + 2, SR))
    a("v_mul_f32 v%d, s%d, v60" % (M + 3, SR))
    a("v_mov_b32 v%d, s%d" % (G, SR + 1))
    for q in range(4):
        a("v_pk_add_f32 v[%d:%d], v[%d:%d], v[%d:%d] neg_lo:[0,1] neg_hi:[0,1]" % (T + 2 * q, T + 2 * q + 1, XV + 2 * q, XV + 2 * q + 1, M + 2, M + 3))
    a("v_pk_mul_f32 v[%d:%d], v[%d:%d], v[%d:%d]" % (M + 4, M + 5, T, T + 1, T, T + 1))
    a("v_pk_mul_f32 v[%d:%d], v[%d:%d], v[%d:%d]" % (M + 6, M + 7, T + 2, T + 3, T + 2, T + 3))
    a("v_pk_fma_f32 v[%d:%d], v[%d:%d], v[%d:%d], v[%d:%d]" % (M + 4, M + 5, T + 4, T + 5, T + 4, T + 5, M + 4, M + 5))
    a("v_pk_fma_f32 v[%d:%d], v[%d:%d], v[%d:%d], v[%d:%d]" % (M + 6, M + 7, T + 6, T + 7, T + 6, T + 7, M + 6, M + 7))
    bf16r(a, G)
    a("v_pk_add_f32 v[%d:%d], v[%d:%d], v[%d:%d]" % (M + 4, M + 5, M + 4, M + 5, M + 6, M + 7))
    a("v_mul_f32 v%d, 0x%x, v%d" % (G, f32(-1.4426950408889634), G))
    a("v_add_f32 v%d, v%d, v%d" % (M + 4, M + 4, M + 5))
    a("v_exp_f32 v%d, v%d" % (G, G))
    bf16r(a, M + 2)
    for k, st in enumerate(DSTEPS):
        a("v_add_f32_dpp v%d, v%d, v%d %s" % (M + 4, M + 4, M + 4, st))
        if k == 0:
            a("v_add_f32 v%d, 1.0, v%d" % (G, G))
            a("v_mov_b32 v%d, v%d" % (M + 3, M + 2))
        elif k == 1:
            a("v_rcp_f32 v%d, v%d" % (G, G))
            a.nop(1)
        else:
            a.nop(2)
    a("v_readlane_b32 s%d, v%d, 63" % (SR + 2, M + 4))
    for q in range(4):
        a("v_pk_add_f32 v[%d:%d], v[%d:%d], v[%d:%d] neg_lo:[0,1] neg_hi:[0,1]" % (XV + 2 * q, XV + 2 * q + 1, XV + 2 * q, XV + 2 * q + 1, M + 2, M + 3))
    a("v_mul_f32 v%d, s%d, v60" % (M + 4, SR + 2))
    for q in range(4):
        a("v_cvt_pk_bf16_f32 v%d, v%d, v%d" % (T + q, XV + 2 * q, XV + 2 * q + 1))
    bf16r(a, M + 4)
    bf16r(a, G)
    a("v_add_f32 v%d, v%d, v61" % (M + 4, M + 4))
    for q in range(4):
        a("v_lshlrev_b32 v%d, 16, v%d" % (XV + 2 * q, T + q))
        a("v_and_b32 v%d, s27, v%d" % (XV + 2 * q + 1, T + q))
    bf16r(a, M + 4)
    a("v_sqrt_f32 v%d, v%d" % (M + 4, M + 4))
    a.nop(1)
    bf16r(a, M + 4)
    a("v_rcp_f32 v%d, v%d" % (M + 4, M + 4))
    a.nop(1)
    a("v_mov_b32 v%d, v%d" % (M + 5, M + 4))
    for q in range(4):
        a("v_pk_mul_f32 v[%d:%d], v[%d:%d], v[%d:%d]" % (XV + 2 * q, XV + 2 * q + 1, XV + 2 * q, XV + 2 * q + 1, M + 4, M + 5))
    for q in range(4):
        a("v_cvt_pk_bf16_f32 v%d, v%d, v%d" % (T + q, XV + 2 * q, XV + 2 * q + 1))
    return a.L, T, G


def gen_prep(a, first_wg):
    a.c("---- prep role: wave handles 2 rows, WG = 8 rows")
    a.cur = "prep"
    if not FUSED:
        trace_begin(a)
    stamp(a)
    if first_wg:
        a("s_sub_u32 s2, s2, %d" % first_wg)
    a("s_load_dwordx2 s[4:5], s[0:1], 0")
    a("s_load_dwordx2 s[6:7], s[0:1], 112")
    a("s_load_dwordx2 s[8:9], s[0:1], 136")
    a("v_lshrrev_b32 v1, 6, v0")
    a("v_and_b32 v2, 63, v0")
    a("v_readfirstlane_b32 s3, v1")
    a("v_lshlrev_b32 v3, 4, v2")
    a("s_lshl_b32 s24, s2, 3")
    a("s_lshl_b32 s25, s3, 1")
    a("s_add_u32 s24, s24, s25")
    a("s_lshl_b32 s25, s24, 10")
    a("s_mov_b32 s27, 0xffff0000")
    a("s_waitcnt lgkmcnt(0)")
    srd(a, 12, 4, 2 * MB)
    srd(a, 16, 6, 1024)
    R0, R1 = 64, 104
    a("buffer_load_dwordx4 v[%d:%d], v3, s[12:15], s25 offen" % (R0, R0 + 3))
    a("buffer_load_dwordx4 v[%d:%d], v3, s[12:15], s25 offen offset:1024" % (R1, R1 + 3))
    a("buffer_load_dwordx4 v[12:15], v3, s[16:19], 0 offen")
    a("s_lshr_b32 s40, s2, 3")
    a("s_and_b32 s41, s2, 7")
    a("s_lshl_b32 s42, s40, 16")
    a("s_lshl_b32 s43, s41, 7")
    a("s_add_u32 s42, s42, s43")
    a("v_lshrrev_b32 v44, 3, v0")
    a("v_and_b32 v45, 7, v0")
    a("v_lshlrev_b32 v43, 10, v44")
    a("v_lshl_add_u32 v43, v45, 4, v43")
    a("buffer_load_dwordx4 v[32:35], v43, s[12:15], s42 offen")
    a("s_add_u32 s43, s42, 32768")
    a("buffer_load_dwordx4 v[36:39], v43, s[12:15], s43 offen")
    a("v_mul_u32_u24 v40, %d, v44" % UTP)
    a("v_lshl_add_u32 v40, v45, 4, v40")
    a("v_and_b32 v44, 15, v2")
    a("v_lshrrev_b32 v41, 2, v44")
    a("s_lshl_b32 s44, s3, 4")
    a("v_add_u32 v41, s44, v41")
    a("v_mul_u32_u24 v41, %d, v41" % UTP)
    a("v_and_b32 v44, 3, v44")
    a("v_lshl_add_u32 v41, v44, 3, v41")
    a("v_lshrrev_b32 v44, 4, v2")
    a("v_lshl_add_u32 v41, v44, 5, v41")
    a("v_lshlrev_b32 v42, 12, v2")
    a("s_lshl_b32 s44, s41, 18")
    a("s_lshl_b32 s45, s40, 7")
    a("s_add_u32 s44, s44, s45")
    a("s_lshl_b32 s45, s3, 5")
    a("s_add_u32 s44, s44, s45")
    a("s_add_u32 s44, s44, 0x%x" % WS_UF)
    srd(a, 20, 8, WS_SIZE)
    a("s_mul_i32 s26, s3, %d" % (2 * RP))
    a("v_add_u32 v4, s26, v3")
    a("v_and_b32 v5, 15, v2")
    a("v_lshrrev_b32 v6, 2, v5")
    a("v_mul_u32_u24 v6, %d, v6" % RP)
    a("v_and_b32 v5, 3, v5")
    a("v_lshl_add_u32 v6, v5, 3, v6")
    a("v_lshrrev_b32 v5, 4, v2")
    a("v_lshl_add_u32 v6, v5, 5, v6")
    a("s_lshl_b32 s26, s3, 8")
    a("v_add_u32 v6, s26, v6")
    a("v_lshrrev_b32 v7, 5, v2")
    a("s_lshl_b32 s26, s3, 2")
    a("v_add_u32 v7, s26, v7")
    a("v_lshlrev_b32 v7, 17, v7")
    a("v_and_b32 v5, 31, v2")
    a("v_lshl_add_u32 v7, v5, 4, v7")
    a("s_lshl_b32 s28, s2, 9")
    a("s_add_u32 s29, s28, %d" % (2 * 131072))
    a("v_mov_b32 v60, 0x%x" % f32(1.0 / 512))
    a("v_mov_b32 v61, 0x%x" % f32(1e-5))
    a("s_lshl_b32 s30, s24, 2")
    a("s_add_u32 s30, s30, 0x%x" % WS_GT)
    a("v_mov_b32 v8, 0")
    a("s_waitcnt vmcnt(2)")
    stamp(a)
    for q in range(4):
        a("v_lshlrev_b32 v%d, 16, v%d" % (24 + 2 * q, 12 + q))
        a("v_and_b32 v%d, s27, v%d" % (25 + 2 * q, 12 + q))
    L0, T0, G0 = prep_row(R0, 32)
    L1, T1, G1 = prep_row(R1, 36)
    for x, y in zip(L0, L1):
        if "s_nop 0" in x:
            continue
        if "s_nop 1" in x:
            a("s_nop 0")
            continue
        a.L.append(x)
        a.L.append(y)
    a("s_waitcnt vmcnt(0)")
    a("ds_write_b128 v40, v[32:35] offset:%d" % (8 * RP))
    a("ds_write_b128 v40, v[36:39] offset:%d" % (8 * RP + 32 * UTP))
    a("ds_write_b128 v4, v[%d:%d]" % (T0, T0 + 3))
    a("ds_write_b128 v4, v[%d:%d] offset:%d" % (T1, T1 + 3, RP))
    GL = 8 * RP + 64 * UTP
    a("s_lshl_b32 s31, s3, 3")
    a("v_mov_b32 v9, s31")
    a("s_mov_b64 exec, 1")
    a("ds_write2_b32 v9, v%d, v%d offset0:%d offset1:%d" % (G0, G1, 0, 1) if False else "v_add_u32 v9, %d, v9" % GL)
    a("ds_write2_b32 v9, v%d, v%d offset0:0 offset1:1" % (G0, G1))
    a("s_mov_b64 exec, -1")
    a("s_waitcnt lgkmcnt(0)")
    a("s_barrier")
    stamp(a)
    for p in range(2):
        a("ds_read_b64_tr_b16 v[%d:%d], v6 offset:%d" % (8 + 4 * p, 9 + 4 * p, 128 * p))
        a("ds_read_b64_tr_b16 v[%d:%d], v6 offset:%d" % (10 + 4 * p, 11 + 4 * p, 4 * RP + 128 * p))
    for p in range(2):
        for h in range(2):
            a("ds_read_b64_tr_b16 v[%d:%d], v41 offset:%d" % (32 + 4 * p + 2 * h, 33 + 4 * p + 2 * h, 8 * RP + (8 * p + 4 * h) * UTP))
    a("s_waitcnt lgkmcnt(6)")
    a("buffer_store_dwordx4 v[8:11], v7, s[20:23], s28 offen" + SC)
    a("s_waitcnt lgkmcnt(4)")
    a("buffer_store_dwordx4 v[12:15], v7, s[20:23], s29 offen" + SC)
    a("v_mul_u32_u24 v42, 144, v2")
    a("s_lshl_b32 s45, s3, 5")
    a("v_add_u32 v42, s45, v42")
    a("s_waitcnt lgkmcnt(0)")
    a("ds_write_b128 v42, v[32:35] offset:%d" % (GL + 64))
    a("ds_write_b128 v42, v[36:39] offset:%d" % (GL + 64 + 16))
    a("v_lshrrev_b32 v44, 3, v0")
    a("v_and_b32 v45, 7, v0")
    a("v_mul_u32_u24 v42, 144, v44")
    a("v_lshl_add_u32 v42, v45, 4, v42")
    a("v_lshlrev_b32 v43, 12, v44")
    a("v_lshl_add_u32 v43, v45, 4, v43")
    a("s_lshl_b32 s44, s41, 18")
    a("s_lshl_b32 s45, s40, 7")
    a("s_add_u32 s44, s44, s45")
    a("s_add_u32 s44, s44, 0x%x" % WS_UF)
    a("s_add_u32 s45, s44, %d" % (32 * 4096))
    a("v_lshlrev_b32 v9, 2, v2")
    a("s_lshl_b32 s30, s2, 5")
    a("s_add_u32 s30, s30, 0x%x" % WS_GT)
    a("s_waitcnt lgkmcnt(0)")
    a("s_barrier")
    a("ds_read_b128 v[32:35], v42 offset:%d" % (GL + 64))
    a("ds_read_b128 v[36:39], v42 offset:%d" % (GL + 64 + 32 * 144))
    a("ds_read_b32 v10, v9 offset:%d" % GL)
    a("s_waitcnt lgkmcnt(2)")
    a("buffer_store_dwordx4 v[32:35], v43, s[20:23], s44 offen" + SC)
    a("s_waitcnt lgkmcnt(1)")
    a("buffer_store_dwordx4 v[36:39], v43, s[20:23], s45 offen" + SC)
    a("s_waitcnt lgkmcnt(0)")
    a("s_cmp_lg_u32 s3, 0")
    a("s_cbranch_scc1 L_prep_nog")
    a("s_mov_b64 exec, 0xff")
    a("buffer_store_dword v10, v9, s[20:23], s30 offen" + SC)
    a("s_mov_b64 exec, -1")
    a.lab("L_prep_nog")
    if FUSED:
        a("s_load_dwordx2 s[40:41], s[0:1], 128")
        a("s_waitcnt vmcnt(0) lgkmcnt(0)")
        a("s_barrier")
        a("s_mov_b32 s42, 256")
        a("s_mov_b32 s43, 0x00020000")
        a("s_cmp_lg_u32 s3, 0")
        a("s_cbranch_scc1 L_prep_noflag")
        a("v_mov_b32 v9, 1")
        a("v_mov_b32 v8, 0")
        a("s_mov_b64 exec, 1")
        a("s_and_b32 s44, s2, 63")
        a("s_lshl_b32 s44, s44, 2")
        a("buffer_atomic_add v9, v8, s[40:43], s44 offen sc1")
        a("s_mov_b64 exec, -1")
        a.lab("L_prep_noflag")
        if "trace" in X:
            a("s_memrealtime s[86:87]")
            a("s_waitcnt lgkmcnt(0)")
        return
    stamp(a)
    dump_stamps(a, 5)
    trace_end(a, 0)
    a("s_endpgm")


def gen_utr(a, first_wg):
    a.c("---- U transposer role: tile 64 s x 64 d -> UT[d][s]")
    a.cur = "utr"
    trace_begin(a)
    a("s_sub_u32 s2, s2, %d" % first_wg)
    a("s_load_dwordx2 s[4:5], s[0:1], 0")
    a("s_load_dwordx2 s[8:9], s[0:1], 136")
    a("v_lshrrev_b32 v1, 6, v0")
    a("v_and_b32 v2, 63, v0")
    a("v_readfirstlane_b32 s3, v1")
    a("s_lshr_b32 s20, s2, 3")
    a("s_and_b32 s21, s2, 7")
    a("s_lshl_b32 s22, s20, 16")
    a("s_lshl_b32 s23, s21, 7")
    a("s_add_u32 s22, s22, s23")
    a("v_lshrrev_b32 v3, 3, v0")
    a("v_and_b32 v4, 7, v0")
    a("v_lshlrev_b32 v5, 10, v3")
    a("v_lshl_add_u32 v5, v4, 4, v5")
    a("v_mul_u32_u24 v6, %d, v3" % UTP)
    a("v_lshl_add_u32 v6, v4, 4, v6")
    a("s_waitcnt lgkmcnt(0)")
    srd(a, 12, 4, 2 * MB)
    a("buffer_load_dwordx4 v[8:11], v5, s[12:15], s22 offen")
    a("s_add_u32 s23, s22, 32768")
    a("buffer_load_dwordx4 v[12:15], v5, s[12:15], s23 offen")
    srd(a, 16, 8, WS_SIZE)
    a("v_and_b32 v3, 15, v2")
    a("v_lshrrev_b32 v4, 2, v3")
    a("s_lshl_b32 s24, s3, 4")
    a("v_add_u32 v4, s24, v4")
    a("v_mul_u32_u24 v4, %d, v4" % UTP)
    a("v_and_b32 v3, 3, v3")
    a("v_lshl_add_u32 v4, v3, 3, v4")
    a("v_lshrrev_b32 v3, 4, v2")
    a("v_lshl_add_u32 v4, v3, 5, v4")
    a("v_lshlrev_b32 v7, 12, v2")
    a("s_lshl_b32 s24, s21, 18")
    a("s_lshl_b32 s25, s20, 7")
    a("s_add_u32 s24, s24, s25")
    a("s_lshl_b32 s25, s3, 5")
    a("s_add_u32 s24, s24, s25")
    a("s_add_u32 s24, s24, 0x%x" % WS_UF)
    a("s_waitcnt vmcnt(1)")
    a("ds_write_b128 v6, v[8:11]")
    a("s_waitcnt vmcnt(0)")
    a("ds_write_b128 v6, v[12:15] offset:%d" % (32 * UTP))
    a("s_waitcnt lgkmcnt(0)")
    a("s_barrier")
    for p in range(2):
        for h in range(2):
            a("ds_read_b64_tr_b16 v[%d:%d], v4 offset:%d" % (8 + 4 * p + 2 * h, 9 + 4 * p + 2 * h, (8 * p + 4 * h) * UTP))
    a("s_waitcnt lgkmcnt(2)")
    a("buffer_store_dwordx4 v[8:11], v7, s[16:19], s24 offen")
    a("s_waitcnt lgkmcnt(0)")
    a("buffer_store_dwordx4 v[12:15], v7, s[16:19], s24 offen offset:16")
    trace_end(a, 0)
    a("s_endpgm")


def gen_kgen(a, first_wg):
    a.c("---- kgen role: one channel per workgroup")
    a.cur = "kgen"
    if not FUSED:
        trace_begin(a)
    stamp(a)
    if first_wg:
        a("s_sub_u32 s2, s2, %d" % first_wg)
    a("s_load_dwordx4 s[28:31], s[0:1], 8")
    a("s_load_dwordx4 s[32:35], s[0:1], 24")
    a("s_load_dwordx4 s[36:39], s[0:1], 40")
    a("s_load_dwordx2 s[40:41], s[0:1], 56")
    a("s_load_dwordx2 s[4:5], s[0:1], 136")
    a("s_load_dwordx2 s[6:7], s[0:1], 80")
    a("v_lshrrev_b32 v1, 6, v0")
    a("v_and_b32 v2, 63, v0")
    a("v_readfirstlane_b32 s3, v1")
    a("v_and_b32 v3, 127, v0")
    a("v_lshlrev_b32 v4, 1, v3")
    a("s_lshl_b32 s20, s2, 8")
    a("s_lshl_b32 s25, s2, 1")
    a("v_mov_b32 v6, 0")
    a("s_waitcnt lgkmcnt(0)")
    for k in range(6):
        srd(a, 44 + 4 * k, 28 + 2 * k, 131072)
        a("buffer_load_ushort v%d, v4, s[%d:%d], s20 offen" % (10 + k, 44 + 4 * k, 47 + 4 * k))
    srd(a, 12, 40, 1024)
    a("buffer_load_ushort v16, v6, s[12:15], s25 offen")
    if "pf1" in X:
        srd(a, 68, 6, 2048 * 1792 * 2)
        a("s_lshl_b32 s26, s2, 14")
        a("v_lshlrev_b32 v5, 4, v0")
        for k in range(4):
            a("buffer_load_dwordx4 v[%d:%d], v5, s[68:71], s26 offen" % (128 + 4 * k, 131 + 4 * k))
            if k < 3:
                a("s_add_u32 s26, s26, 4096")
    srd(a, 8, 4, WS_SIZE)
    a("s_cmp_ge_u32 s3, 2")
    a("s_cselect_b32 s26, %d, %d" % (XT, YT))
    a("s_cselect_b32 s27, 0x%x, 0x%x" % (f32(16.0), f32(1.0)))
    a("s_cselect_b32 s36, 0x%x, 0x%x" % (f32(0.15915494309189535), f32(-0.15915494309189535)))
    a("v_lshlrev_b32 v8, 2, v3")
    a("v_add_u32 v8, s26, v8")
    a("v_lshlrev_b32 v28, 3, v0")
    a("v_sub_u32 v28, 2047, v28")
    a("s_mov_b32 s28, 0xffff")
    a("s_mov_b32 s29, %d" % (0x4300 - 128))
    for j in range(8):
        a("v_subrev_u32 v%d, %d, v28" % (48 + j, j))
        a("v_cvt_f32_u32 v%d, v%d" % (56 + j, 48 + j))
    for j in range(0, 8, 2):
        a("v_cvt_pk_bf16_f32 v%d, v%d, v%d" % (56 + j, 56 + j, 57 + j))
    for j in range(0, 8, 2):
        a("v_lshrrev_b32 v%d, 16, v%d" % (57 + j, 56 + j))
        a("v_and_b32 v%d, s28, v%d" % (56 + j, 56 + j))
    for j in range(8):
        a("v_subrev_u32 v%d, s29, v%d" % (56 + j, 56 + j))
    for j in range(8):
        a("v_cmp_gt_u32 vcc, 128, v%d" % (48 + j))
        a.nop(2)
        a("v_cndmask_b32 v%d, v%d, v%d, vcc" % (56 + j, 56 + j, 48 + j))
        a("v_lshlrev_b32 v%d, 2, v%d" % (56 + j, 56 + j))
    a("v_and_b32 v9, 15, v2")
    a("v_lshrrev_b32 v17, 4, v2")
    a("s_lshl_b32 s26, s3, 3")
    a("s_add_u32 s26, s26, 8")
    a("s_cmp_eq_u32 s3, 0")
    a("s_cselect_b32 s26, 0, s26")
    a("v_add_u32 v18, s26, v9")
    a("v_mul_u32_u24 v18, %d, v18" % TBP)
    a("v_lshl_add_u32 v18, v17, 4, v18")
    a("v_lshlrev_b32 v19, s3, v9")
    a("v_or_b32 v29, 8, v19")
    a("v_ffbh_u32 v29, v29")
    a("v_sub_u32 v29, 28, v29")
    a("v_lshrrev_b32 v19, v29, v19")
    a("v_lshl_add_u32 v19, v29, 3, v19")
    a("v_mul_u32_u24 v19, %d, v19" % TBP)
    a("v_lshl_add_u32 v19, v17, 4, v19")
    a("s_waitcnt vmcnt(%d)" % (4 if "pf1" in X else 0))
    for k in range(7):
        a("v_lshlrev_b32 v%d, 16, v%d" % (10 + k, 10 + k))
    a("v_mul_f32 v16, 0x%x, v16" % f32(1.4426950408889634))
    a("v_exp_f32 v16, v16")
    a.nop(1)
    bf16r(a, 16)
    a("v_mul_f32 v20, v16, v10")
    a("v_mul_f32 v21, v16, v11")
    a("v_mul_f32 v12, v16, v12")
    a("v_mul_f32 v13, v16, v13")
    a("v_mul_f32 v20, 0x%x, v20" % f32(1.4426950408889634))
    a("v_mul_f32 v21, s36, v21")
    a("v_mul_f32 v20, s27, v20")
    a("v_mul_f32 v21, s27, v21")
    a("v_mul_f32 v22, v14, v12")
    a("v_mul_f32 v23, v14, v13")
    a("v_fract_f32 v21, v21")
    a("v_exp_f32 v20, v20")
    a("v_fma_f32 v22, -v15, v13, v22")
    a("v_fma_f32 v23, v15, v12, v23")
    a("v_cos_f32 v24, v21")
    a("v_sin_f32 v25, v21")
    a("v_mov_b32 v26, 1.0")
    a("v_mov_b32 v27, 0")
    a("v_mul_f32 v24, v20, v24")
    a("v_mul_f32 v25, v20, v25")
    a("s_cmp_ge_u32 s3, 2")
    a("s_cbranch_scc0 L_kg_y")
    a("v_mov_b32 v26, v22")
    a("v_mov_b32 v27, v23")
    a.lab("L_kg_y")

    def cmul(dst, x, w):
        a("v_pk_mul_f32 v[30:31], v[%d:%d], v[%d:%d] op_sel:[0,0] op_sel_hi:[1,0]" % (x, x + 1, w, w + 1))
        a("v_pk_fma_f32 v[%d:%d], v[%d:%d], v[%d:%d], v[30:31] op_sel:[1,1,0] op_sel_hi:[0,1,1] neg_lo:[1,0,0]" %
          (dst, dst + 1, x, x + 1, w, w + 1))

    W = [24, 32, 34, 36]
    for k in range(1, 4):
        cmul(W[k], W[k - 1], W[k - 1])
    for row in range(41):
        a("v_cvt_pk_bf16_f32 v%d, v26, v27" % (40 + (row & 3)))
        if row < 40:
            cmul(26, 26, W[0] if row < 16 else (W[1] if row < 24 else (W[2] if row < 32 else W[3])))
        if row & 1:
            a("ds_write2_b32 v8, v%d, v%d offset0:%d offset1:%d" % (40 + ((row - 1) & 3), 40 + (row & 3), 0, TBP // 4))
            if row < 40:
                a("v_add_u32 v8, %d, v8" % (2 * TBP))
        elif row == 40:
            a("ds_write_b32 v8, v%d" % (40 + (row & 3)))
    a("s_waitcnt lgkmcnt(0)")
    a("s_barrier")
    stamp(a)
    for kap in range(8):
        a("ds_read_b128 v[%d:%d], v18 offset:%d" % (64 + 8 * kap, 67 + 8 * kap, XT + 64 * kap))
        a("ds_read_b128 v[%d:%d], v19 offset:%d" % (68 + 8 * kap, 71 + 8 * kap, YT + 64 * kap))
    a("s_lshl_b32 s26, s3, 7")
    a("s_add_u32 s26, s26, 128")
    a("s_cmp_eq_u32 s3, 0")
    a("s_cselect_b32 s26, 0, s26")
    a("s_mov_b32 s27, 128")
    a("s_cselect_b32 s27, 256, s27")
    a("s_cmp_eq_u32 s3, 3")
    a("s_cselect_b32 s27, 129, s27")
    a("v_lshl_add_u32 v13, v17, 6, v9")
    a("v_add_u32 v15, s26, v13")
    a("v_lshlrev_b32 v15, 2, v15")
    for kap in range(8):
        a("s_waitcnt lgkmcnt(%d)" % (14 - 2 * kap))
        c0 = "0" if kap == 0 else "v[44:47]"
        a("v_mfma_f32_16x16x32_bf16 v[44:47], v[%d:%d], v[%d:%d], %s" % (64 + 8 * kap, 67 + 8 * kap, 68 + 8 * kap, 71 + 8 * kap, c0))
    a("s_lshl_b32 s22, s2, 12")
    a("s_add_u32 s22, s22, 0x%x" % WS_RK)
    a("v_lshlrev_b32 v3, 4, v0")
    a.nop(5)
    for reg in range(4):
        a("v_add_u32 v14, %d, v13" % (16 * reg))
        a("v_cmp_gt_u32 vcc, s27, v14")
        a("s_and_saveexec_b64 s[30:31], vcc")
        a("ds_write_b32 v15, v%d offset:%d" % (44 + reg, KT + 64 * reg))
        a("s_mov_b64 exec, s[30:31]")
    if FUSED:
        poll_flags(a, "cv")
    a("s_waitcnt lgkmcnt(0)")
    a("s_barrier")
    stamp(a)
    if FUSED:
        return
    for j in range(8):
        a("ds_read_b32 v%d, v%d offset:%d" % (64 + j, 56 + j, KT))
    a("s_waitcnt lgkmcnt(0)")
    for q in range(4):
        a("v_cvt_pk_bf16_f32 v%d, v%d, v%d" % (8 + q, 64 + 2 * q, 65 + 2 * q))
    a("buffer_store_dwordx4 v[8:11], v3, s[8:11], s22 offen")
    stamp(a)
    dump_stamps(a, 77, 64)
    trace_end(a, 0)
    a("s_endpgm")


CP = 4416
UB = 8 * CP
UP = 144
K2_LDS = 49152


def gen_conv(a, first_wg):
    a.c("---- conv role: one channel per workgroup")
    a.cur = "conv"
    if not FUSED:
        trace_begin(a)
    stamp(a)
    if FUSED:
        for j in range(8):
            a("ds_read_b32 v%d, v%d offset:%d" % (64 + j, 56 + j, KT))
    if first_wg:
        a("s_sub_u32 s2, s2, %d" % first_wg)
    a("s_load_dwordx2 s[4:5], s[0:1], 136")
    a("s_load_dwordx2 s[6:7], s[0:1], 96")
    a("s_load_dwordx2 s[42:43], s[0:1], 64")
    a("v_lshrrev_b32 v1, 6, v0")
    a("v_and_b32 v2, 63, v0")
    a("v_readfirstlane_b32 s3, v1")
    a("s_lshl_b32 s25, s2, 1")
    a("v_mov_b32 v6, 0")
    a("v_lshlrev_b32 v3, 4, v0")
    a("s_lshl_b32 s21, s2, 12")
    a("s_add_u32 s20, s21, 0x%x" % WS_RK)
    a("s_add_u32 s22, s21, 0x%x" % WS_UF)
    a("s_add_u32 s23, s21, 0x%x" % WS_AF)
    a("s_waitcnt lgkmcnt(0)")
    if not FUSED:
        a("s_add_u32 s12, s4, s20")
        a("s_addc_u32 s13, s5, 0")
        a("s_mov_b32 s14, 4096")
        a("s_mov_b32 s15, 0x00020000")
        a("buffer_load_dwordx4 v[8:11], v3, s[12:15], 0 offen")
        a("buffer_load_dwordx4 v[12:15], v3, s[12:15], 0 offen offset:16")
    else:
        for q in range(4):
            a("v_cvt_pk_bf16_f32 v%d, v%d, v%d" % (8 + q, 64 + 2 * q, 65 + 2 * q))
        a("ds_write_b128 v3, v[8:11]")
    srd(a, 8, 4, WS_SIZE)
    a("buffer_load_dwordx4 v[152:155], v3, s[8:11], s22 offen")
    srd(a, 16, 42, 1024)
    a("v_lshlrev_b32 v7, 5, v0")
    a("s_mov_b32 s24, 0x%x" % WS_GT)
    a("buffer_load_dwordx4 v[156:159], v7, s[8:11], s24 offen")
    a("buffer_load_dwordx4 v[160:163], v7, s[8:11], s24 offen offset:16")
    a("buffer_load_ushort v164, v6, s[16:19], s25 offen")
    NPF = 0
    if "pf2" in X:
        NPF = 4
        srd(a, 68, 6, 2048 * 1792 * 2)
        a("s_lshl_b32 s26, s2, 14")
        for k in range(4):
            a("buffer_load_dwordx4 v[%d:%d], v3, s[68:71], s26 offen" % (128 + 4 * k, 131 + 4 * k))
            if k < 3:
                a("s_add_u32 s26, s26, 4096")
    for k in range(4):
        a("v_mov_b32 v%d, 0" % (48 + k))
    a("ds_write_b128 v3, v[48:51] offset:%d" % UB)
    a("v_lshrrev_b32 v4, 3, v2")
    a("v_mul_u32_u24 v4, %d, v4" % CP)
    a("v_and_b32 v7, 7, v2")
    a("v_lshl_add_u32 v4, v7, 4, v4")
    a("v_add_u32 v4, 4096, v4")
    a("v_add_u32 v5, %d, v3" % (UB + 4096))
    a("s_cmp_eq_u32 s3, 0")
    a("s_cbranch_scc1 L_cv_z0")
    a("s_cmp_eq_u32 s3, 1")
    a("s_cbranch_scc0 L_cv_z1")
    a("ds_write_b128 v4, v[48:51]")
    a("s_branch L_cv_z1")
    a.lab("L_cv_z0")
    a("s_mov_b64 exec, 0xffffffff")
    a("ds_write_b128 v5, v[48:51]")
    a("s_mov_b64 exec, -1")
    a.lab("L_cv_z1")
    a("v_lshrrev_b32 v6, 3, v0")
    a("v_mul_u32_u24 v6, %d, v6" % UP)
    a("v_and_b32 v7, 7, v0")
    a("v_lshl_add_u32 v6, v7, 4, v6")
    a("v_and_b32 v20, 31, v2")
    a("v_lshrrev_b32 v21, 5, v2")
    a("v_and_b32 v22, 7, v20")
    a("v_sub_u32 v22, 7, v22")
    a("v_mul_u32_u24 v22, %d, v22" % CP)
    a("v_lshrrev_b32 v23, 3, v20")
    a("v_sub_u32 v23, v21, v23")
    a("v_lshl_add_u32 v22, v23, 4, v22")
    a("s_lshl_b32 s28, s3, 10")
    a("s_sub_u32 s28, %d, s28" % (16 * 255 - 128 * 7 - 64))
    a("v_add_u32 v18, s28, v22")
    a("v_mul_u32_u24 v23, %d, v20" % UP)
    a("v_lshl_add_u32 v23, v21, 4, v23")
    a("s_mul_i32 s29, s3, %d" % (8 * UP))
    a("s_sub_u32 s29, %d, s29" % (UB + UP * 25))
    a("v_add_u32 v19, s29, v23")
    if FUSED:
        a("s_waitcnt lgkmcnt(0)")
        a("s_barrier")
        a("ds_read_b128 v[12:15], v3 offset:16")
        a("s_waitcnt lgkmcnt(0)")
    else:
        a("s_waitcnt vmcnt(%d)" % (4 + NPF))
    for k in range(1, 8):
        a("v_mov_b32 v%d, v%d" % (65 + k, 8 + k))
    for k in range(7):
        a("v_alignbit_b32 v%d, v%d, v%d, 16" % (74 + k, 9 + k, 8 + k))
    for k in range(1, 7):
        a("v_alignbit_b32 v%d, v%d, v%d, 16" % (83 + k, 9 + k, 8 + k))
    src = {0: 8, 2: 66, 4: 10, 6: 68, 1: 74, 3: 84, 5: 76, 7: 86}
    for s in range(1 if FUSED else 0, 8):
        a("ds_write_b128 v3, v[%d:%d] offset:%d" % (src[s], src[s] + 3, s * CP))
    a("s_waitcnt vmcnt(%d)" % (3 + NPF))
    a("ds_write_b128 v6, v[152:155] offset:%d" % (UB + 32 * UP))
    a("s_waitcnt lgkmcnt(0)")
    a("s_barrier")
    stamp(a)
    ACC = [64, 80]
    FA = [24 + 4 * k for k in range(10)]
    FB = [[96 + 4 * k for k in range(4)], [112 + 4 * k for k in range(4)]]
    free = list(range(10))
    cur = {}

    def loadA(dl, rel):
        sl = free.pop(0)
        a("ds_read_b128 v[%d:%d], v18 offset:%d" % (FA[sl], FA[sl] + 3, 128 * (7 - dl) + 64 - 2 * rel))
        return sl

    def loadB(dl):
        for k in range(4):
            a("ds_read_b128 v[%d:%d], v19 offset:%d" % (FB[dl & 1][k], FB[dl & 1][k] + 3, UP * (7 - dl) + 32 * k))

    for rel in (-48, -32, -16, 0, 16, 32):
        cur[rel] = loadA(0, rel)
    loadB(0)
    for dl in range(8):
        nxt = {}
        if dl < 7:
            nxt[-48] = cur[16]
            nxt[-32] = cur[32]
            for rel in (-16, 0, 16, 32):
                nxt[rel] = loadA(dl + 1, rel)
            loadB(dl + 1)
            a("s_waitcnt lgkmcnt(8)")
        else:
            a("s_waitcnt lgkmcnt(0)")
        for k in range(4):
            for beta in range(2):
                rel = 32 * beta - 16 * k
                c = "0" if (dl == 0 and k == 0) else "v[%d:%d]" % (ACC[beta], ACC[beta] + 15)
                a("v_mfma_f32_32x32x16_bf16 v[%d:%d], v[%d:%d], v[%d:%d], %s" %
                  (ACC[beta], ACC[beta] + 15, FA[cur[rel]], FA[cur[rel]] + 3, FB[dl & 1][k], FB[dl & 1][k] + 3, c))
        for rel in (-48, -32, -16, 0):
            free.append(cur[rel])
        cur = nxt
    a("v_mul_u32_u24 v24, 272, v20")
    a("v_lshl_add_u32 v24, v21, 4, v24")
    a("s_mul_i32 s28, s3, 8704")
    a("v_add_u32 v24, s28, v24")
    a("v_lshrrev_b32 v25, 3, v0")
    a("v_mul_u32_u24 v25, 272, v25")
    a("v_and_b32 v26, 7, v0")
    a("v_lshl_add_u32 v25, v26, 5, v25")
    a("s_mov_b32 s27, 0xffff0000")
    a("s_waitcnt vmcnt(0)")
    a("s_barrier")
    if "cv3" in X:
        trace_end(a, 1)
        a("s_endpgm")
    stamp(a)
    a.nop(4)
    for beta in range(2):
        for rq in range(4):
            a("ds_write_b128 v24, v[%d:%d] offset:%d" % (ACC[beta] + 4 * rq, ACC[beta] + 4 * rq + 3, (32 * beta + 8 * rq) * 4))
    a("v_lshlrev_b32 v164, 16, v164")
    a("v_mov_b32 v165, v164")
    for q in range(4):
        a("v_lshlrev_b32 v%d, 16, v%d" % (128 + 2 * q, 152 + q))
        a("v_and_b32 v%d, s27, v%d" % (129 + 2 * q, 152 + q))
    for q in range(4):
        a("v_pk_mul_f32 v[%d:%d], v[%d:%d], v[164:165]" % (128 + 2 * q, 129 + 2 * q, 128 + 2 * q, 129 + 2 * q))
    a("s_waitcnt lgkmcnt(0)")
    a("s_barrier")
    for w in range(4):
        a("ds_read_b128 v[%d:%d], v25 offset:%d" % (32 + 8 * w, 35 + 8 * w, w * 8704))
        a("ds_read_b128 v[%d:%d], v25 offset:%d" % (36 + 8 * w, 39 + 8 * w, w * 8704 + 16))
    a("s_waitcnt lgkmcnt(4)")
    for q in range(4):
        a("v_pk_add_f32 v[%d:%d], v[%d:%d], v[%d:%d]" % (32 + 2 * q, 33 + 2 * q, 32 + 2 * q, 33 + 2 * q, 40 + 2 * q, 41 + 2 * q))
    a("s_waitcnt lgkmcnt(0)")
    for q in range(4):
        a("v_pk_add_f32 v[%d:%d], v[%d:%d], v[%d:%d]" % (48 + 2 * q, 49 + 2 * q, 48 + 2 * q, 49 + 2 * q, 56 + 2 * q, 57 + 2 * q))
    for q in range(4):
        a("v_pk_add_f32 v[%d:%d], v[%d:%d], v[%d:%d]" % (32 + 2 * q, 33 + 2 * q, 32 + 2 * q, 33 + 2 * q, 48 + 2 * q, 49 + 2 * q))
    for q in range(4):
        a("v_pk_add_f32 v[%d:%d], v[%d:%d], v[%d:%d]" % (32 + 2 * q, 33 + 2 * q, 32 + 2 * q, 33 + 2 * q, 128 + 2 * q, 129 + 2 * q))
    for q in range(4):
        a("v_pk_mul_f32 v[%d:%d], v[%d:%d], v[%d:%d]" % (32 + 2 * q, 33 + 2 * q, 32 + 2 * q, 33 + 2 * q, 156 + 2 * q, 157 + 2 * q))
    for q in range(4):
        a("v_cvt_pk_bf16_f32 v%d, v%d, v%d" % (72 + q, 32 + 2 * q, 33 + 2 * q))
    a("buffer_store_dwordx4 v[72:75], v3, s[8:11], s23 offen")
    if "pf2e" in X:
        srd(a, 68, 6, 2048 * 1792 * 2)
        a("s_lshl_b32 s26, s2, 14")
        for k in range(4):
            a("buffer_load_dwordx4 v[%d:%d], v3, s[68:71], s26 offen" % (128 + 4 * k, 131 + 4 * k))
            if k < 3:
                a("s_add_u32 s26, s26, 4096")
    stamp(a)
    dump_stamps(a, 77, 64)
    trace_end(a, 0 if FUSED else 1)
    a("s_endpgm")


TP = 144
RED = 49152
K3_LDS = 98304 + 64 * TP


def gen_gemm(a, which):
    g1 = (which == 1)
    NOCT = 256 if g1 else 224
    S = 32 if g1 else 28
    NS = 6 if g1 else 8
    for tok in X.split(","):
        if tok.startswith("ns%d=" % which):
            NS = int(tok[4:])
    PW = 3584 if g1 else 4096
    WOFF = 80 if g1 else 96
    WBYTES = 2048 * 1792 * 2
    DOFF = WS_HF if g1 else WS_GF
    TPITCH = NOCT * 512
    NQ = 28 if g1 else 32
    TBASE = 98304
    a.c("---- gemm%d role" % which)
    a.cur = "g%d" % which
    trace_begin(a)
    stamp(a)
    a("s_load_dwordx2 s[4:5], s[0:1], %d" % WOFF)
    a("s_load_dwordx2 s[6:7], s[0:1], 136")
    a("s_load_dwordx2 s[36:37], s[0:1], %d" % (88 if g1 else 104))
    if not g1:
        a("s_load_dwordx2 s[38:39], s[0:1], 120")
    a("v_lshrrev_b32 v1, 6, v0")
    a("v_and_b32 v2, 63, v0")
    a("v_readfirstlane_b32 s3, v1")
    a("s_and_b32 s20, s2, 7")
    a("s_lshr_b32 s21, s2, 3")
    a("s_mul_i32 s20, s20, %d" % NQ)
    a("s_add_u32 s20, s20, s21")
    a("s_lshr_b32 s21, s20, 3")
    a("s_and_b32 s22, s20, 7")
    a("s_mul_i32 s23, s22, %d" % (2 * TPITCH))
    a("s_mul_i32 s24, s3, %d" % (S * 1024))
    a("s_add_u32 s23, s23, s24")
    a("s_add_u32 s23, s23, 0x%x" % DOFF)
    a("v_lshlrev_b32 v3, 4, v2")
    a("v_add_u32 v4, %d, v3" % TPITCH)
    a("v_lshrrev_b32 v5, 3, v2")
    a("v_and_b32 v6, 7, v2")
    a("v_lshlrev_b32 v7, 1, v5")
    a("v_and_b32 v7, 4, v7")
    a("v_xor_b32 v6, v6, v7")
    a("v_mul_u32_u24 v5, %d, v5" % PW)
    a("v_lshl_add_u32 v5, v6, 4, v5")
    a("s_lshl_b32 s24, s21, 7")
    a("v_add_u32 v5, s24, v5")
    a("s_mul_i32 s25, s3, %d" % (S * 16 * PW))
    a("s_mul_i32 s26, s3, %d" % (NS * 2048))
    a("s_waitcnt lgkmcnt(0)")
    srd(a, 8, 4, WBYTES)
    srd(a, 12, 6, WS_SIZE)
    ACC = [[16, 32], [48, 64]]
    DF = [80 + 8 * k for k in range(NS)]
    WFB = 80 + 8 * NS
    XR = WFB + 16

    a("s_and_b32 s48, s21, 3")
    a("s_lshl2_add_u32 s48, s22, s48")
    if "norot" in X:
        a("s_mov_b32 s48, 0")
    a("s_sub_u32 s49, s48, %d" % S)
    a("s_cmp_ge_u32 s48, %d" % S)
    a("s_cselect_b32 s48, s49, s48")

    def issue(st):
        sl = st % NS
        a("s_mul_i32 s27, s48, %d" % (16 * PW))
        a("s_add_u32 m0, s26, %d" % (sl * 2048))
        a("s_add_u32 s27, s27, s25")
        if "wreg" in X:
            a("buffer_load_dwordx4 v[%d:%d], v5, s[8:11], s27 offen" % (WFB + 8 * (st & 1), WFB + 8 * (st & 1) + 3))
        else:
            a("buffer_load_dwordx4 v5, s[8:11], s27 offen lds" + WH)
        a("s_add_u32 m0, s26, %d" % (sl * 2048 + 1024))
        a("s_add_u32 s27, s27, %d" % (8 * PW))
        a("s_lshl_b32 s28, s48, 10")
        if "wreg" in X:
            a("buffer_load_dwordx4 v[%d:%d], v5, s[8:11], s27 offen" % (WFB + 8 * (st & 1) + 4, WFB + 8 * (st & 1) + 7))
        else:
            a("buffer_load_dwordx4 v5, s[8:11], s27 offen lds" + WH)
        a("s_add_u32 s28, s28, s23")
        a("s_add_u32 s48, s48, 1")
        for t in range(2):
            r = DF[sl] + 4 * t
            a("buffer_load_dwordx4 v[%d:%d], v%d, s[12:15], s28 offen" % (r, r + 3, 3 + t) + DH)
        a("s_cmp_lg_u32 s48, %d" % S)
        a("s_cselect_b32 s48, s48, 0")

    if g1 and FUSED:
        a("s_mov_b32 s51, s48")
        for st in range(NS):
            a("s_mul_i32 s27, s51, %d" % (16 * PW))
            a("s_add_u32 s27, s27, s25")
            a("buffer_load_dwordx4 v[%d:%d], v5, s[8:11], s27 offen" % (DF[st], DF[st] + 3))
            a("s_add_u32 s27, s27, %d" % (8 * PW))
            a("s_add_u32 s51, s51, 1")
            a("buffer_load_dwordx4 v[%d:%d], v5, s[8:11], s27 offen" % (DF[st] + 4, DF[st] + 7))
            a("s_cmp_lg_u32 s51, %d" % S)
            a("s_cselect_b32 s51, s51, 0")
        poll_flags(a, "g1")
        a("s_waitcnt vmcnt(0)")
        a("s_barrier")
    issue(0)
    issue(1)
    srd(a, 40, 36, 3584 if g1 else 4096)
    if not g1:
        srd(a, 44, 38, 2 * MB)
    for st in range(2, NS):
        issue(st)
    a("v_lshrrev_b32 v8, 4, v2")
    a("v_and_b32 v9, 15, v2")
    a("v_lshrrev_b32 v10, 2, v9")
    a("v_and_b32 v11, 3, v9")
    a("v_lshrrev_b32 v12, 1, v8")
    a("v_lshl_add_u32 v12, v12, 3, v10")
    a("v_lshlrev_b32 v12, 7, v12")
    a("v_and_b32 v13, 1, v8")
    a("v_lshlrev_b32 v13, 1, v13")
    a("v_lshrrev_b32 v14, 1, v11")
    a("v_add_u32 v13, v13, v14")
    a("v_lshlrev_b32 v14, 1, v10")
    a("v_and_b32 v14, 4, v14")
    a("v_xor_b32 v13, v13, v14")
    a("v_lshl_add_u32 v12, v13, 4, v12")
    a("v_and_b32 v14, 1, v11")
    a("v_lshl_add_u32 v12, v14, 3, v12")
    a("v_add_u32 v12, s26, v12")
    a("v_xor_b32 v13, 64, v12")
    a("s_lshr_b32 s29, s3, 1")
    a("s_and_b32 s30, s3, 1")
    a("v_and_b32 v6, 31, v2")
    a("v_lshrrev_b32 v7, 5, v2")
    NX = 0
    if g1:
        a("s_lshl_b32 s31, s21, 7")
        a("s_lshl_b32 s32, s29, 6")
        a("s_add_u32 s31, s31, s32")
        a("v_lshlrev_b32 v14, 3, v7")
        for rq in range(4):
            a("buffer_load_dwordx2 v[%d:%d], v14, s[40:43], s31 offen offset:%d" % (XR + 2 * rq, XR + 2 * rq + 1, 16 * rq))
        NX = 4
    else:
        a("s_lshl_b32 s31, s22, 18")
        a("s_lshl_b32 s32, s21, 7")
        a("s_add_u32 s31, s31, s32")
        a("s_add_u32 s31, s31, 0x%x" % WS_AF)
        a("s_add_u32 s32, s31, 131072")
        a("v_lshrrev_b32 v14, 3, v0")
        a("v_and_b32 v15, 7, v0")
        a("v_lshlrev_b32 v15, 4, v15")
        a("v_lshl_add_u32 v15, v14, 12, v15")
        a("buffer_load_dwordx4 v[%d:%d], v15, s[12:15], s31 offen" % (XR, XR + 3))
        a("buffer_load_dwordx4 v[%d:%d], v15, s[12:15], s32 offen" % (XR + 4, XR + 7))
        a("s_lshl_b32 s33, s21, 6")
        a("s_lshl_b32 s34, s30, 5")
        a("s_add_u32 s33, s33, s34")
        a("v_add_u32 v14, s33, v6")
        a("v_lshlrev_b32 v15, 2, v14")
        a("s_mov_b32 s34, 0x%x" % WS_GT)
        a("buffer_load_dword v%d, v15, s[12:15], s34 offen" % (XR + 8))
        a("v_lshlrev_b32 v15, 1, v14")
        a("buffer_load_ushort v%d, v15, s[40:43], 0 offen" % (XR + 9))
        NX = 4
    stamp(a)

    def trreads(st):
        if "wreg" in X:
            return
        sl = st % NS
        for nu in range(2):
            for h in range(2):
                r = WFB + 8 * (st & 1) + 4 * nu + 2 * h
                a("ds_read_b64_tr_b16 v[%d:%d], v%d offset:%d" % (r, r + 1, 12 + nu, sl * 2048 + h * 512))

    def stage(st, sl, par, do_issue, wait_next, first=False):
        if wait_next is not None:
            a("s_waitcnt vmcnt(%d)" % wait_next)
            trreads2((sl + 1) % NS, par ^ 1)
            a("s_waitcnt lgkmcnt(4)")
        else:
            a("s_waitcnt lgkmcnt(0)")
        for nu in range(2):
            for t in range(2):
                wf = WFB + 8 * par + 4 * nu
                df = DF[sl] + 4 * t
                if g1:
                    acc = ACC[nu][t]
                    A_, B_ = wf, df
                else:
                    acc = ACC[t][nu]
                    A_, B_ = df, wf
                a("v_mfma_f32_32x32x16_bf16 v[%d:%d], v[%d:%d], v[%d:%d], v[%d:%d]" % (acc, acc + 15, A_, A_ + 3, B_, B_ + 3, acc, acc + 15))
        if do_issue:
            issue(sl)

    def trreads2(sl, par):
        if "wreg" in X:
            return
        for nu in range(2):
            for h in range(2):
                r = WFB + 8 * par + 4 * nu + 2 * h
                a("ds_read_b64_tr_b16 v[%d:%d], v%d offset:%d" % (r, r + 1, 12 + nu, sl * 2048 + h * 512))

    assert NS % 2 == 0
    for r in range(16, 80):
        a("v_mov_b32 v%d, 0" % r)
    NL = (S - NS) // NS
    a("s_mov_b32 s50, %d" % NL)
    a("s_waitcnt vmcnt(%d)" % (4 * (NS - 1) + NX))
    trreads2(0, 0)
    a.lab("L_g%d_loop" % which)
    for k in range(NS):
        stage(k, k, k & 1, True, 4 * (NS - 2))
    a("s_sub_u32 s50, s50, 1")
    a("s_cmp_lg_u32 s50, 0")
    a("s_cbranch_scc1 L_g%d_loop" % which)
    for st in range(NL * NS, S):
        k = st % NS
        iss = st + NS < S
        later = min(S - 1, st + NS - 1) - (st + 1)
        stage(st, k, st & 1, iss, (4 * later) if st + 1 < S else None)
    stamp(a)
    F = 80
    a("s_mov_b32 s27, 0xffff0000")
    if not g1:
        a("v_lshrrev_b32 v9, 3, v0")
        a("v_mul_u32_u24 v9, %d, v9" % TP)
        a("v_and_b32 v10, 7, v0")
        a("v_lshl_add_u32 v9, v10, 4, v9")
        a("v_add_u32 v9, %d, v9" % TBASE)
        a("s_waitcnt vmcnt(0)")
        a("ds_write_b128 v9, v[%d:%d]" % (XR, XR + 3))
        a("ds_write_b128 v9, v[%d:%d] offset:%d" % (XR + 4, XR + 7, 32 * TP))
    a("s_barrier")
    a.nop(4)
    for qd in range(4):
        acc = ACC[qd >> 1][qd & 1]
        a("s_cmp_eq_u32 s3, %d" % qd)
        a("s_cbranch_scc1 L_g%d_own%d" % (which, qd))
        a("s_sub_u32 s28, s3, %d" % (qd + 1))
        a("s_and_b32 s28, s28, 3")
        a("s_add_u32 s28, s28, %d" % (qd * 3))
        a("s_lshl_b32 s28, s28, 12")
        a("v_add_u32 v8, s28, v3")
        for rq in range(4):
            a("ds_write_b128 v8, v[%d:%d] offset:%d" % (acc + 4 * rq, acc + 4 * rq + 3, rq * 1024))
        a("s_branch L_g%d_nx%d" % (which, qd))
        a.lab("L_g%d_own%d" % (which, qd))
        for k in range(8):
            a("v_pk_add_f32 v[%d:%d], v[%d:%d], 0" % (F + 2 * k, F + 2 * k + 1, acc + 2 * k, acc + 2 * k + 1))
        a.lab("L_g%d_nx%d" % (which, qd))
    a("s_mul_i32 s28, s3, %d" % (3 * 4096))
    a("v_add_u32 v8, s28, v3")
    if g1:
        a("s_lshl_b32 s32, s22, 1")
        a("s_add_u32 s32, s32, s30")
        a("s_mul_i32 s32, s32, %d" % (224 * 512))
        a("s_lshl_b32 s33, s21, 12")
        a("s_add_u32 s32, s32, s33")
        a("s_lshl_b32 s33, s29, 11")
        a("s_add_u32 s32, s32, s33")
        a("s_add_u32 s32, s32, 0x%x" % WS_GF)
        a("v_lshlrev_b32 v11, 4, v6")
        a("v_lshl_add_u32 v11, v7, 3, v11")
    else:
        a("v_lshrrev_b32 v9, 4, v2")
        a("v_and_b32 v10, 15, v2")
        a("v_lshrrev_b32 v13, 2, v10")
        a("v_lshl_add_u32 v13, v7, 2, v13")
        a("v_mul_u32_u24 v13, %d, v13" % TP)
        a("v_and_b32 v10, 3, v10")
        a("v_lshl_add_u32 v13, v10, 3, v13")
        a("v_and_b32 v9, 1, v9")
        a("v_lshl_add_u32 v13, v9, 5, v13")
        a("s_mul_i32 s32, s29, %d" % (32 * TP))
        a("s_lshl_b32 s33, s30, 6")
        a("s_add_u32 s32, s32, s33")
        a("s_add_u32 s32, s32, %d" % TBASE)
        a("v_add_u32 v13, s32, v13")
        a("v_lshlrev_b32 v14, 10, v14")
        a("v_lshl_add_u32 v14, v7, 3, v14")
        a("s_lshl_b32 s33, s22, 7")
        a("s_lshl_b32 s34, s29, 6")
        a("s_add_u32 s33, s33, s34")
    a("s_waitcnt lgkmcnt(0)")
    a("s_barrier")
    P = 96
    for rq in range(4):
        for k in range(3):
            a("ds_read_b128 v[%d:%d], v8 offset:%d" % (P + 16 * k + 4 * rq, P + 16 * k + 4 * rq + 3, k * 4096 + rq * 1024))
    if not g1:
        for rq in range(4):
            a("ds_read_b64_tr_b16 v[%d:%d], v13 offset:%d" % (16 + 2 * rq, 17 + 2 * rq, 8 * rq * TP))
        a("v_lshlrev_b32 v%d, 16, v%d" % (XR + 9, XR + 9))
        a("v_sub_f32 v%d, 1.0, v%d" % (XR + 8, XR + 8))
        bf16r(a, XR + 8)
        a("v_mov_b32 v%d, v%d" % (XR + 11, XR + 9))
        a("v_mov_b32 v%d, v%d" % (XR + 10, XR + 9))
        a("v_mov_b32 v%d, v%d" % (XR + 9, XR + 8))
    else:
        a("s_waitcnt vmcnt(0)")
        k1 = -2.0 * 0.7978845608028654 * 1.4426950408889634
        a("v_mov_b32 v16, 0x%x" % f32(k1))
        a("v_mov_b32 v17, 0x%x" % f32(k1))
        a("v_mov_b32 v18, 0x%x" % f32(k1 * 0.044715))
        a("v_mov_b32 v19, 0x%x" % f32(k1 * 0.044715))
        a("v_mov_b32 v20, 1.0")
        a("v_mov_b32 v21, 1.0")
    nrd = 12 + (0 if g1 else 4)

    def pk(op, d, x, y):
        a("v_pk_%s_f32 v[%d:%d], v[%d:%d], v[%d:%d]" % (op, d, d + 1, x, x + 1, y, y + 1))

    def rnd(base, n, tmp):
        for k in range(n // 2):
            a("v_cvt_pk_bf16_f32 v%d, v%d, v%d" % (tmp + k, base + 2 * k, base + 2 * k + 1))
        for k in range(n // 2):
            a("v_lshlrev_b32 v%d, 16, v%d" % (base + 2 * k, tmp + k))
            a("v_and_b32 v%d, s27, v%d" % (base + 2 * k + 1, tmp + k))

    for half in range(2):
        a("s_waitcnt lgkmcnt(%d)" % (nrd - 6 * (half + 1)))
        for k in range(3):
            for e in range(4):
                pk("add", F + 8 * half + 2 * e, F + 8 * half + 2 * e, P + 16 * k + 8 * half + 2 * e)
    TM = 48
    B = 32
    if g1:
        for k in range(8):
            a("v_lshlrev_b32 v%d, 16, v%d" % (B + 2 * k, XR + k))
            a("v_and_b32 v%d, s27, v%d" % (B + 2 * k + 1, XR + k))
        for e in range(8):
            pk("add", F + 2 * e, F + 2 * e, B + 2 * e)
        for e in range(8):
            pk("mul", B + 2 * e, F + 2 * e, F + 2 * e)
        for e in range(8):
            a("v_pk_fma_f32 v[%d:%d], v[%d:%d], v[18:19], v[16:17]" % (B + 2 * e, B + 2 * e + 1, B + 2 * e, B + 2 * e + 1))
        for e in range(8):
            pk("mul", B + 2 * e, B + 2 * e, F + 2 * e)
        for j in range(16):
            a("v_exp_f32 v%d, v%d" % (B + j, B + j))
        for e in range(8):
            pk("add", B + 2 * e, B + 2 * e, 20)
        for j in range(16):
            a("v_rcp_f32 v%d, v%d" % (B + j, B + j))
        a.nop(1)
        for e in range(8):
            pk("mul", F + 2 * e, F + 2 * e, B + 2 * e)
        for k in range(8):
            a("v_cvt_pk_bf16_f32 v%d, v%d, v%d" % (TM + k, F + 2 * k, F + 2 * k + 1))
        for rq in range(4):
            a("buffer_store_dwordx2 v[%d:%d], v11, s[12:15], s32 offen offset:%d" % (TM + 2 * rq, TM + 2 * rq + 1, 512 * rq))
    else:
        for e in range(8):
            pk("add", F + 2 * e, F + 2 * e, XR + 10)
        a("s_waitcnt lgkmcnt(0)")
        for k in range(8):
            a("v_lshlrev_b32 v%d, 16, v%d" % (B + 2 * k, 16 + k))
            a("v_and_b32 v%d, s27, v%d" % (B + 2 * k + 1, 16 + k))
        for e in range(8):
            a("v_pk_fma_f32 v[%d:%d], v[%d:%d], v[%d:%d], v[%d:%d]" % (F + 2 * e, F + 2 * e + 1, F + 2 * e, F + 2 * e + 1, XR + 8, XR + 9, B + 2 * e, B + 2 * e + 1))
        for k in range(8):
            a("v_cvt_pk_bf16_f32 v%d, v%d, v%d" % (TM + k, F + 2 * k, F + 2 * k + 1))
        for rq in range(4):
            a("buffer_store_dwordx2 v[%d:%d], v14, s[44:47], s33 offen offset:%d" % (TM + 2 * rq, TM + 2 * rq + 1, 16 * rq))
    stamp(a)
    dump_stamps(a, 9)
    trace_end(a, which - (1 if FUSED else 0))
    a("s_endpgm")


def kd(name, vgpr, sgpr=102):
    acc = (vgpr + 3) // 4 * 4
    return """.amdhsa_kernel %s
  .amdhsa_next_free_vgpr %d
  .amdhsa_next_free_sgpr %d
  .amdhsa_accum_offset %d
  .amdhsa_group_segment_fixed_size 0
  .amdhsa_kernarg_size 144
  .amdhsa_user_sgpr_count 2
  .amdhsa_user_sgpr_kernarg_segment_ptr 1
  .amdhsa_system_sgpr_workgroup_id_x 1
.end_amdhsa_kernel
""" % (name, vgpr, sgpr, acc)


def main(out):
    ref = open("cdna_kernels/%s.s.ref" % NAME).read()
    head = []
    for ln in ref.splitlines():
        if ln.startswith("; @launch"):
            break
        if ln.startswith("; Override") or ln.startswith("; grid=ceil"):
            continue
        head.append(ln)
    a = A()
    K1, K2, K3 = "k1_prep_kernel", "k2_gemm1_conv_kernel", "k3_gemm2_kernel"
    if not FUSED:
        head.append("; @launch kernel=%s grid=(%d,1,1) block=(256,1,1) lds=%d" % (K1, 768, K1_LDS))
    head.append("; @launch kernel=%s grid=(%d,1,1) block=(256,1,1) lds=%d" % (K2, 224 + 512, K2_LDS))
    head.append("; @launch kernel=%s grid=(%d,1,1) block=(256,1,1) lds=%d" % (K3, 256, K3_LDS))
    a.L += head
    a.L.append('.amdgcn_target "amdgcn-amd-amdhsa--gfx950"')
    a.L.append(".text")

    def start(k):
        a.L.append(".globl %s" % k)
        a.L.append(".p2align 8")
        a.L.append(".type %s,@function" % k)
        a.lab(k)

    if not FUSED:
        start(K1)
        a("s_cmp_ge_u32 s2, 768")
        a("s_cbranch_scc1 L_k1_exit")
        a("s_cmp_ge_u32 s2, 512")
        a("s_cbranch_scc1 L_k1_prep")
        gen_kgen(a, 0)
        a.lab("L_k1_exit")
        a("s_endpgm")
        a.lab("L_k1_prep")
        gen_prep(a, 512)

    start(K2)
    a("s_cmp_ge_u32 s2, %d" % (224 + 512))
    a("s_cbranch_scc1 L_k2_exit")
    a("s_cmp_lt_u32 s2, 512")
    a("s_cbranch_scc1 L_k2_conv")
    a("s_sub_u32 s2, s2, 512")
    if "noprio" not in X:
        a("s_setprio 3")
    gen_gemm(a, 1)
    a.lab("L_k2_exit")
    a("s_endpgm")
    a.lab("L_k2_conv")
    if FUSED:
        a.cur = "conv"
        trace_begin(a)
        a("s_cmp_ge_u32 s2, 256")
        a("s_cbranch_scc1 L_k2_kgen")
        gen_prep(a, 0)
        a.lab("L_k2_kgen")
        gen_kgen(a, 0)
    gen_conv(a, 0)

    start(K3)
    a("s_cmp_ge_u32 s2, 256")
    a("s_cbranch_scc1 L_k3_exit")
    gen_gemm(a, 2)
    a.lab("L_k3_exit")
    a("s_endpgm")

    a.L.append('.section .rodata,"a"')
    for k, v in ((K1, 144), (K2, 168), (K3, 208))[1 if FUSED else 0:]:
        a.L.append(".p2align 6")
        a.L.append(kd(k, v))
    open(out, "w").write("\n".join(a.L) + "\n")


if __name__ == "__main__":
    main(sys.argv[1] if len(sys.argv) > 1 else "cdna_kernels/%s.s" % NAME)
```

```python
import struct, sys, os
X = os.environ.get("GENX", "")
GX = X
FUSED = "fuse" in X
SC = " sc1" if FUSED else ""
WH = " nt" if "wnt" in X else (" sc1" if "wsc1" in X else "")
DH = " nt" if "dnt" in X else (" sc1" if "dsc1" in X else "")

NAME = "gated_mix__ssm_conv_s4__mixer_token_mlp__prompt"

MB = 1 << 20
WS_HF = 0
WS_UF = 2 * MB
WS_GF = 4 * MB
WS_AF = 6 * MB
WS_GT = 8 * MB
WS_RK = 9 * MB
WS_SIZE = 268435456

NPREP = 64
HILO = True


def f32(x):
    return struct.unpack("<I", struct.pack("<f", x))[0]


class A:
    def __init__(self):
        self.L = []
        self.cur = ""

    def __call__(self, s):
        self.L.append("    " + s)

    def lab(self, s):
        self.L.append(s + ":")

    def nop(self, n):
        while n > 0:
            k = min(n, 16)
            self("s_nop %d" % (k - 1))
            n -= k

    def c(self, s):
        self.L.append("    ; " + s)


STAMPS = [0]
def stamp(a):
    if "stamp" not in X:
        return
    k = STAMPS[0]
    a("s_memtime s[%d:%d]" % (72 + 2 * k, 73 + 2 * k))
    STAMPS[0] += 1


def dump_stamps(a, wg, off=0):
    if "stamp" not in X:
        return
    n = STAMPS[0]
    STAMPS[0] = 0
    a("s_waitcnt vmcnt(0) lgkmcnt(0)")
    a("s_memtime s[%d:%d]" % (72 + 2 * n, 73 + 2 * n))
    n += 1
    a("s_load_dwordx2 s[96:97], s[0:1], 128")
    a("s_waitcnt lgkmcnt(0)")
    a("s_mov_b32 s98, 256")
    a("s_mov_b32 s99, 0x00020000")
    a("s_mov_b64 exec, -1")
    a("v_lshrrev_b32 v1, 6, v0")
    a("s_nop 1")
    a("v_readfirstlane_b32 s95, v1")
    a("s_cmp_lg_u32 s95, 0")
    a("s_cbranch_scc1 L_nostamp%d" % len(a.L))
    lab = "L_nostamp%d" % (len(a.L) - 1)
    a("s_cmp_lg_u32 s2, %d" % wg)
    a("s_cbranch_scc1 %s" % lab)
    a("s_mov_b64 exec, 1")
    a("v_mov_b32 v1, 0")
    for k in range(n):
        a("v_mov_b32 v2, s%d" % (72 + 2 * k))
        a("buffer_store_dword v2, v1, s[96:99], 0 offen offset:%d" % (off + 4 * k))
    a.lab(lab)


def trace_begin(a):
    if "trace" not in X:
        return
    a("s_memrealtime s[88:89]")
    a("s_memtime s[90:91]")
    a("s_mov_b32 s94, s2")
    a("s_mov_b32 s86, 0")
    if a.cur == "g1":
        a("s_add_u32 s94, s94, 512")


def trace_end(a, launch):
    if "trace" not in X:
        return
    a("s_waitcnt vmcnt(0) lgkmcnt(0)")
    a("s_memrealtime s[92:93]")
    if FUSED:
        a("s_mov_b32 s84, s86")
    else:
        a("s_memtime s[84:85]")
    a("s_load_dwordx2 s[96:97], s[0:1], 136")
    a("s_waitcnt lgkmcnt(0)")
    a("s_mov_b32 s98, 0x%x" % WS_SIZE)
    a("s_mov_b32 s99, 0x00020000")
    a("s_mov_b64 exec, -1")
    a("v_lshrrev_b32 v1, 6, v0")
    a("s_nop 1")
    a("v_readfirstlane_b32 s95, v1")
    a("s_cmp_lg_u32 s95, 0")
    a("s_cbranch_scc1 L_notr%d" % len(a.L))
    lab = "L_notr%d" % (len(a.L) - 1)
    a("s_lshl_b32 s94, s94, 4")
    a("s_add_u32 s94, s94, 0x%x" % (64 * MB + launch * 65536))
    a("s_mov_b64 exec, 1")
    a("v_mov_b32 v1, 0")
    a("v_mov_b32 v4, s88")
    a("v_mov_b32 v5, s92")
    if "hwid" in X:
        a("s_getreg_b32 s90, hwreg(HW_REG_HW_ID)")
        a("s_getreg_b32 s84, hwreg(HW_REG_XCC_ID)")
    a("v_mov_b32 v6, s90")
    a("v_mov_b32 v7, s84")
    a("buffer_store_dwordx4 v[4:7], v1, s[96:99], s94 offen")
    a.lab(lab)


def poll_flags(a, tag, sreg=72):
    a("s_cmp_lg_u32 s3, 0")
    a("s_cbranch_scc1 L_pf_done_%s" % tag)
    a("s_load_dwordx2 s[%d:%d], s[0:1], 128" % (sreg, sreg + 1))
    a("v_lshlrev_b32 v72, 2, v2")
    a("s_mov_b32 s%d, 4" % (sreg + 4))
    a("s_mov_b32 s%d, 0x40000" % (sreg + 5))
    a("s_waitcnt lgkmcnt(0)")
    a("s_mov_b32 s%d, 256" % (sreg + 2))
    a("s_mov_b32 s%d, 0x00020000" % (sreg + 3))
    a.lab("L_pf_loop_%s" % tag)
    a("buffer_load_dword v73, v72, s[%d:%d], 0 offen sc1" % (sreg, sreg + 3))
    a("s_waitcnt vmcnt(0)")
    a("v_cmp_ne_u32 vcc, s%d, v73" % (sreg + 4))
    a("s_nop 4")
    a("s_cbranch_vccz L_pf_done_%s" % tag)
    a("s_sleep %d" % (64 if "slow" in X else 4))
    a("s_sub_u32 s%d, s%d, 1" % (sreg + 5, sreg + 5))
    a("s_cmp_lg_u32 s%d, 0" % (sreg + 5))
    a("s_cbranch_scc1 L_pf_loop_%s" % tag)
    a.lab("L_pf_done_%s" % tag)
    if "trace" in X:
        a("s_memrealtime s[90:91]")
        a("s_waitcnt lgkmcnt(0)")


def srd(a, d, base, nbytes, off=0):
    if off:
        a("s_add_u32 s%d, s%d, 0x%x" % (d, base, off))
        a("s_addc_u32 s%d, s%d, 0" % (d + 1, base + 1))
    else:
        a("s_mov_b32 s%d, s%d" % (d, base))
        a("s_mov_b32 s%d, s%d" % (d + 1, base + 1))
    a("s_mov_b32 s%d, 0x%x" % (d + 2, nbytes))
    a("s_mov_b32 s%d, 0x00020000" % (d + 3))


def bf16r(a, v):
    a("v_cvt_pk_bf16_f32 v%d, v%d, v%d" % (v, v, v))
    a("v_lshlrev_b32 v%d, 16, v%d" % (v, v))


def wave_reduce(a, regs):
    assert len(regs) >= 3
    steps = ["quad_perm:[1,0,3,2] row_mask:0xf bank_mask:0xf",
             "quad_perm:[2,3,0,1] row_mask:0xf bank_mask:0xf",
             "row_half_mirror row_mask:0xf bank_mask:0xf",
             "row_mirror row_mask:0xf bank_mask:0xf",
             "row_bcast:15 row_mask:0xa bank_mask:0xf",
             "row_bcast:31 row_mask:0xc bank_mask:0xf"]
    a.nop(2)
    for st in steps:
        for r in regs:
            a("v_add_f32_dpp v%d, v%d, v%d %s" % (r, r, r, st))
    a.nop(1)


RP = 1024 + 64
UTP = 128 + 64
TBP = 528
XT = 0
YT = 41 * TBP
KT = 45056 if FUSED else 82 * TBP
K1_LDS = KT + 2576
DSTEPS = ["quad_perm:[1,0,3,2] row_mask:0xf bank_mask:0xf",
          "quad_perm:[2,3,0,1] row_mask:0xf bank_mask:0xf",
          "row_half_mirror row_mask:0xf bank_mask:0xf",
          "row_mirror row_mask:0xf bank_mask:0xf",
          "row_bcast:15 row_mask:0xa bank_mask:0xf",
          "row_bcast:31 row_mask:0xc bank_mask:0xf"]


def prep_row(R, SR):
    a = A()
    XV, T, M = R + 8, R + 16, R + 24
    GW = 24
    for q in range(4):
        a("v_lshlrev_b32 v%d, 16, v%d" % (XV + 2 * q, R + q))
        a("v_and_b32 v%d, s27, v%d" % (XV + 2 * q + 1, R + q))
    for q in range(4):
        a("v_pk_mul_f32 v[%d:%d], v[%d:%d], v[%d:%d]" % (T + 2 * q, T + 2 * q + 1, XV + 2 * q, XV + 2 * q + 1, GW + 2 * q, GW + 2 * q + 1))
    a("v_pk_add_f32 v[%d:%d], v[%d:%d], v[%d:%d]" % (M, M + 1, XV, XV + 1, XV + 2, XV + 3))
    a("v_pk_add_f32 v[%d:%d], v[%d:%d], v[%d:%d]" % (M + 2, M + 3, XV + 4, XV + 5, XV + 6, XV + 7))
    for q in range(4):
        a("v_cvt_pk_bf16_f32 v%d, v%d, v%d" % (M + 4 + q, T + 2 * q, T + 2 * q + 1))
    a("v_pk_add_f32 v[%d:%d], v[%d:%d], v[%d:%d]" % (M, M + 1, M, M + 1, M + 2, M + 3))
    for q in range(4):
        a("v_lshlrev_b32 v%d, 16, v%d" % (T + 2 * q, M + 4 + q))
        a("v_and_b32 v%d, s27, v%d" % (T + 2 * q + 1, M + 4 + q))
    a("v_add_f32 v%d, v%d, v%d" % (M, M, M + 1))
    a("v_pk_add_f32 v[%d:%d], v[%d:%d], v[%d:%d]" % (M + 2, M + 3, T, T + 1, T + 2, T + 3))
    a("v_pk_add_f32 v[%d:%d], v[%d:%d], v[%d:%d]" % (M + 4, M + 5, T + 4, T + 5, T + 6, T + 7))
    a("v_pk_add_f32 v[%d:%d], v[%d:%d], v[%d:%d]" % (M + 2, M + 3, M + 2, M + 3, M + 4, M + 5))
    a("v_add_f32 v%d, v%d, v%d" % (M + 1, M + 2, M + 3))
    a.nop(1)
    for st in DSTEPS:
        a("v_add_f32_dpp v%d, v%d, v%d %s" % (M, M, M, st))
        a("v_add_f32_dpp v%d, v%d, v%d %s" % (M + 1, M + 1, M + 1, st))
        a.nop(1)
    a("v_readlane_b32 s%d, v%d, 63" % (SR, M))
    a("v_readlane_b32 s%d, v%d, 63" % (SR + 1, M + 1))
    a.nop(2)
    G = M + 10
    a("v_mul_f32 v%d, s%d, v60" % (M + 2, SR))
    a("v_mul_f32 v%d, s%d, v60" % (M + 3, SR))
    a("v_mov_b32 v%d, s%d" % (G, SR + 1))
    for q in range(4):
        a("v_pk_add_f32 v[%d:%d], v[%d:%d], v[%d:%d] neg_lo:[0,1] neg_hi:[0,1]" % (T + 2 * q, T + 2 * q + 1, XV + 2 * q, XV + 2 * q + 1, M + 2, M + 3))
    a("v_pk_mul_f32 v[%d:%d], v[%d:%d], v[%d:%d]" % (M + 4, M + 5, T, T + 1, T, T + 1))
    a("v_pk_mul_f32 v[%d:%d], v[%d:%d], v[%d:%d]" % (M + 6, M + 7, T + 2, T + 3, T + 2, T + 3))
    a("v_pk_fma_f32 v[%d:%d], v[%d:%d], v[%d:%d], v[%d:%d]" % (M + 4, M + 5, T + 4, T + 5, T + 4, T + 5, M + 4, M + 5))
    a("v_pk_fma_f32 v[%d:%d], v[%d:%d], v[%d:%d], v[%d:%d]" % (M + 6, M + 7, T + 6, T + 7, T + 6, T + 7, M + 6, M + 7))
    bf16r(a, G)
    a("v_pk_add_f32 v[%d:%d], v[%d:%d], v[%d:%d]" % (M + 4, M + 5, M + 4, M + 5, M + 6, M + 7))
    a("v_mul_f32 v%d, 0x%x, v%d" % (G, f32(-1.4426950408889634), G))
    a("v_add_f32 v%d, v%d, v%d" % (M + 4, M + 4, M + 5))
    a("v_exp_f32 v%d, v%d" % (G, G))
    bf16r(a, M + 2)
    for k, st in enumerate(DSTEPS):
        a("v_add_f32_dpp v%d, v%d, v%d %s" % (M + 4, M + 4, M + 4, st))
        if k == 0:
            a("v_add_f32 v%d, 1.0, v%d" % (G, G))
            a("v_mov_b32 v%d, v%d" % (M + 3, M + 2))
        elif k == 1:
            a("v_rcp_f32 v%d, v%d" % (G, G))
            a.nop(1)
        else:
            a.nop(2)
    a("v_readlane_b32 s%d, v%d, 63" % (SR + 2, M + 4))
    for q in range(4):
        a("v_pk_add_f32 v[%d:%d], v[%d:%d], v[%d:%d] neg_lo:[0,1] neg_hi:[0,1]" % (XV + 2 * q, XV + 2 * q + 1, XV + 2 * q, XV + 2 * q + 1, M + 2, M + 3))
    a("v_mul_f32 v%d, s%d, v60" % (M + 4, SR + 2))
    for q in range(4):
        a("v_cvt_pk_bf16_f32 v%d, v%d, v%d" % (T + q, XV + 2 * q, XV + 2 * q + 1))
    bf16r(a, M + 4)
    bf16r(a, G)
    a("v_add_f32 v%d, v%d, v61" % (M + 4, M + 4))
    for q in range(4):
        a("v_lshlrev_b32 v%d, 16, v%d" % (XV + 2 * q, T + q))
        a("v_and_b32 v%d, s27, v%d" % (XV + 2 * q + 1, T + q))
    bf16r(a, M + 4)
    a("v_sqrt_f32 v%d, v%d" % (M + 4, M + 4))
    a.nop(1)
    bf16r(a, M + 4)
    a("v_rcp_f32 v%d, v%d" % (M + 4, M + 4))
    a.nop(1)
    a("v_mov_b32 v%d, v%d" % (M + 5, M + 4))
    for q in range(4):
        a("v_pk_mul_f32 v[%d:%d], v[%d:%d], v[%d:%d]" % (XV + 2 * q, XV + 2 * q + 1, XV + 2 * q, XV + 2 * q + 1, M + 4, M + 5))
    for q in range(4):
        a("v_cvt_pk_bf16_f32 v%d, v%d, v%d" % (T + q, XV + 2 * q, XV + 2 * q + 1))
    return a.L, T, G


def gen_prep(a, first_wg):
    a.c("---- prep role: wave handles 2 rows, WG = 8 rows")
    a.cur = "prep"
    if not FUSED:
        trace_begin(a)
    stamp(a)
    if first_wg:
        a("s_sub_u32 s2, s2, %d" % first_wg)
    a("s_load_dwordx2 s[4:5], s[0:1], 0")
    a("s_load_dwordx2 s[6:7], s[0:1], 112")
    a("s_load_dwordx2 s[8:9], s[0:1], 136")
    a("v_lshrrev_b32 v1, 6, v0")
    a("v_and_b32 v2, 63, v0")
    a("v_readfirstlane_b32 s3, v1")
    a("v_lshlrev_b32 v3, 4, v2")
    a("s_lshl_b32 s24, s2, 3")
    a("s_lshl_b32 s25, s3, 1")
    a("s_add_u32 s24, s24, s25")
    a("s_lshl_b32 s25, s24, 10")
    a("s_mov_b32 s27, 0xffff0000")
    a("s_waitcnt lgkmcnt(0)")
    srd(a, 12, 4, 2 * MB)
    srd(a, 16, 6, 1024)
    R0, R1 = 64, 104
    a("buffer_load_dwordx4 v[%d:%d], v3, s[12:15], s25 offen" % (R0, R0 + 3))
    a("buffer_load_dwordx4 v[%d:%d], v3, s[12:15], s25 offen offset:1024" % (R1, R1 + 3))
    a("buffer_load_dwordx4 v[12:15], v3, s[16:19], 0 offen")
    a("s_lshr_b32 s40, s2, 3")
    a("s_and_b32 s41, s2, 7")
    a("s_lshl_b32 s42, s40, 16")
    a("s_lshl_b32 s43, s41, 7")
    a("s_add_u32 s42, s42, s43")
    a("v_lshrrev_b32 v44, 3, v0")
    a("v_and_b32 v45, 7, v0")
    a("v_lshlrev_b32 v43, 10, v44")
    a("v_lshl_add_u32 v43, v45, 4, v43")
    a("buffer_load_dwordx4 v[32:35], v43, s[12:15], s42 offen")
    a("s_add_u32 s43, s42, 32768")
    a("buffer_load_dwordx4 v[36:39], v43, s[12:15], s43 offen")
    a("v_mul_u32_u24 v40, %d, v44" % UTP)
    a("v_lshl_add_u32 v40, v45, 4, v40")
    a("v_and_b32 v44, 15, v2")
    a("v_lshrrev_b32 v41, 2, v44")
    a("s_lshl_b32 s44, s3, 4")
    a("v_add_u32 v41, s44, v41")
    a("v_mul_u32_u24 v41, %d, v41" % UTP)
    a("v_and_b32 v44, 3, v44")
    a("v_lshl_add_u32 v41, v44, 3, v41")
    a("v_lshrrev_b32 v44, 4, v2")
    a("v_lshl_add_u32 v41, v44, 5, v41")
    a("v_lshlrev_b32 v42, 12, v2")
    a("s_lshl_b32 s44, s41, 18")
    a("s_lshl_b32 s45, s40, 7")
    a("s_add_u32 s44, s44, s45")
    a("s_lshl_b32 s45, s3, 5")
    a("s_add_u32 s44, s44, s45")
    a("s_add_u32 s44, s44, 0x%x" % WS_UF)
    srd(a, 20, 8, WS_SIZE)
    a("s_mul_i32 s26, s3, %d" % (2 * RP))
    a("v_add_u32 v4, s26, v3")
    a("v_and_b32 v5, 15, v2")
    a("v_lshrrev_b32 v6, 2, v5")
    a("v_mul_u32_u24 v6, %d, v6" % RP)
    a("v_and_b32 v5, 3, v5")
    a("v_lshl_add_u32 v6, v5, 3, v6")
    a("v_lshrrev_b32 v5, 4, v2")
    a("v_lshl_add_u32 v6, v5, 5, v6")
    a("s_lshl_b32 s26, s3, 8")
    a("v_add_u32 v6, s26, v6")
    a("v_lshrrev_b32 v7, 5, v2")
    a("s_lshl_b32 s26, s3, 2")
    a("v_add_u32 v7, s26, v7")
    a("v_lshlrev_b32 v7, 17, v7")
    a("v_and_b32 v5, 31, v2")
    a("v_lshl_add_u32 v7, v5, 4, v7")
    a("s_lshl_b32 s28, s2, 9")
    a("s_add_u32 s29, s28, %d" % (2 * 131072))
    a("v_mov_b32 v60, 0x%x" % f32(1.0 / 512))
    a("v_mov_b32 v61, 0x%x" % f32(1e-5))
    a("s_lshl_b32 s30, s24, 2")
    a("s_add_u32 s30, s30, 0x%x" % WS_GT)
    a("v_mov_b32 v8, 0")
    a("s_waitcnt vmcnt(2)")
    stamp(a)
    for q in range(4):
        a("v_lshlrev_b32 v%d, 16, v%d" % (24 + 2 * q, 12 + q))
        a("v_and_b32 v%d, s27, v%d" % (25 + 2 * q, 12 + q))
    L0, T0, G0 = prep_row(R0, 32)
    L1, T1, G1 = prep_row(R1, 36)
    for x, y in zip(L0, L1):
        if "s_nop 0" in x:
            continue
        if "s_nop 1" in x:
            a("s_nop 0")
            continue
        a.L.append(x)
        a.L.append(y)
    a("s_waitcnt vmcnt(0)")
    a("ds_write_b128 v40, v[32:35] offset:%d" % (8 * RP))
    a("ds_write_b128 v40, v[36:39] offset:%d" % (8 * RP + 32 * UTP))
    a("ds_write_b128 v4, v[%d:%d]" % (T0, T0 + 3))
    a("ds_write_b128 v4, v[%d:%d] offset:%d" % (T1, T1 + 3, RP))
    GL = 8 * RP + 64 * UTP
    a("s_lshl_b32 s31, s3, 3")
    a("v_mov_b32 v9, s31")
    a("s_mov_b64 exec, 1")
    a("ds_write2_b32 v9, v%d, v%d offset0:%d offset1:%d" % (G0, G1, 0, 1) if False else "v_add_u32 v9, %d, v9" % GL)
    a("ds_write2_b32 v9, v%d, v%d offset0:0 offset1:1" % (G0, G1))
    a("s_mov_b64 exec, -1")
    a("s_waitcnt lgkmcnt(0)")
    a("s_barrier")
    stamp(a)
    for p in range(2):
        a("ds_read_b64_tr_b16 v[%d:%d], v6 offset:%d" % (8 + 4 * p, 9 + 4 * p, 128 * p))
        a("ds_read_b64_tr_b16 v[%d:%d], v6 offset:%d" % (10 + 4 * p, 11 + 4 * p, 4 * RP + 128 * p))
    for p in range(2):
        for h in range(2):
            a("ds_read_b64_tr_b16 v[%d:%d], v41 offset:%d" % (32 + 4 * p + 2 * h, 33 + 4 * p + 2 * h, 8 * RP + (8 * p + 4 * h) * UTP))
    a("s_waitcnt lgkmcnt(6)")
    a("buffer_store_dwordx4 v[8:11], v7, s[20:23], s28 offen" + SC)
    a("s_waitcnt lgkmcnt(4)")
    a("buffer_store_dwordx4 v[12:15], v7, s[20:23], s29 offen" + SC)
    a("v_mul_u32_u24 v42, 144, v2")
    a("s_lshl_b32 s45, s3, 5")
    a("v_add_u32 v42, s45, v42")
    a("s_waitcnt lgkmcnt(0)")
    a("ds_write_b128 v42, v[32:35] offset:%d" % (GL + 64))
    a("ds_write_b128 v42, v[36:39] offset:%d" % (GL + 64 + 16))
    a("v_lshrrev_b32 v44, 3, v0")
    a("v_and_b32 v45, 7, v0")
    a("v_mul_u32_u24 v42, 144, v44")
    a("v_lshl_add_u32 v42, v45, 4, v42")
    a("v_lshlrev_b32 v43, 12, v44")
    a("v_lshl_add_u32 v43, v45, 4, v43")
    a("s_lshl_b32 s44, s41, 18")
    a("s_lshl_b32 s45, s40, 7")
    a("s_add_u32 s44, s44, s45")
    a("s_add_u32 s44, s44, 0x%x" % WS_UF)
    a("s_add_u32 s45, s44, %d" % (32 * 4096))
    a("v_lshlrev_b32 v9, 2, v2")
    a("s_lshl_b32 s30, s2, 5")
    a("s_add_u32 s30, s30, 0x%x" % WS_GT)
    a("s_waitcnt lgkmcnt(0)")
    a("s_barrier")
    a("ds_read_b128 v[32:35], v42 offset:%d" % (GL + 64))
    a("ds_read_b128 v[36:39], v42 offset:%d" % (GL + 64 + 32 * 144))
    a("ds_read_b32 v10, v9 offset:%d" % GL)
    a("s_waitcnt lgkmcnt(2)")
    a("buffer_store_dwordx4 v[32:35], v43, s[20:23], s44 offen" + SC)
    a("s_waitcnt lgkmcnt(1)")
    a("buffer_store_dwordx4 v[36:39], v43, s[20:23], s45 offen" + SC)
    a("s_waitcnt lgkmcnt(0)")
    a("s_cmp_lg_u32 s3, 0")
    a("s_cbranch_scc1 L_prep_nog")
    a("s_mov_b64 exec, 0xff")
    a("buffer_store_dword v10, v9, s[20:23], s30 offen" + SC)
    a("s_mov_b64 exec, -1")
    a.lab("L_prep_nog")
    if FUSED:
        a("s_load_dwordx2 s[40:41], s[0:1], 128")
        a("s_waitcnt vmcnt(0) lgkmcnt(0)")
        a("s_barrier")
        a("s_mov_b32 s42, 256")
        a("s_mov_b32 s43, 0x00020000")
        a("s_cmp_lg_u32 s3, 0")
        a("s_cbranch_scc1 L_prep_noflag")
        a("v_mov_b32 v9, 1")
        a("v_mov_b32 v8, 0")
        a("s_mov_b64 exec, 1")
        a("s_and_b32 s44, s2, 63")
        a("s_lshl_b32 s44, s44, 2")
        a("buffer_atomic_add v9, v8, s[40:43], s44 offen sc1")
        a("s_mov_b64 exec, -1")
        a.lab("L_prep_noflag")
        if "trace" in X:
            a("s_memrealtime s[86:87]")
            a("s_waitcnt lgkmcnt(0)")
        return
    stamp(a)
    dump_stamps(a, 5)
    trace_end(a, 0)
    a("s_endpgm")


def gen_utr(a, first_wg):
    a.c("---- U transposer role: tile 64 s x 64 d -> UT[d][s]")
    a.cur = "utr"
    trace_begin(a)
    a("s_sub_u32 s2, s2, %d" % first_wg)
    a("s_load_dwordx2 s[4:5], s[0:1], 0")
    a("s_load_dwordx2 s[8:9], s[0:1], 136")
    a("v_lshrrev_b32 v1, 6, v0")
    a("v_and_b32 v2, 63, v0")
    a("v_readfirstlane_b32 s3, v1")
    a("s_lshr_b32 s20, s2, 3")
    a("s_and_b32 s21, s2, 7")
    a("s_lshl_b32 s22, s20, 16")
    a("s_lshl_b32 s23, s21, 7")
    a("s_add_u32 s22, s22, s23")
    a("v_lshrrev_b32 v3, 3, v0")
    a("v_and_b32 v4, 7, v0")
    a("v_lshlrev_b32 v5, 10, v3")
    a("v_lshl_add_u32 v5, v4, 4, v5")
    a("v_mul_u32_u24 v6, %d, v3" % UTP)
    a("v_lshl_add_u32 v6, v4, 4, v6")
    a("s_waitcnt lgkmcnt(0)")
    srd(a, 12, 4, 2 * MB)
    a("buffer_load_dwordx4 v[8:11], v5, s[12:15], s22 offen")
    a("s_add_u32 s23, s22, 32768")
    a("buffer_load_dwordx4 v[12:15], v5, s[12:15], s23 offen")
    srd(a, 16, 8, WS_SIZE)
    a("v_and_b32 v3, 15, v2")
    a("v_lshrrev_b32 v4, 2, v3")
    a("s_lshl_b32 s24, s3, 4")
    a("v_add_u32 v4, s24, v4")
    a("v_mul_u32_u24 v4, %d, v4" % UTP)
    a("v_and_b32 v3, 3, v3")
    a("v_lshl_add_u32 v4, v3, 3, v4")
    a("v_lshrrev_b32 v3, 4, v2")
    a("v_lshl_add_u32 v4, v3, 5, v4")
    a("v_lshlrev_b32 v7, 12, v2")
    a("s_lshl_b32 s24, s21, 18")
    a("s_lshl_b32 s25, s20, 7")
    a("s_add_u32 s24, s24, s25")
    a("s_lshl_b32 s25, s3, 5")
    a("s_add_u32 s24, s24, s25")
    a("s_add_u32 s24, s24, 0x%x" % WS_UF)
    a("s_waitcnt vmcnt(1)")
    a("ds_write_b128 v6, v[8:11]")
    a("s_waitcnt vmcnt(0)")
    a("ds_write_b128 v6, v[12:15] offset:%d" % (32 * UTP))
    a("s_waitcnt lgkmcnt(0)")
    a("s_barrier")
    for p in range(2):
        for h in range(2):
            a("ds_read_b64_tr_b16 v[%d:%d], v4 offset:%d" % (8 + 4 * p + 2 * h, 9 + 4 * p + 2 * h, (8 * p + 4 * h) * UTP))
    a("s_waitcnt lgkmcnt(2)")
    a("buffer_store_dwordx4 v[8:11], v7, s[16:19], s24 offen")
    a("s_waitcnt lgkmcnt(0)")
    a("buffer_store_dwordx4 v[12:15], v7, s[16:19], s24 offen offset:16")
    trace_end(a, 0)
    a("s_endpgm")


def gen_kgen(a, first_wg):
    a.c("---- kgen role: one channel per workgroup")
    a.cur = "kgen"
    if not FUSED:
        trace_begin(a)
    stamp(a)
    if first_wg:
        a("s_sub_u32 s2, s2, %d" % first_wg)
    a("s_load_dwordx4 s[28:31], s[0:1], 8")
    a("s_load_dwordx4 s[32:35], s[0:1], 24")
    a("s_load_dwordx4 s[36:39], s[0:1], 40")
    a("s_load_dwordx2 s[40:41], s[0:1], 56")
    a("s_load_dwordx2 s[4:5], s[0:1], 136")
    a("s_load_dwordx2 s[6:7], s[0:1], 80")
    a("v_lshrrev_b32 v1, 6, v0")
    a("v_and_b32 v2, 63, v0")
    a("v_readfirstlane_b32 s3, v1")
    a("v_and_b32 v3, 127, v0")
    a("v_lshlrev_b32 v4, 1, v3")
    a("s_lshl_b32 s20, s2, 8")
    a("s_lshl_b32 s25, s2, 1")
    a("v_mov_b32 v6, 0")
    a("s_waitcnt lgkmcnt(0)")
    for k in range(6):
        srd(a, 44 + 4 * k, 28 + 2 * k, 131072)
        a("buffer_load_ushort v%d, v4, s[%d:%d], s20 offen" % (10 + k, 44 + 4 * k, 47 + 4 * k))
    srd(a, 12, 40, 1024)
    a("buffer_load_ushort v16, v6, s[12:15], s25 offen")
    if "pf1" in X:
        srd(a, 68, 6, 2048 * 1792 * 2)
        a("s_lshl_b32 s26, s2, 14")
        a("v_lshlrev_b32 v5, 4, v0")
        for k in range(4):
            a("buffer_load_dwordx4 v[%d:%d], v5, s[68:71], s26 offen" % (128 + 4 * k, 131 + 4 * k))
            if k < 3:
                a("s_add_u32 s26, s26, 4096")
    srd(a, 8, 4, WS_SIZE)
    a("s_cmp_ge_u32 s3, 2")
    a("s_cselect_b32 s26, %d, %d" % (XT, YT))
    a("s_cselect_b32 s27, 0x%x, 0x%x" % (f32(16.0), f32(1.0)))
    a("s_cselect_b32 s36, 0x%x, 0x%x" % (f32(0.15915494309189535), f32(-0.15915494309189535)))
    a("v_lshlrev_b32 v8, 2, v3")
    a("v_add_u32 v8, s26, v8")
    a("v_lshlrev_b32 v28, 3, v0")
    a("v_sub_u32 v28, 2047, v28")
    a("s_mov_b32 s28, 0xffff")
    a("s_mov_b32 s29, %d" % (0x4300 - 128))
    for j in range(8):
        a("v_subrev_u32 v%d, %d, v28" % (48 + j, j))
        a("v_cvt_f32_u32 v%d, v%d" % (56 + j, 48 + j))
    for j in range(0, 8, 2):
        a("v_cvt_pk_bf16_f32 v%d, v%d, v%d" % (56 + j, 56 + j, 57 + j))
    for j in range(0, 8, 2):
        a("v_lshrrev_b32 v%d, 16, v%d" % (57 + j, 56 + j))
        a("v_and_b32 v%d, s28, v%d" % (56 + j, 56 + j))
    for j in range(8):
        a("v_subrev_u32 v%d, s29, v%d" % (56 + j, 56 + j))
    for j in range(8):
        a("v_min_u32 v%d, 0x80, v%d" % (48 + j, 48 + j))
    for j in range(8):
        a("v_max_i32 v%d, v%d, v%d" % (56 + j, 56 + j, 48 + j))
    for j in range(8):
        a("v_lshlrev_b32 v%d, 2, v%d" % (56 + j, 56 + j))
    a("v_and_b32 v9, 15, v2")
    a("v_lshrrev_b32 v17, 4, v2")
    a("s_lshl_b32 s26, s3, 3")
    a("s_add_u32 s26, s26, 8")
    a("s_cmp_eq_u32 s3, 0")
    a("s_cselect_b32 s26, 0, s26")
    a("v_add_u32 v18, s26, v9")
    a("v_mul_u32_u24 v18, %d, v18" % TBP)
    a("v_lshl_add_u32 v18, v17, 4, v18")
    a("v_lshlrev_b32 v19, s3, v9")
    a("v_or_b32 v29, 8, v19")
    a("v_ffbh_u32 v29, v29")
    a("v_sub_u32 v29, 28, v29")
    a("v_lshrrev_b32 v19, v29, v19")
    a("v_lshl_add_u32 v19, v29, 3, v19")
    a("v_mul_u32_u24 v19, %d, v19" % TBP)
    a("v_lshl_add_u32 v19, v17, 4, v19")
    a("s_waitcnt vmcnt(%d)" % (4 if "pf1" in X else 0))
    for k in range(7):
        a("v_lshlrev_b32 v%d, 16, v%d" % (10 + k, 10 + k))
    a("v_mul_f32 v16, 0x%x, v16" % f32(1.4426950408889634))
    a("v_exp_f32 v16, v16")
    a.nop(1)
    bf16r(a, 16)
    a("v_mul_f32 v20, v16, v10")
    a("v_mul_f32 v21, v16, v11")
    a("v_mul_f32 v12, v16, v12")
    a("v_mul_f32 v13, v16, v13")
    a("v_mul_f32 v20, 0x%x, v20" % f32(1.4426950408889634))
    a("v_mul_f32 v21, s36, v21")
    a("v_mul_f32 v20, s27, v20")
    a("v_mul_f32 v21, s27, v21")
    a("v_mul_f32 v22, v14, v12")
    a("v_mul_f32 v23, v14, v13")
    a("v_fract_f32 v21, v21")
    a("v_exp_f32 v20, v20")
    a("v_fma_f32 v22, -v15, v13, v22")
    a("v_fma_f32 v23, v15, v12, v23")
    a("v_cos_f32 v24, v21")
    a("v_sin_f32 v25, v21")
    a("v_mov_b32 v26, 1.0")
    a("v_mov_b32 v27, 0")
    a("v_mul_f32 v24, v20, v24")
    a("v_mul_f32 v25, v20, v25")
    a("s_cmp_ge_u32 s3, 2")
    a("s_cbranch_scc0 L_kg_y")
    a("v_mov_b32 v26, v22")
    a("v_mov_b32 v27, v23")
    a.lab("L_kg_y")

    def cmul(dst, x, w):
        a("v_pk_mul_f32 v[30:31], v[%d:%d], v[%d:%d] op_sel:[0,0] op_sel_hi:[1,0]" % (x, x + 1, w, w + 1))
        a("v_pk_fma_f32 v[%d:%d], v[%d:%d], v[%d:%d], v[30:31] op_sel:[1,1,0] op_sel_hi:[0,1,1] neg_lo:[1,0,0]" %
          (dst, dst + 1, x, x + 1, w, w + 1))

    W = [24, 32, 34, 36]
    for k in range(1, 4):
        cmul(W[k], W[k - 1], W[k - 1])
    for row in range(41):
        a("v_cvt_pk_bf16_f32 v%d, v26, v27" % (40 + (row & 3)))
        if row < 40:
            cmul(26, 26, W[0] if row < 16 else (W[1] if row < 24 else (W[2] if row < 32 else W[3])))
        if row & 1:
            a("ds_write2_b32 v8, v%d, v%d offset0:%d offset1:%d" % (40 + ((row - 1) & 3), 40 + (row & 3), 0, TBP // 4))
            if row < 40:
                a("v_add_u32 v8, %d, v8" % (2 * TBP))
        elif row == 40:
            a("ds_write_b32 v8, v%d" % (40 + (row & 3)))
    a("s_waitcnt lgkmcnt(0)")
    a("s_barrier")
    stamp(a)
    for kap in range(8):
        a("ds_read_b128 v[%d:%d], v18 offset:%d" % (64 + 8 * kap, 67 + 8 * kap, XT + 64 * kap))
        a("ds_read_b128 v[%d:%d], v19 offset:%d" % (68 + 8 * kap, 71 + 8 * kap, YT + 64 * kap))
    a("s_lshl_b32 s26, s3, 7")
    a("s_add_u32 s26, s26, 128")
    a("s_cmp_eq_u32 s3, 0")
    a("s_cselect_b32 s26, 0, s26")
    a("s_mov_b32 s27, 128")
    a("s_cselect_b32 s27, 256, s27")
    a("s_cmp_eq_u32 s3, 3")
    a("s_cselect_b32 s27, 129, s27")
    a("v_lshl_add_u32 v13, v17, 6, v9")
    a("v_add_u32 v15, s26, v13")
    a("v_lshlrev_b32 v15, 2, v15")
    for kap in range(8):
        a("s_waitcnt lgkmcnt(%d)" % (14 - 2 * kap))
        c0 = "0" if kap == 0 else "v[44:47]"
        a("v_mfma_f32_16x16x32_bf16 v[44:47], v[%d:%d], v[%d:%d], %s" % (64 + 8 * kap, 67 + 8 * kap, 68 + 8 * kap, 71 + 8 * kap, c0))
    a("s_lshl_b32 s22, s2, 12")
    a("s_add_u32 s22, s22, 0x%x" % WS_RK)
    a("v_lshlrev_b32 v3, 4, v0")
    a.nop(5)
    for reg in range(4):
        a("v_add_u32 v14, %d, v13" % (16 * reg))
        a("v_cmp_gt_u32 vcc, s27, v14")
        a("s_and_saveexec_b64 s[30:31], vcc")
        a("ds_write_b32 v15, v%d offset:%d" % (44 + reg, KT + 64 * reg))
        a("s_mov_b64 exec, s[30:31]")
    if FUSED:
        poll_flags(a, "cv")
    a("s_waitcnt lgkmcnt(0)")
    a("s_barrier")
    stamp(a)
    if FUSED:
        return
    for j in range(8):
        a("ds_read_b32 v%d, v%d offset:%d" % (64 + j, 56 + j, KT))
    a("s_waitcnt lgkmcnt(0)")
    for q in range(4):
        a("v_cvt_pk_bf16_f32 v%d, v%d, v%d" % (8 + q, 64 + 2 * q, 65 + 2 * q))
    a("buffer_store_dwordx4 v[8:11], v3, s[8:11], s22 offen")
    stamp(a)
    dump_stamps(a, 77, 64)
    trace_end(a, 0)
    a("s_endpgm")


CP = 4416
UB = 8 * CP
UP = 144
K2_LDS = 49152


def gen_conv(a, first_wg):
    a.c("---- conv role: one channel per workgroup")
    a.cur = "conv"
    if not FUSED:
        trace_begin(a)
    stamp(a)
    if FUSED:
        for j in range(8):
            a("ds_read_b32 v%d, v%d offset:%d" % (64 + j, 56 + j, KT))
    if first_wg:
        a("s_sub_u32 s2, s2, %d" % first_wg)
    a("s_load_dwordx2 s[4:5], s[0:1], 136")
    a("s_load_dwordx2 s[6:7], s[0:1], 96")
    a("s_load_dwordx2 s[42:43], s[0:1], 64")
    a("v_lshrrev_b32 v1, 6, v0")
    a("v_and_b32 v2, 63, v0")
    a("v_readfirstlane_b32 s3, v1")
    a("s_lshl_b32 s25, s2, 1")
    a("v_mov_b32 v6, 0")
    a("v_lshlrev_b32 v3, 4, v0")
    a("s_lshl_b32 s21, s2, 12")
    a("s_add_u32 s20, s21, 0x%x" % WS_RK)
    a("s_add_u32 s22, s21, 0x%x" % WS_UF)
    a("s_add_u32 s23, s21, 0x%x" % WS_AF)
    a("s_waitcnt lgkmcnt(0)")
    if not FUSED:
        a("s_add_u32 s12, s4, s20")
        a("s_addc_u32 s13, s5, 0")
        a("s_mov_b32 s14, 4096")
        a("s_mov_b32 s15, 0x00020000")
        a("buffer_load_dwordx4 v[8:11], v3, s[12:15], 0 offen")
        a("buffer_load_dwordx4 v[12:15], v3, s[12:15], 0 offen offset:16")
    else:
        for q in range(4):
            a("v_cvt_pk_bf16_f32 v%d, v%d, v%d" % (8 + q, 64 + 2 * q, 65 + 2 * q))
        a("ds_write_b128 v3, v[8:11]")
    srd(a, 8, 4, WS_SIZE)
    a("buffer_load_dwordx4 v[152:155], v3, s[8:11], s22 offen")
    srd(a, 16, 42, 1024)
    a("v_lshlrev_b32 v7, 5, v0")
    a("s_mov_b32 s24, 0x%x" % WS_GT)
    a("buffer_load_dwordx4 v[156:159], v7, s[8:11], s24 offen")
    a("buffer_load_dwordx4 v[160:163], v7, s[8:11], s24 offen offset:16")
    a("buffer_load_ushort v164, v6, s[16:19], s25 offen")
    NPF = 0
    if "pf2" in X:
        NPF = 4
        srd(a, 68, 6, 2048 * 1792 * 2)
        a("s_lshl_b32 s26, s2, 14")
        for k in range(4):
            a("buffer_load_dwordx4 v[%d:%d], v3, s[68:71], s26 offen" % (128 + 4 * k, 131 + 4 * k))
            if k < 3:
                a("s_add_u32 s26, s26, 4096")
    for k in range(4):
        a("v_mov_b32 v%d, 0" % (48 + k))
    a("ds_write_b128 v3, v[48:51] offset:%d" % UB)
    a("v_lshrrev_b32 v4, 3, v2")
    a("v_mul_u32_u24 v4, %d, v4" % CP)
    a("v_and_b32 v7, 7, v2")
    a("v_lshl_add_u32 v4, v7, 4, v4")
    a("v_add_u32 v4, 4096, v4")
    a("v_add_u32 v5, %d, v3" % (UB + 4096))
    a("s_cmp_eq_u32 s3, 0")
    a("s_cbranch_scc1 L_cv_z0")
    a("s_cmp_eq_u32 s3, 1")
    a("s_cbranch_scc0 L_cv_z1")
    a("ds_write_b128 v4, v[48:51]")
    a("s_branch L_cv_z1")
    a.lab("L_cv_z0")
    a("s_mov_b32 exec_hi, 0")
    a("ds_write_b128 v5, v[48:51]")
    a("s_mov_b64 exec, -1")
    a.lab("L_cv_z1")
    a("v_lshrrev_b32 v6, 3, v0")
    a("v_mul_u32_u24 v6, %d, v6" % UP)
    a("v_and_b32 v7, 7, v0")
    a("v_lshl_add_u32 v6, v7, 4, v6")
    a("v_and_b32 v20, 31, v2")
    a("v_lshrrev_b32 v21, 5, v2")
    a("v_and_b32 v22, 7, v20")
    a("v_sub_u32 v22, 7, v22")
    a("v_mul_u32_u24 v22, %d, v22" % CP)
    a("v_lshrrev_b32 v23, 3, v20")
    a("v_sub_u32 v23, v21, v23")
    a("v_lshl_add_u32 v22, v23, 4, v22")
    a("s_lshl_b32 s28, s3, 10")
    a("s_sub_u32 s28, %d, s28" % (16 * 255 - 128 * 7 - 64))
    a("v_add_u32 v18, s28, v22")
    a("v_mul_u32_u24 v23, %d, v20" % UP)
    a("v_lshl_add_u32 v23, v21, 4, v23")
    a("s_mul_i32 s29, s3, %d" % (8 * UP))
    a("s_sub_u32 s29, %d, s29" % (UB + UP * 25))
    a("v_add_u32 v19, s29, v23")
    if FUSED:
        a("s_waitcnt lgkmcnt(0)")
        a("s_barrier")
        a("ds_read_b128 v[12:15], v3 offset:16")
        a("s_waitcnt lgkmcnt(0)")
    else:
        a("s_waitcnt vmcnt(%d)" % (4 + NPF))
    for k in range(1, 8):
        a("v_mov_b32 v%d, v%d" % (65 + k, 8 + k))
    for k in range(7):
        a("v_alignbit_b32 v%d, v%d, v%d, 16" % (74 + k, 9 + k, 8 + k))
    for k in range(1, 7):
        a("v_alignbit_b32 v%d, v%d, v%d, 16" % (83 + k, 9 + k, 8 + k))
    src = {0: 8, 2: 66, 4: 10, 6: 68, 1: 74, 3: 84, 5: 76, 7: 86}
    for s in range(1 if FUSED else 0, 8):
        a("ds_write_b128 v3, v[%d:%d] offset:%d" % (src[s], src[s] + 3, s * CP))
    a("s_waitcnt vmcnt(%d)" % (3 + NPF))
    a("ds_write_b128 v6, v[152:155] offset:%d" % (UB + 32 * UP))
    a("s_waitcnt lgkmcnt(0)")
    a("s_barrier")
    stamp(a)
    ACC = [64, 80]
    FA = [24 + 4 * k for k in range(10)]
    FB = [[96 + 4 * k for k in range(4)], [112 + 4 * k for k in range(4)]]
    free = list(range(10))
    cur = {}

    def loadA(dl, rel):
        sl = free.pop(0)
        a("ds_read_b128 v[%d:%d], v18 offset:%d" % (FA[sl], FA[sl] + 3, 128 * (7 - dl) + 64 - 2 * rel))
        return sl

    def loadB(dl):
        for k in range(4):
            a("ds_read_b128 v[%d:%d], v19 offset:%d" % (FB[dl & 1][k], FB[dl & 1][k] + 3, UP * (7 - dl) + 32 * k))

    for rel in (-48, -32, -16, 0, 16, 32):
        cur[rel] = loadA(0, rel)
    loadB(0)
    for dl in range(8):
        nxt = {}
        if dl < 7:
            nxt[-48] = cur[16]
            nxt[-32] = cur[32]
            for rel in (-16, 0, 16, 32):
                nxt[rel] = loadA(dl + 1, rel)
            loadB(dl + 1)
            a("s_waitcnt lgkmcnt(8)")
        else:
            a("s_waitcnt lgkmcnt(0)")
        for k in range(4):
            for beta in range(2):
                rel = 32 * beta - 16 * k
                c = "0" if (dl == 0 and k == 0) else "v[%d:%d]" % (ACC[beta], ACC[beta] + 15)
                a("v_mfma_f32_32x32x16_bf16 v[%d:%d], v[%d:%d], v[%d:%d], %s" %
                  (ACC[beta], ACC[beta] + 15, FA[cur[rel]], FA[cur[rel]] + 3, FB[dl & 1][k], FB[dl & 1][k] + 3, c))
        for rel in (-48, -32, -16, 0):
            free.append(cur[rel])
        cur = nxt
    a("v_mul_u32_u24 v24, 272, v20")
    a("v_lshl_add_u32 v24, v21, 4, v24")
    a("s_mul_i32 s28, s3, 8704")
    a("v_add_u32 v24, s28, v24")
    a("v_lshrrev_b32 v25, 3, v0")
    a("v_mul_u32_u24 v25, 272, v25")
    a("v_and_b32 v26, 7, v0")
    a("v_lshl_add_u32 v25, v26, 5, v25")
    a("s_mov_b32 s27, 0xffff0000")
    a("s_waitcnt vmcnt(0)")
    a("s_barrier")
    if "cv3" in X:
        trace_end(a, 1)
        a("s_endpgm")
    stamp(a)
    a.nop(4)
    for beta in range(2):
        for rq in range(4):
            a("ds_write_b128 v24, v[%d:%d] offset:%d" % (ACC[beta] + 4 * rq, ACC[beta] + 4 * rq + 3, (32 * beta + 8 * rq) * 4))
    a("v_lshlrev_b32 v164, 16, v164")
    a("v_mov_b32 v165, v164")
    for q in range(4):
        a("v_lshlrev_b32 v%d, 16, v%d" % (128 + 2 * q, 152 + q))
        a("v_and_b32 v%d, s27, v%d" % (129 + 2 * q, 152 + q))
    for q in range(4):
        a("v_pk_mul_f32 v[%d:%d], v[%d:%d], v[164:165]" % (128 + 2 * q, 129 + 2 * q, 128 + 2 * q, 129 + 2 * q))
    a("s_waitcnt lgkmcnt(0)")
    a("s_barrier")
    for w in range(4):
        a("ds_read_b128 v[%d:%d], v25 offset:%d" % (32 + 8 * w, 35 + 8 * w, w * 8704))
        a("ds_read_b128 v[%d:%d], v25 offset:%d" % (36 + 8 * w, 39 + 8 * w, w * 8704 + 16))
    a("s_waitcnt lgkmcnt(4)")
    for q in range(4):
        a("v_pk_add_f32 v[%d:%d], v[%d:%d], v[%d:%d]" % (32 + 2 * q, 33 + 2 * q, 32 + 2 * q, 33 + 2 * q, 40 + 2 * q, 41 + 2 * q))
    a("s_waitcnt lgkmcnt(0)")
    for q in range(4):
        a("v_pk_add_f32 v[%d:%d], v[%d:%d], v[%d:%d]" % (48 + 2 * q, 49 + 2 * q, 48 + 2 * q, 49 + 2 * q, 56 + 2 * q, 57 + 2 * q))
    for q in range(4):
        a("v_pk_add_f32 v[%d:%d], v[%d:%d], v[%d:%d]" % (32 + 2 * q, 33 + 2 * q, 32 + 2 * q, 33 + 2 * q, 48 + 2 * q, 49 + 2 * q))
    for q in range(4):
        a("v_pk_add_f32 v[%d:%d], v[%d:%d], v[%d:%d]" % (32 + 2 * q, 33 + 2 * q, 32 + 2 * q, 33 + 2 * q, 128 + 2 * q, 129 + 2 * q))
    for q in range(4):
        a("v_pk_mul_f32 v[%d:%d], v[%d:%d], v[%d:%d]" % (32 + 2 * q, 33 + 2 * q, 32 + 2 * q, 33 + 2 * q, 156 + 2 * q, 157 + 2 * q))
    for q in range(4):
        a("v_cvt_pk_bf16_f32 v%d, v%d, v%d" % (72 + q, 32 + 2 * q, 33 + 2 * q))
    a("buffer_store_dwordx4 v[72:75], v3, s[8:11], s23 offen")
    if "pf2e" in X:
        srd(a, 68, 6, 2048 * 1792 * 2)
        a("s_lshl_b32 s26, s2, 14")
        for k in range(4):
            a("buffer_load_dwordx4 v[%d:%d], v3, s[68:71], s26 offen" % (128 + 4 * k, 131 + 4 * k))
            if k < 3:
                a("s_add_u32 s26, s26, 4096")
    stamp(a)
    dump_stamps(a, 77, 64)
    trace_end(a, 0 if FUSED else 1)
    a("s_endpgm")


TP = 144
RED = 49152
K3_LDS = 65536 + 64 * TP


def gen_gemm(a, which):
    g1 = (which == 1)
    NOCT = 256 if g1 else 224
    S = 32 if g1 else 28
    NS = 6 if g1 else 8
    for tok in X.split(","):
        if tok.startswith("ns%d=" % which):
            NS = int(tok[4:])
    PW = 3584 if g1 else 4096
    WOFF = 80 if g1 else 96
    WBYTES = 2048 * 1792 * 2
    DOFF = WS_HF if g1 else WS_GF
    TPITCH = NOCT * 512
    NQ = 28 if g1 else 32
    TBASE = 65536
    a.c("---- gemm%d role" % which)
    a.cur = "g%d" % which
    trace_begin(a)
    stamp(a)
    a("s_load_dwordx2 s[4:5], s[0:1], %d" % WOFF)
    a("s_load_dwordx2 s[6:7], s[0:1], 136")
    a("s_load_dwordx2 s[36:37], s[0:1], %d" % (88 if g1 else 104))
    if not g1:
        a("s_load_dwordx2 s[38:39], s[0:1], 120")
    a("v_lshrrev_b32 v1, 6, v0")
    a("v_and_b32 v2, 63, v0")
    a("v_readfirstlane_b32 s3, v1")
    a("s_and_b32 s20, s2, 7")
    a("s_lshr_b32 s21, s2, 3")
    a("s_mul_i32 s20, s20, %d" % NQ)
    a("s_add_u32 s20, s20, s21")
    a("s_lshr_b32 s21, s20, 3")
    a("s_and_b32 s22, s20, 7")
    a("s_mul_i32 s23, s22, %d" % (2 * TPITCH))
    a("s_mul_i32 s24, s3, %d" % (S * 1024))
    a("s_add_u32 s23, s23, s24")
    a("s_add_u32 s23, s23, 0x%x" % DOFF)
    a("v_lshlrev_b32 v3, 4, v2")
    a("v_add_u32 v4, %d, v3" % TPITCH)
    a("v_lshrrev_b32 v5, 3, v2")
    a("v_and_b32 v6, 7, v2")
    a("v_lshlrev_b32 v7, 1, v5")
    a("v_and_b32 v7, 4, v7")
    a("v_xor_b32 v6, v6, v7")
    a("v_mul_u32_u24 v5, %d, v5" % PW)
    a("v_lshl_add_u32 v5, v6, 4, v5")
    a("s_lshl_b32 s24, s21, 7")
    a("v_add_u32 v5, s24, v5")
    a("s_mul_i32 s25, s3, %d" % (S * 16 * PW))
    a("s_mul_i32 s26, s3, %d" % (NS * 2048))
    a("s_waitcnt lgkmcnt(0)")
    srd(a, 8, 4, WBYTES)
    srd(a, 12, 6, WS_SIZE)
    ACC = [[16, 32], [48, 64]]
    DF = [80 + 8 * k for k in range(NS)]
    WFB = 80 + 8 * NS
    XR = WFB + 16

    a("s_and_b32 s48, s21, 3")
    a("s_lshl2_add_u32 s48, s22, s48")
    if "norot" in X:
        a("s_mov_b32 s48, 0")
    a("s_sub_u32 s49, s48, %d" % S)
    a("s_cmp_ge_u32 s48, %d" % S)
    a("s_cselect_b32 s48, s49, s48")

    def issue(st):
        sl = st % NS
        a("s_mul_i32 s27, s48, %d" % (16 * PW))
        a("s_add_u32 m0, s26, %d" % (sl * 2048))
        a("s_add_u32 s27, s27, s25")
        if "wreg" in X:
            a("buffer_load_dwordx4 v[%d:%d], v5, s[8:11], s27 offen" % (WFB + 8 * (st & 1), WFB + 8 * (st & 1) + 3))
        else:
            a("buffer_load_dwordx4 v5, s[8:11], s27 offen lds" + WH)
        a("s_add_u32 m0, s26, %d" % (sl * 2048 + 1024))
        a("s_add_u32 s27, s27, %d" % (8 * PW))
        a("s_lshl_b32 s28, s48, 10")
        if "wreg" in X:
            a("buffer_load_dwordx4 v[%d:%d], v5, s[8:11], s27 offen" % (WFB + 8 * (st & 1) + 4, WFB + 8 * (st & 1) + 7))
        else:
            a("buffer_load_dwordx4 v5, s[8:11], s27 offen lds" + WH)
        a("s_add_u32 s28, s28, s23")
        a("s_add_u32 s48, s48, 1")
        for t in range(2):
            r = DF[sl] + 4 * t
            a("buffer_load_dwordx4 v[%d:%d], v%d, s[12:15], s28 offen" % (r, r + 3, 3 + t) + DH)
        a("s_cmp_lg_u32 s48, %d" % S)
        a("s_cselect_b32 s48, s48, 0")

    if g1 and FUSED:
        a("s_mov_b32 s51, s48")
        for st in range(NS):
            a("s_mul_i32 s27, s51, %d" % (16 * PW))
            a("s_add_u32 s27, s27, s25")
            a("buffer_load_dwordx4 v[%d:%d], v5, s[8:11], s27 offen" % (DF[st], DF[st] + 3))
            a("s_add_u32 s27, s27, %d" % (8 * PW))
            a("s_add_u32 s51, s51, 1")
            a("buffer_load_dwordx4 v[%d:%d], v5, s[8:11], s27 offen" % (DF[st] + 4, DF[st] + 7))
            a("s_cmp_lg_u32 s51, %d" % S)
            a("s_cselect_b32 s51, s51, 0")
        poll_flags(a, "g1")
        a("s_waitcnt vmcnt(0)")
        a("s_barrier")
    issue(0)
    issue(1)
    srd(a, 40, 36, 3584 if g1 else 4096)
    if not g1:
        srd(a, 44, 38, 2 * MB)
    for st in range(2, NS):
        issue(st)
    a("v_lshrrev_b32 v8, 4, v2")
    a("v_and_b32 v9, 15, v2")
    a("v_lshrrev_b32 v10, 2, v9")
    a("v_and_b32 v11, 3, v9")
    a("v_lshrrev_b32 v12, 1, v8")
    a("v_lshl_add_u32 v12, v12, 3, v10")
    a("v_lshlrev_b32 v12, 7, v12")
    a("v_and_b32 v13, 1, v8")
    a("v_lshlrev_b32 v13, 1, v13")
    a("v_lshrrev_b32 v14, 1, v11")
    a("v_add_u32 v13, v13, v14")
    a("v_lshlrev_b32 v14, 1, v10")
    a("v_and_b32 v14, 4, v14")
    a("v_xor_b32 v13, v13, v14")
    a("v_lshl_add_u32 v12, v13, 4, v12")
    a("v_and_b32 v14, 1, v11")
    a("v_lshl_add_u32 v12, v14, 3, v12")
    a("v_add_u32 v12, s26, v12")
    a("v_xor_b32 v13, 64, v12")
    a("s_lshr_b32 s29, s3, 1")
    a("s_and_b32 s30, s3, 1")
    a("v_and_b32 v6, 31, v2")
    a("v_lshrrev_b32 v7, 5, v2")
    NX = 0
    if g1:
        a("s_lshl_b32 s31, s21, 7")
        a("s_lshl_b32 s32, s29, 6")
        a("s_add_u32 s31, s31, s32")
        a("v_lshlrev_b32 v14, 3, v7")
        for rq in range(4):
            a("buffer_load_dwordx2 v[%d:%d], v14, s[40:43], s31 offen offset:%d" % (XR + 2 * rq, XR + 2 * rq + 1, 16 * rq))
        NX = 4
    else:
        a("s_lshl_b32 s31, s22, 18")
        a("s_lshl_b32 s32, s21, 7")
        a("s_add_u32 s31, s31, s32")
        a("s_add_u32 s31, s31, 0x%x" % WS_AF)
        a("s_add_u32 s32, s31, 131072")
        a("v_lshrrev_b32 v14, 3, v0")
        a("v_and_b32 v15, 7, v0")
        a("v_lshlrev_b32 v15, 4, v15")
        a("v_lshl_add_u32 v15, v14, 12, v15")
        a("buffer_load_dwordx4 v[%d:%d], v15, s[12:15], s31 offen" % (XR, XR + 3))
        a("buffer_load_dwordx4 v[%d:%d], v15, s[12:15], s32 offen" % (XR + 4, XR + 7))
        a("s_lshl_b32 s33, s21, 6")
        a("s_lshl_b32 s34, s30, 5")
        a("s_add_u32 s33, s33, s34")
        a("v_add_u32 v14, s33, v6")
        a("v_lshlrev_b32 v15, 2, v14")
        a("s_mov_b32 s34, 0x%x" % WS_GT)
        a("buffer_load_dword v%d, v15, s[12:15], s34 offen" % (XR + 8))
        a("v_lshlrev_b32 v15, 1, v14")
        a("buffer_load_ushort v%d, v15, s[40:43], 0 offen" % (XR + 9))
        NX = 4
    stamp(a)

    def trreads(st):
        if "wreg" in X:
            return
        sl = st % NS
        for nu in range(2):
            for h in range(2):
                r = WFB + 8 * (st & 1) + 4 * nu + 2 * h
                a("ds_read_b64_tr_b16 v[%d:%d], v%d offset:%d" % (r, r + 1, 12 + nu, sl * 2048 + h * 512))

    def stage(st, sl, par, do_issue, wait_next, first=False):
        if wait_next is not None:
            a("s_waitcnt vmcnt(%d)" % wait_next)
            trreads2((sl + 1) % NS, par ^ 1)
            a("s_waitcnt lgkmcnt(4)")
        else:
            a("s_waitcnt lgkmcnt(0)")
        for nu in range(2):
            for t in range(2):
                wf = WFB + 8 * par + 4 * nu
                df = DF[sl] + 4 * t
                if g1:
                    acc = ACC[nu][t]
                    A_, B_ = wf, df
                else:
                    acc = ACC[t][nu]
                    A_, B_ = df, wf
                a("v_mfma_f32_32x32x16_bf16 v[%d:%d], v[%d:%d], v[%d:%d], v[%d:%d]" % (acc, acc + 15, A_, A_ + 3, B_, B_ + 3, acc, acc + 15))
        if do_issue:
            issue(sl)

    def trreads2(sl, par):
        if "wreg" in X:
            return
        for nu in range(2):
            for h in range(2):
                r = WFB + 8 * par + 4 * nu + 2 * h
                a("ds_read_b64_tr_b16 v[%d:%d], v%d offset:%d" % (r, r + 1, 12 + nu, sl * 2048 + h * 512))

    assert NS % 2 == 0
    for r in range(16, 80):
        a("v_mov_b32 v%d, 0" % r)
    NL = (S - NS) // NS
    a("s_mov_b32 s50, %d" % NL)
    a("s_waitcnt vmcnt(%d)" % (4 * (NS - 1) + NX))
    trreads2(0, 0)
    a.lab("L_g%d_loop" % which)
    for k in range(NS):
        stage(k, k, k & 1, True, 4 * (NS - 2))
    a("s_sub_u32 s50, s50, 1")
    a("s_cmp_lg_u32 s50, 0")
    a("s_cbranch_scc1 L_g%d_loop" % which)
    for st in range(NL * NS, S):
        k = st % NS
        iss = st + NS < S
        later = min(S - 1, st + NS - 1) - (st + 1)
        stage(st, k, st & 1, iss, (4 * later) if st + 1 < S else None)
    stamp(a)
    F = 80
    a("s_mov_b32 s27, 0xffff0000")
    if not g1:
        a("v_lshrrev_b32 v9, 3, v0")
        a("v_mul_u32_u24 v9, %d, v9" % TP)
        a("v_and_b32 v10, 7, v0")
        a("v_lshl_add_u32 v9, v10, 4, v9")
        a("v_add_u32 v9, %d, v9" % TBASE)
        a("s_waitcnt vmcnt(0)")
        a("ds_write_b128 v9, v[%d:%d]" % (XR, XR + 3))
        a("ds_write_b128 v9, v[%d:%d] offset:%d" % (XR + 4, XR + 7, 32 * TP))
    a("s_barrier")
    a.nop(4)
    for qd in range(4):
        acc = ACC[qd >> 1][qd & 1]
        a("s_cmp_eq_u32 s3, %d" % qd)
        a("s_cbranch_scc1 L_g%d_own%d" % (which, qd))
        a("s_sub_u32 s28, s3, %d" % (qd + 1))
        a("s_and_b32 s28, s28, 3")
        a("s_add_u32 s28, s28, %d" % (qd * 3))
        a("s_lshl_b32 s28, s28, 12")
        a("v_add_u32 v8, s28, v3")
        for rq in range(4):
            a("ds_write_b128 v8, v[%d:%d] offset:%d" % (acc + 4 * rq, acc + 4 * rq + 3, rq * 1024))
        a("s_branch L_g%d_nx%d" % (which, qd))
        a.lab("L_g%d_own%d" % (which, qd))
        for k in range(8):
            a("v_pk_add_f32 v[%d:%d], v[%d:%d], 0" % (F + 2 * k, F + 2 * k + 1, acc + 2 * k, acc + 2 * k + 1))
        a.lab("L_g%d_nx%d" % (which, qd))
    a("s_mul_i32 s28, s3, %d" % (3 * 4096))
    a("v_add_u32 v8, s28, v3")
    if g1:
        a("s_lshl_b32 s32, s22, 1")
        a("s_add_u32 s32, s32, s30")
        a("s_mul_i32 s32, s32, %d" % (224 * 512))
        a("s_lshl_b32 s33, s21, 12")
        a("s_add_u32 s32, s32, s33")
        a("s_lshl_b32 s33, s29, 11")
        a("s_add_u32 s32, s32, s33")
        a("s_add_u32 s32, s32, 0x%x" % WS_GF)
        a("v_lshlrev_b32 v11, 4, v6")
        a("v_lshl_add_u32 v11, v7, 3, v11")
    else:
        a("v_lshrrev_b32 v9, 4, v2")
        a("v_and_b32 v10, 15, v2")
        a("v_lshrrev_b32 v13, 2, v10")
        a("v_lshl_add_u32 v13, v7, 2, v13")
        a("v_mul_u32_u24 v13, %d, v13" % TP)
        a("v_and_b32 v10, 3, v10")
        a("v_lshl_add_u32 v13, v10, 3, v13")
        a("v_and_b32 v9, 1, v9")
        a("v_lshl_add_u32 v13, v9, 5, v13")
        a("s_mul_i32 s32, s29, %d" % (32 * TP))
        a("s_lshl_b32 s33, s30, 6")
        a("s_add_u32 s32, s32, s33")
        a("s_add_u32 s32, s32, %d" % TBASE)
        a("v_add_u32 v13, s32, v13")
        a("v_lshlrev_b32 v14, 10, v14")
        a("v_lshl_add_u32 v14, v7, 3, v14")
        a("s_lshl_b32 s33, s22, 7")
        a("s_lshl_b32 s34, s29, 6")
        a("s_add_u32 s33, s33, s34")
    a("s_waitcnt lgkmcnt(0)")
    a("s_barrier")
    P = 96
    for rq in range(4):
        for k in range(3):
            a("ds_read_b128 v[%d:%d], v8 offset:%d" % (P + 16 * k + 4 * rq, P + 16 * k + 4 * rq + 3, k * 4096 + rq * 1024))
    if not g1:
        for rq in range(4):
            a("ds_read_b64_tr_b16 v[%d:%d], v13 offset:%d" % (16 + 2 * rq, 17 + 2 * rq, 8 * rq * TP))
        a("v_lshlrev_b32 v%d, 16, v%d" % (XR + 9, XR + 9))
        a("v_sub_f32 v%d, 1.0, v%d" % (XR + 8, XR + 8))
        bf16r(a, XR + 8)
        a("v_mov_b32 v%d, v%d" % (XR + 11, XR + 9))
        a("v_mov_b32 v%d, v%d" % (XR + 10, XR + 9))
        a("v_mov_b32 v%d, v%d" % (XR + 9, XR + 8))
    else:
        a("s_waitcnt vmcnt(0)")
        k1 = -2.0 * 0.7978845608028654 * 1.4426950408889634
        a("v_mov_b32 v16, 0x%x" % f32(k1))
        a("v_mov_b32 v17, 0x%x" % f32(k1))
        a("v_mov_b32 v18, 0x%x" % f32(k1 * 0.044715))
        a("v_mov_b32 v19, 0x%x" % f32(k1 * 0.044715))
        a("v_mov_b32 v20, 1.0")
        a("v_mov_b32 v21, 1.0")
    nrd = 12 + (0 if g1 else 4)

    def pk(op, d, x, y):
        a("v_pk_%s_f32 v[%d:%d], v[%d:%d], v[%d:%d]" % (op, d, d + 1, x, x + 1, y, y + 1))

    def rnd(base, n, tmp):
        for k in range(n // 2):
            a("v_cvt_pk_bf16_f32 v%d, v%d, v%d" % (tmp + k, base + 2 * k, base + 2 * k + 1))
        for k in range(n // 2):
            a("v_lshlrev_b32 v%d, 16, v%d" % (base + 2 * k, tmp + k))
            a("v_and_b32 v%d, s27, v%d" % (base + 2 * k + 1, tmp + k))

    for half in range(2):
        a("s_waitcnt lgkmcnt(%d)" % (nrd - 6 * (half + 1)))
        for k in range(3):
            for e in range(4):
                pk("add", F + 8 * half + 2 * e, F + 8 * half + 2 * e, P + 16 * k + 8 * half + 2 * e)
    TM = 48
    B = 32
    if g1:
        for k in range(8):
            a("v_lshlrev_b32 v%d, 16, v%d" % (B + 2 * k, XR + k))
            a("v_and_b32 v%d, s27, v%d" % (B + 2 * k + 1, XR + k))
        for e in range(8):
            pk("add", F + 2 * e, F + 2 * e, B + 2 * e)
        for e in range(8):
            pk("mul", B + 2 * e, F + 2 * e, F + 2 * e)
        for e in range(8):
            a("v_pk_fma_f32 v[%d:%d], v[%d:%d], v[18:19], v[16:17]" % (B + 2 * e, B + 2 * e + 1, B + 2 * e, B + 2 * e + 1))
        for e in range(8):
            pk("mul", B + 2 * e, B + 2 * e, F + 2 * e)
        for j in range(16):
            a("v_exp_f32 v%d, v%d" % (B + j, B + j))
        for e in range(8):
            pk("add", B + 2 * e, B + 2 * e, 20)
        for j in range(16):
            a("v_rcp_f32 v%d, v%d" % (B + j, B + j))
        a.nop(1)
        for e in range(8):
            pk("mul", F + 2 * e, F + 2 * e, B + 2 * e)
        for k in range(8):
            a("v_cvt_pk_bf16_f32 v%d, v%d, v%d" % (TM + k, F + 2 * k, F + 2 * k + 1))
        for rq in range(4):
            a("buffer_store_dwordx2 v[%d:%d], v11, s[12:15], s32 offen offset:%d" % (TM + 2 * rq, TM + 2 * rq + 1, 512 * rq))
    else:
        for e in range(8):
            pk("add", F + 2 * e, F + 2 * e, XR + 10)
        a("s_waitcnt lgkmcnt(0)")
        for k in range(8):
            a("v_lshlrev_b32 v%d, 16, v%d" % (B + 2 * k, 16 + k))
            a("v_and_b32 v%d, s27, v%d" % (B + 2 * k + 1, 16 + k))
        for e in range(8):
            a("v_pk_fma_f32 v[%d:%d], v[%d:%d], v[%d:%d], v[%d:%d]" % (F + 2 * e, F + 2 * e + 1, F + 2 * e, F + 2 * e + 1, XR + 8, XR + 9, B + 2 * e, B + 2 * e + 1))
        for k in range(8):
            a("v_cvt_pk_bf16_f32 v%d, v%d, v%d" % (TM + k, F + 2 * k, F + 2 * k + 1))
        for rq in range(4):
            a("buffer_store_dwordx2 v[%d:%d], v14, s[44:47], s33 offen offset:%d" % (TM + 2 * rq, TM + 2 * rq + 1, 16 * rq))
    stamp(a)
    dump_stamps(a, 9)
    trace_end(a, which - (1 if FUSED else 0))
    a("s_endpgm")


def kd(name, vgpr, sgpr=102):
    acc = (vgpr + 3) // 4 * 4
    return """.amdhsa_kernel %s
  .amdhsa_next_free_vgpr %d
  .amdhsa_next_free_sgpr %d
  .amdhsa_accum_offset %d
  .amdhsa_group_segment_fixed_size 0
  .amdhsa_kernarg_size 144
  .amdhsa_user_sgpr_count 2
  .amdhsa_user_sgpr_kernarg_segment_ptr 1
  .amdhsa_system_sgpr_workgroup_id_x 1
.end_amdhsa_kernel
""" % (name, vgpr, sgpr, acc)


def main(out):
    ref = open("cdna_kernels/%s.s.ref" % NAME).read()
    head = []
    for ln in ref.splitlines():
        if ln.startswith("; @launch"):
            break
        if ln.startswith("; Override") or ln.startswith("; grid=ceil"):
            continue
        head.append(ln)
    a = A()
    K1, K2, K3 = "k1_prep_kernel", "k2_gemm1_conv_kernel", "k3_gemm2_kernel"
    if not FUSED:
        head.append("; @launch kernel=%s grid=(%d,1,1) block=(256,1,1) lds=%d" % (K1, 768, K1_LDS))
    head.append("; @launch kernel=%s grid=(%d,1,1) block=(256,1,1) lds=%d" % (K2, 224 + 512, K2_LDS))
    head.append("; @launch kernel=%s grid=(%d,1,1) block=(256,1,1) lds=%d" % (K3, 256, K3_LDS))
    a.L += head
    a.L.append('.amdgcn_target "amdgcn-amd-amdhsa--gfx950"')
    a.L.append(".text")

    def start(k):
        a.L.append(".globl %s" % k)
        a.L.append(".p2align 8")
        a.L.append(".type %s,@function" % k)
        a.lab(k)

    if not FUSED:
        start(K1)
        a("s_cmp_ge_u32 s2, 768")
        a("s_cbranch_scc1 L_k1_exit")
        a("s_cmp_ge_u32 s2, 512")
        a("s_cbranch_scc1 L_k1_prep")
        gen_kgen(a, 0)
        a.lab("L_k1_exit")
        a("s_endpgm")
        a.lab("L_k1_prep")
        gen_prep(a, 512)

    start(K2)
    a("s_cmp_ge_u32 s2, %d" % (224 + 512))
    a("s_cbranch_scc1 L_k2_exit")
    a("s_cmp_lt_u32 s2, 512")
    a("s_cbranch_scc1 L_k2_conv")
    a("s_sub_u32 s2, s2, 512")
    if "noprio" not in X:
        a("s_setprio 3")
    gen_gemm(a, 1)
    a.lab("L_k2_exit")
    a("s_endpgm")
    a.lab("L_k2_conv")
    if FUSED:
        a.cur = "conv"
        trace_begin(a)
        a("s_cmp_ge_u32 s2, 256")
        a("s_cbranch_scc1 L_k2_kgen")
        gen_prep(a, 0)
        a.lab("L_k2_kgen")
        gen_kgen(a, 0)
    gen_conv(a, 0)

    start(K3)
    a("s_cmp_ge_u32 s2, 256")
    a("s_cbranch_scc1 L_k3_exit")
    gen_gemm(a, 2)
    a.lab("L_k3_exit")
    a("s_endpgm")

    a.L.append('.section .rodata,"a"')
    for k, v in ((K1, 144), (K2, 168), (K3, 176))[1 if FUSED else 0:]:
        a.L.append(".p2align 6")
        a.L.append(kd(k, v))
    open(out, "w").write("\n".join(a.L) + "\n")


if __name__ == "__main__":
    main(sys.argv[1] if len(sys.argv) > 1 else "cdna_kernels/%s.s" % NAME)
```

```python
import struct, sys, os
X = os.environ.get("GENX", "")
GX = X
FUSED = "fuse" in X
SC = " sc1" if FUSED else ""
WH = " nt" if "wnt" in X else (" sc1" if "wsc1" in X else "")
DH = " nt" if "dnt" in X else (" sc1" if "dsc1" in X else "")

NAME = "gated_mix__ssm_conv_s4__mixer_token_mlp__prompt"

MB = 1 << 20
WS_HF = 0
WS_UF = 2 * MB
WS_GF = 4 * MB
WS_AF = 6 * MB
WS_GT = 8 * MB
WS_RK = 9 * MB
WS_SIZE = 268435456

NPREP = 64
HILO = True


def f32(x):
    return struct.unpack("<I", struct.pack("<f", x))[0]


class A:
    def __init__(self):
        self.L = []
        self.cur = ""

    def __call__(self, s):
        self.L.append("    " + s)

    def lab(self, s):
        self.L.append(s + ":")

    def nop(self, n):
        while n > 0:
            k = min(n, 16)
            self("s_nop %d" % (k - 1))
            n -= k

    def c(self, s):
        self.L.append("    ; " + s)


STAMPS = [0]
def stamp(a):
    if "stamp" not in X:
        return
    k = STAMPS[0]
    a("s_memtime s[%d:%d]" % (72 + 2 * k, 73 + 2 * k))
    STAMPS[0] += 1


def dump_stamps(a, wg, off=0):
    if "stamp" not in X:
        return
    n = STAMPS[0]
    STAMPS[0] = 0
    a("s_waitcnt vmcnt(0) lgkmcnt(0)")
    a("s_memtime s[%d:%d]" % (72 + 2 * n, 73 + 2 * n))
    n += 1
    a("s_load_dwordx2 s[96:97], s[0:1], 128")
    a("s_waitcnt lgkmcnt(0)")
    a("s_mov_b32 s98, 256")
    a("s_mov_b32 s99, 0x00020000")
    a("s_mov_b64 exec, -1")
    a("v_lshrrev_b32 v1, 6, v0")
    a("s_nop 1")
    a("v_readfirstlane_b32 s95, v1")
    a("s_cmp_lg_u32 s95, 0")
    a("s_cbranch_scc1 L_nostamp%d" % len(a.L))
    lab = "L_nostamp%d" % (len(a.L) - 1)
    a("s_cmp_lg_u32 s2, %d" % wg)
    a("s_cbranch_scc1 %s" % lab)
    a("s_mov_b64 exec, 1")
    a("v_mov_b32 v1, 0")
    for k in range(n):
        a("v_mov_b32 v2, s%d" % (72 + 2 * k))
        a("buffer_store_dword v2, v1, s[96:99], 0 offen offset:%d" % (off + 4 * k))
    a.lab(lab)


def trace_begin(a):
    if "trace" not in X:
        return
    a("s_memrealtime s[88:89]")
    a("s_memtime s[90:91]")
    a("s_mov_b32 s94, s2")
    a("s_mov_b32 s86, 0")
    if a.cur == "g1":
        a("s_add_u32 s94, s94, 512")


def trace_end(a, launch):
    if "trace" not in X:
        return
    a("s_waitcnt vmcnt(0) lgkmcnt(0)")
    a("s_memrealtime s[92:93]")
    if FUSED:
        a("s_mov_b32 s84, s86")
    else:
        a("s_memtime s[84:85]")
    a("s_load_dwordx2 s[96:97], s[0:1], 136")
    a("s_waitcnt lgkmcnt(0)")
    a("s_mov_b32 s98, 0x%x" % WS_SIZE)
    a("s_mov_b32 s99, 0x00020000")
    a("s_mov_b64 exec, -1")
    a("v_lshrrev_b32 v1, 6, v0")
    a("s_nop 1")
    a("v_readfirstlane_b32 s95, v1")
    a("s_cmp_lg_u32 s95, 0")
    a("s_cbranch_scc1 L_notr%d" % len(a.L))
    lab = "L_notr%d" % (len(a.L) - 1)
    a("s_lshl_b32 s94, s94, 4")
    a("s_add_u32 s94, s94, 0x%x" % (64 * MB + launch * 65536))
    a("s_mov_b64 exec, 1")
    a("v_mov_b32 v1, 0")
    a("v_mov_b32 v4, s88")
    a("v_mov_b32 v5, s92")
    if "hwid" in X:
        a("s_getreg_b32 s90, hwreg(HW_REG_HW_ID)")
        a("s_getreg_b32 s84, hwreg(HW_REG_XCC_ID)")
    a("v_mov_b32 v6, s90")
    a("v_mov_b32 v7, s84")
    a("buffer_store_dwordx4 v[4:7], v1, s[96:99], s94 offen")
    a.lab(lab)


def poll_flags(a, tag, sreg=72):
    a("s_cmp_lg_u32 s3, 0")
    a("s_cbranch_scc1 L_pf_done_%s" % tag)
    a("s_load_dwordx2 s[%d:%d], s[0:1], 128" % (sreg, sreg + 1))
    a("v_lshlrev_b32 v72, 2, v2")
    a("s_mov_b32 s%d, 4" % (sreg + 4))
    a("s_mov_b32 s%d, 0x40000" % (sreg + 5))
    a("s_waitcnt lgkmcnt(0)")
    a("s_mov_b32 s%d, 256" % (sreg + 2))
    a("s_mov_b32 s%d, 0x00020000" % (sreg + 3))
    a.lab("L_pf_loop_%s" % tag)
    a("buffer_load_dword v73, v72, s[%d:%d], 0 offen sc1" % (sreg, sreg + 3))
    a("s_waitcnt vmcnt(0)")
    a("v_cmp_ne_u32 vcc, s%d, v73" % (sreg + 4))
    a("s_nop 4")
    a("s_cbranch_vccz L_pf_done_%s" % tag)
    a("s_sleep %d" % (64 if "slow" in X else 4))
    a("s_sub_u32 s%d, s%d, 1" % (sreg + 5, sreg + 5))
    a("s_cmp_lg_u32 s%d, 0" % (sreg + 5))
    a("s_cbranch_scc1 L_pf_loop_%s" % tag)
    a.lab("L_pf_done_%s" % tag)
    if "trace" in X:
        a("s_memrealtime s[90:91]")
        a("s_waitcnt lgkmcnt(0)")


def srd(a, d, base, nbytes, off=0):
    if off:
        a("s_add_u32 s%d, s%d, 0x%x" % (d, base, off))
        a("s_addc_u32 s%d, s%d, 0" % (d + 1, base + 1))
    else:
        a("s_mov_b32 s%d, s%d" % (d, base))
        a("s_mov_b32 s%d, s%d" % (d + 1, base + 1))
    a("s_mov_b32 s%d, 0x%x" % (d + 2, nbytes))
    a("s_mov_b32 s%d, 0x00020000" % (d + 3))


def bf16r(a, v):
    a("v_cvt_pk_bf16_f32 v%d, v%d, v%d" % (v, v, v))
    a("v_lshlrev_b32 v%d, 16, v%d" % (v, v))


def wave_reduce(a, regs):
    assert len(regs) >= 3
    steps = ["quad_perm:[1,0,3,2] row_mask:0xf bank_mask:0xf",
             "quad_perm:[2,3,0,1] row_mask:0xf bank_mask:0xf",
             "row_half_mirror row_mask:0xf bank_mask:0xf",
             "row_mirror row_mask:0xf bank_mask:0xf",
             "row_bcast:15 row_mask:0xa bank_mask:0xf",
             "row_bcast:31 row_mask:0xc bank_mask:0xf"]
    a.nop(2)
    for st in steps:
        for r in regs:
            a("v_add_f32_dpp v%d, v%d, v%d %s" % (r, r, r, st))
    a.nop(1)


RP = 1024 + 64
UTP = 128 + 64
TBP = 528
XT = 0
YT = 41 * TBP
KT = 45056 if FUSED else 82 * TBP
K1_LDS = KT + 2576
DSTEPS = ["quad_perm:[1,0,3,2] row_mask:0xf bank_mask:0xf",
          "quad_perm:[2,3,0,1] row_mask:0xf bank_mask:0xf",
          "row_half_mirror row_mask:0xf bank_mask:0xf",
          "row_mirror row_mask:0xf bank_mask:0xf",
          "row_bcast:15 row_mask:0xa bank_mask:0xf",
          "row_bcast:31 row_mask:0xc bank_mask:0xf"]


def prep_row(R, SR):
    a = A()
    XV, T, M = R + 8, R + 16, R + 24
    GW = 24
    for q in range(4):
        a("v_lshlrev_b32 v%d, 16, v%d" % (XV + 2 * q, R + q))
        a("v_and_b32 v%d, s27, v%d" % (XV + 2 * q + 1, R + q))
    for q in range(4):
        a("v_pk_mul_f32 v[%d:%d], v[%d:%d], v[%d:%d]" % (T + 2 * q, T + 2 * q + 1, XV + 2 * q, XV + 2 * q + 1, GW + 2 * q, GW + 2 * q + 1))
    a("v_pk_add_f32 v[%d:%d], v[%d:%d], v[%d:%d]" % (M, M + 1, XV, XV + 1, XV + 2, XV + 3))
    a("v_pk_add_f32 v[%d:%d], v[%d:%d], v[%d:%d]" % (M + 2, M + 3, XV + 4, XV + 5, XV + 6, XV + 7))
    for q in range(4):
        a("v_cvt_pk_bf16_f32 v%d, v%d, v%d" % (M + 4 + q, T + 2 * q, T + 2 * q + 1))
    a("v_pk_add_f32 v[%d:%d], v[%d:%d], v[%d:%d]" % (M, M + 1, M, M + 1, M + 2, M + 3))
    for q in range(4):
        a("v_lshlrev_b32 v%d, 16, v%d" % (T + 2 * q, M + 4 + q))
        a("v_and_b32 v%d, s27, v%d" % (T + 2 * q + 1, M + 4 + q))
    a("v_add_f32 v%d, v%d, v%d" % (M, M, M + 1))
    a("v_pk_add_f32 v[%d:%d], v[%d:%d], v[%d:%d]" % (M + 2, M + 3, T, T + 1, T + 2, T + 3))
    a("v_pk_add_f32 v[%d:%d], v[%d:%d], v[%d:%d]" % (M + 4, M + 5, T + 4, T + 5, T + 6, T + 7))
    a("v_pk_add_f32 v[%d:%d], v[%d:%d], v[%d:%d]" % (M + 2, M + 3, M + 2, M + 3, M + 4, M + 5))
    a("v_add_f32 v%d, v%d, v%d" % (M + 1, M + 2, M + 3))
    a.nop(1)
    for st in DSTEPS:
        a("v_add_f32_dpp v%d, v%d, v%d %s" % (M, M, M, st))
        a("v_add_f32_dpp v%d, v%d, v%d %s" % (M + 1, M + 1, M + 1, st))
        a.nop(1)
    a("v_readlane_b32 s%d, v%d, 63" % (SR, M))
    a("v_readlane_b32 s%d, v%d, 63" % (SR + 1, M + 1))
    a.nop(2)
    G = M + 10
    a("v_mul_f32 v%d, s%d, v60" % (M + 2, SR))
    a("v_mul_f32 v%d, s%d, v60" % (M + 3, SR))
    a("v_mov_b32 v%d, s%d" % (G, SR + 1))
    for q in range(4):
        a("v_pk_add_f32 v[%d:%d], v[%d:%d], v[%d:%d] neg_lo:[0,1] neg_hi:[0,1]" % (T + 2 * q, T + 2 * q + 1, XV + 2 * q, XV + 2 * q + 1, M + 2, M + 3))
    a("v_pk_mul_f32 v[%d:%d], v[%d:%d], v[%d:%d]" % (M + 4, M + 5, T, T + 1, T, T + 1))
    a("v_pk_mul_f32 v[%d:%d], v[%d:%d], v[%d:%d]" % (M + 6, M + 7, T + 2, T + 3, T + 2, T + 3))
    a("v_pk_fma_f32 v[%d:%d], v[%d:%d], v[%d:%d], v[%d:%d]" % (M + 4, M + 5, T + 4, T + 5, T + 4, T + 5, M + 4, M + 5))
    a("v_pk_fma_f32 v[%d:%d], v[%d:%d], v[%d:%d], v[%d:%d]" % (M + 6, M + 7, T + 6, T + 7, T + 6, T + 7, M + 6, M + 7))
    bf16r(a, G)
    a("v_pk_add_f32 v[%d:%d], v[%d:%d], v[%d:%d]" % (M + 4, M + 5, M + 4, M + 5, M + 6, M + 7))
    a("v_mul_f32 v%d, 0x%x, v%d" % (G, f32(-1.4426950408889634), G))
    a("v_add_f32 v%d, v%d, v%d" % (M + 4, M + 4, M + 5))
    a("v_exp_f32 v%d, v%d" % (G, G))
    bf16r(a, M + 2)
    for k, st in enumerate(DSTEPS):
        a("v_add_f32_dpp v%d, v%d, v%d %s" % (M + 4, M + 4, M + 4, st))
        if k == 0:
            a("v_add_f32 v%d, 1.0, v%d" % (G, G))
            a("v_mov_b32 v%d, v%d" % (M + 3, M + 2))
        elif k == 1:
            a("v_rcp_f32 v%d, v%d" % (G, G))
            a.nop(1)
        else:
            a.nop(2)
    a("v_readlane_b32 s%d, v%d, 63" % (SR + 2, M + 4))
    for q in range(4):
        a("v_pk_add_f32 v[%d:%d], v[%d:%d], v[%d:%d] neg_lo:[0,1] neg_hi:[0,1]" % (XV + 2 * q, XV + 2 * q + 1, XV + 2 * q, XV + 2 * q + 1, M + 2, M + 3))
    a("v_mul_f32 v%d, s%d, v60" % (M + 4, SR + 2))
    for q in range(4):
        a("v_cvt_pk_bf16_f32 v%d, v%d, v%d" % (T + q, XV + 2 * q, XV + 2 * q + 1))
    bf16r(a, M + 4)
    bf16r(a, G)
    a("v_add_f32 v%d, v%d, v61" % (M + 4, M + 4))
    for q in range(4):
        a("v_lshlrev_b32 v%d, 16, v%d" % (XV + 2 * q, T + q))
        a("v_and_b32 v%d, s27, v%d" % (XV + 2 * q + 1, T + q))
    bf16r(a, M + 4)
    a("v_sqrt_f32 v%d, v%d" % (M + 4, M + 4))
    a.nop(1)
    bf16r(a, M + 4)
    a("v_rcp_f32 v%d, v%d" % (M + 4, M + 4))
    a.nop(1)
    a("v_mov_b32 v%d, v%d" % (M + 5, M + 4))
    for q in range(4):
        a("v_pk_mul_f32 v[%d:%d], v[%d:%d], v[%d:%d]" % (XV + 2 * q, XV + 2 * q + 1, XV + 2 * q, XV + 2 * q + 1, M + 4, M + 5))
    for q in range(4):
        a("v_cvt_pk_bf16_f32 v%d, v%d, v%d" % (T + q, XV + 2 * q, XV + 2 * q + 1))
    return a.L, T, G


def gen_prep(a, first_wg):
    a.c("---- prep role: wave handles 2 rows, WG = 8 rows")
    a.cur = "prep"
    if not FUSED:
        trace_begin(a)
    stamp(a)
    if first_wg:
        a("s_sub_u32 s2, s2, %d" % first_wg)
    a("s_load_dwordx2 s[4:5], s[0:1], 0")
    a("s_load_dwordx2 s[6:7], s[0:1], 112")
    a("s_load_dwordx2 s[8:9], s[0:1], 136")
    a("v_lshrrev_b32 v1, 6, v0")
    a("v_and_b32 v2, 63, v0")
    a("v_readfirstlane_b32 s3, v1")
    a("v_lshlrev_b32 v3, 4, v2")
    a("s_lshl_b32 s24, s2, 3")
    a("s_lshl_b32 s25, s3, 1")
    a("s_add_u32 s24, s24, s25")
    a("s_lshl_b32 s25, s24, 10")
    a("s_mov_b32 s27, 0xffff0000")
    a("s_waitcnt lgkmcnt(0)")
    srd(a, 12, 4, 2 * MB)
    srd(a, 16, 6, 1024)
    R0, R1 = 64, 104
    a("buffer_load_dwordx4 v[%d:%d], v3, s[12:15], s25 offen" % (R0, R0 + 3))
    a("buffer_load_dwordx4 v[%d:%d], v3, s[12:15], s25 offen offset:1024" % (R1, R1 + 3))
    a("buffer_load_dwordx4 v[12:15], v3, s[16:19], 0 offen")
    a("s_lshr_b32 s40, s2, 3")
    a("s_and_b32 s41, s2, 7")
    a("s_lshl_b32 s42, s40, 16")
    a("s_lshl_b32 s43, s41, 7")
    a("s_add_u32 s42, s42, s43")
    a("v_lshrrev_b32 v44, 3, v0")
    a("v_and_b32 v45, 7, v0")
    a("v_lshlrev_b32 v43, 10, v44")
    a("v_lshl_add_u32 v43, v45, 4, v43")
    a("buffer_load_dwordx4 v[32:35], v43, s[12:15], s42 offen")
    a("s_add_u32 s43, s42, 32768")
    a("buffer_load_dwordx4 v[36:39], v43, s[12:15], s43 offen")
    a("v_mul_u32_u24 v40, %d, v44" % UTP)
    a("v_lshl_add_u32 v40, v45, 4, v40")
    a("v_and_b32 v44, 15, v2")
    a("v_lshrrev_b32 v41, 2, v44")
    a("s_lshl_b32 s44, s3, 4")
    a("v_add_u32 v41, s44, v41")
    a("v_mul_u32_u24 v41, %d, v41" % UTP)
    a("v_and_b32 v44, 3, v44")
    a("v_lshl_add_u32 v41, v44, 3, v41")
    a("v_lshrrev_b32 v44, 4, v2")
    a("v_lshl_add_u32 v41, v44, 5, v41")
    a("v_lshlrev_b32 v42, 12, v2")
    a("s_lshl_b32 s44, s41, 18")
    a("s_lshl_b32 s45, s40, 7")
    a("s_add_u32 s44, s44, s45")
    a("s_lshl_b32 s45, s3, 5")
    a("s_add_u32 s44, s44, s45")
    a("s_add_u32 s44, s44, 0x%x" % WS_UF)
    srd(a, 20, 8, WS_SIZE)
    a("s_mul_i32 s26, s3, %d" % (2 * RP))
    a("v_add_u32 v4, s26, v3")
    a("v_and_b32 v5, 15, v2")
    a("v_lshrrev_b32 v6, 2, v5")
    a("v_mul_u32_u24 v6, %d, v6" % RP)
    a("v_and_b32 v5, 3, v5")
    a("v_lshl_add_u32 v6, v5, 3, v6")
    a("v_lshrrev_b32 v5, 4, v2")
    a("v_lshl_add_u32 v6, v5, 5, v6")
    a("s_lshl_b32 s26, s3, 8")
    a("v_add_u32 v6, s26, v6")
    a("v_lshrrev_b32 v7, 5, v2")
    a("s_lshl_b32 s26, s3, 2")
    a("v_add_u32 v7, s26, v7")
    a("v_lshlrev_b32 v7, 17, v7")
    a("v_and_b32 v5, 31, v2")
    a("v_lshl_add_u32 v7, v5, 4, v7")
    a("s_lshl_b32 s28, s2, 9")
    a("s_add_u32 s29, s28, %d" % (2 * 131072))
    a("v_mov_b32 v60, 0x%x" % f32(1.0 / 512))
    a("v_mov_b32 v61, 0x%x" % f32(1e-5))
    a("s_lshl_b32 s30, s24, 2")
    a("s_add_u32 s30, s30, 0x%x" % WS_GT)
    a("v_mov_b32 v8, 0")
    a("s_waitcnt vmcnt(2)")
    stamp(a)
    for q in range(4):
        a("v_lshlrev_b32 v%d, 16, v%d" % (24 + 2 * q, 12 + q))
        a("v_and_b32 v%d, s27, v%d" % (25 + 2 * q, 12 + q))
    L0, T0, G0 = prep_row(R0, 32)
    L1, T1, G1 = prep_row(R1, 36)
    for x, y in zip(L0, L1):
        if "s_nop 0" in x:
            continue
        if "s_nop 1" in x:
            a("s_nop 0")
            continue
        a.L.append(x)
        a.L.append(y)
    a("s_waitcnt vmcnt(0)")
    a("ds_write_b128 v40, v[32:35] offset:%d" % (8 * RP))
    a("ds_write_b128 v40, v[36:39] offset:%d" % (8 * RP + 32 * UTP))
    a("ds_write_b128 v4, v[%d:%d]" % (T0, T0 + 3))
    a("ds_write_b128 v4, v[%d:%d] offset:%d" % (T1, T1 + 3, RP))
    GL = 8 * RP + 64 * UTP
    a("s_lshl_b32 s31, s3, 3")
    a("v_mov_b32 v9, s31")
    a("s_mov_b64 exec, 1")
    a("ds_write2_b32 v9, v%d, v%d offset0:%d offset1:%d" % (G0, G1, 0, 1) if False else "v_add_u32 v9, %d, v9" % GL)
    a("ds_write2_b32 v9, v%d, v%d offset0:0 offset1:1" % (G0, G1))
    a("s_mov_b64 exec, -1")
    a("s_waitcnt lgkmcnt(0)")
    a("s_barrier")
    stamp(a)
    for p in range(2):
        a("ds_read_b64_tr_b16 v[%d:%d], v6 offset:%d" % (8 + 4 * p, 9 + 4 * p, 128 * p))
        a("ds_read_b64_tr_b16 v[%d:%d], v6 offset:%d" % (10 + 4 * p, 11 + 4 * p, 4 * RP + 128 * p))
    for p in range(2):
        for h in range(2):
            a("ds_read_b64_tr_b16 v[%d:%d], v41 offset:%d" % (32 + 4 * p + 2 * h, 33 + 4 * p + 2 * h, 8 * RP + (8 * p + 4 * h) * UTP))
    a("s_waitcnt lgkmcnt(6)")
    a("buffer_store_dwordx4 v[8:11], v7, s[20:23], s28 offen" + SC)
    a("s_waitcnt lgkmcnt(4)")
    a("buffer_store_dwordx4 v[12:15], v7, s[20:23], s29 offen" + SC)
    a("v_mul_u32_u24 v42, 144, v2")
    a("s_lshl_b32 s45, s3, 5")
    a("v_add_u32 v42, s45, v42")
    a("s_waitcnt lgkmcnt(0)")
    a("ds_write_b128 v42, v[32:35] offset:%d" % (GL + 64))
    a("ds_write_b128 v42, v[36:39] offset:%d" % (GL + 64 + 16))
    a("v_lshrrev_b32 v44, 3, v0")
    a("v_and_b32 v45, 7, v0")
    a("v_mul_u32_u24 v42, 144, v44")
    a("v_lshl_add_u32 v42, v45, 4, v42")
    a("v_lshlrev_b32 v43, 12, v44")
    a("v_lshl_add_u32 v43, v45, 4, v43")
    a("s_lshl_b32 s44, s41, 18")
    a("s_lshl_b32 s45, s40, 7")
    a("s_add_u32 s44, s44, s45")
    a("s_add_u32 s44, s44, 0x%x" % WS_UF)
    a("s_add_u32 s45, s44, %d" % (32 * 4096))
    a("v_lshlrev_b32 v9, 2, v2")
    a("s_lshl_b32 s30, s2, 5")
    a("s_add_u32 s30, s30, 0x%x" % WS_GT)
    a("s_waitcnt lgkmcnt(0)")
    a("s_barrier")
    a("ds_read_b128 v[32:35], v42 offset:%d" % (GL + 64))
    a("ds_read_b128 v[36:39], v42 offset:%d" % (GL + 64 + 32 * 144))
    a("ds_read_b32 v10, v9 offset:%d" % GL)
    a("s_waitcnt lgkmcnt(2)")
    a("buffer_store_dwordx4 v[32:35], v43, s[20:23], s44 offen" + SC)
    a("s_waitcnt lgkmcnt(1)")
    a("buffer_store_dwordx4 v[36:39], v43, s[20:23], s45 offen" + SC)
    a("s_waitcnt lgkmcnt(0)")
    a("s_cmp_lg_u32 s3, 0")
    a("s_cbranch_scc1 L_prep_nog")
    a("s_mov_b64 exec, 0xff")
    a("buffer_store_dword v10, v9, s[20:23], s30 offen" + SC)
    a("s_mov_b64 exec, -1")
    a.lab("L_prep_nog")
    if FUSED:
        a("s_load_dwordx2 s[40:41], s[0:1], 128")
        a("s_waitcnt vmcnt(0) lgkmcnt(0)")
        a("s_barrier")
        a("s_mov_b32 s42, 256")
        a("s_mov_b32 s43, 0x00020000")
        a("s_cmp_lg_u32 s3, 0")
        a("s_cbranch_scc1 L_prep_noflag")
        a("v_mov_b32 v9, 1")
        a("v_mov_b32 v8, 0")
        a("s_mov_b64 exec, 1")
        a("s_and_b32 s44, s2, 63")
        a("s_lshl_b32 s44, s44, 2")
        a("buffer_atomic_add v9, v8, s[40:43], s44 offen sc1")
        a("s_mov_b64 exec, -1")
        a.lab("L_prep_noflag")
        if "trace" in X:
            a("s_memrealtime s[86:87]")
            a("s_waitcnt lgkmcnt(0)")
        return
    stamp(a)
    dump_stamps(a, 5)
    trace_end(a, 0)
    a("s_endpgm")


def gen_utr(a, first_wg):
    a.c("---- U transposer role: tile 64 s x 64 d -> UT[d][s]")
    a.cur = "utr"
    trace_begin(a)
    a("s_sub_u32 s2, s2, %d" % first_wg)
    a("s_load_dwordx2 s[4:5], s[0:1], 0")
    a("s_load_dwordx2 s[8:9], s[0:1], 136")
    a("v_lshrrev_b32 v1, 6, v0")
    a("v_and_b32 v2, 63, v0")
    a("v_readfirstlane_b32 s3, v1")
    a("s_lshr_b32 s20, s2, 3")
    a("s_and_b32 s21, s2, 7")
    a("s_lshl_b32 s22, s20, 16")
    a("s_lshl_b32 s23, s21, 7")
    a("s_add_u32 s22, s22, s23")
    a("v_lshrrev_b32 v3, 3, v0")
    a("v_and_b32 v4, 7, v0")
    a("v_lshlrev_b32 v5, 10, v3")
    a("v_lshl_add_u32 v5, v4, 4, v5")
    a("v_mul_u32_u24 v6, %d, v3" % UTP)
    a("v_lshl_add_u32 v6, v4, 4, v6")
    a("s_waitcnt lgkmcnt(0)")
    srd(a, 12, 4, 2 * MB)
    a("buffer_load_dwordx4 v[8:11], v5, s[12:15], s22 offen")
    a("s_add_u32 s23, s22, 32768")
    a("buffer_load_dwordx4 v[12:15], v5, s[12:15], s23 offen")
    srd(a, 16, 8, WS_SIZE)
    a("v_and_b32 v3, 15, v2")
    a("v_lshrrev_b32 v4, 2, v3")
    a("s_lshl_b32 s24, s3, 4")
    a("v_add_u32 v4, s24, v4")
    a("v_mul_u32_u24 v4, %d, v4" % UTP)
    a("v_and_b32 v3, 3, v3")
    a("v_lshl_add_u32 v4, v3, 3, v4")
    a("v_lshrrev_b32 v3, 4, v2")
    a("v_lshl_add_u32 v4, v3, 5, v4")
    a("v_lshlrev_b32 v7, 12, v2")
    a("s_lshl_b32 s24, s21, 18")
    a("s_lshl_b32 s25, s20, 7")
    a("s_add_u32 s24, s24, s25")
    a("s_lshl_b32 s25, s3, 5")
    a("s_add_u32 s24, s24, s25")
    a("s_add_u32 s24, s24, 0x%x" % WS_UF)
    a("s_waitcnt vmcnt(1)")
    a("ds_write_b128 v6, v[8:11]")
    a("s_waitcnt vmcnt(0)")
    a("ds_write_b128 v6, v[12:15] offset:%d" % (32 * UTP))
    a("s_waitcnt lgkmcnt(0)")
    a("s_barrier")
    for p in range(2):
        for h in range(2):
            a("ds_read_b64_tr_b16 v[%d:%d], v4 offset:%d" % (8 + 4 * p + 2 * h, 9 + 4 * p + 2 * h, (8 * p + 4 * h) * UTP))
    a("s_waitcnt lgkmcnt(2)")
    a("buffer_store_dwordx4 v[8:11], v7, s[16:19], s24 offen")
    a("s_waitcnt lgkmcnt(0)")
    a("buffer_store_dwordx4 v[12:15], v7, s[16:19], s24 offen offset:16")
    trace_end(a, 0)
    a("s_endpgm")


def gen_kgen(a, first_wg):
    a.c("---- kgen role: one channel per workgroup")
    a.cur = "kgen"
    if not FUSED:
        trace_begin(a)
    stamp(a)
    if first_wg:
        a("s_sub_u32 s2, s2, %d" % first_wg)
    a("s_load_dwordx4 s[28:31], s[0:1], 8")
    a("s_load_dwordx4 s[32:35], s[0:1], 24")
    a("s_load_dwordx4 s[36:39], s[0:1], 40")
    a("s_load_dwordx2 s[40:41], s[0:1], 56")
    a("s_load_dwordx2 s[4:5], s[0:1], 136")
    a("s_load_dwordx2 s[6:7], s[0:1], 80")
    a("v_lshrrev_b32 v1, 6, v0")
    a("v_and_b32 v2, 63, v0")
    a("v_readfirstlane_b32 s3, v1")
    a("v_and_b32 v3, 127, v0")
    a("v_lshlrev_b32 v4, 1, v3")
    a("s_lshl_b32 s20, s2, 8")
    a("s_lshl_b32 s25, s2, 1")
    a("v_mov_b32 v6, 0")
    a("s_waitcnt lgkmcnt(0)")
    for k in range(6):
        srd(a, 44 + 4 * k, 28 + 2 * k, 131072)
        a("buffer_load_ushort v%d, v4, s[%d:%d], s20 offen" % (10 + k, 44 + 4 * k, 47 + 4 * k))
    srd(a, 12, 40, 1024)
    a("buffer_load_ushort v16, v6, s[12:15], s25 offen")
    if "pf1" in X:
        srd(a, 68, 6, 2048 * 1792 * 2)
        a("s_lshl_b32 s26, s2, 14")
        a("v_lshlrev_b32 v5, 4, v0")
        for k in range(4):
            a("buffer_load_dwordx4 v[%d:%d], v5, s[68:71], s26 offen" % (128 + 4 * k, 131 + 4 * k))
            if k < 3:
                a("s_add_u32 s26, s26, 4096")
    srd(a, 8, 4, WS_SIZE)
    a("s_cmp_ge_u32 s3, 2")
    a("s_cselect_b32 s26, %d, %d" % (XT, YT))
    a("s_cselect_b32 s27, 0x%x, 0x%x" % (f32(16.0), f32(1.0)))
    a("s_cselect_b32 s36, 0x%x, 0x%x" % (f32(0.15915494309189535), f32(-0.15915494309189535)))
    a("v_lshlrev_b32 v8, 2, v3")
    a("v_add_u32 v8, s26, v8")
    a("v_lshlrev_b32 v28, 3, v0")
    a("v_sub_u32 v28, 2047, v28")
    a("s_mov_b32 s28, 0xffff")
    a("s_mov_b32 s29, %d" % (0x4300 - 128))
    for j in range(8):
        a("v_subrev_u32 v%d, %d, v28" % (48 + j, j))
        a("v_cvt_f32_u32 v%d, v%d" % (56 + j, 48 + j))
    for j in range(0, 8, 2):
        a("v_cvt_pk_bf16_f32 v%d, v%d, v%d" % (56 + j, 56 + j, 57 + j))
    for j in range(0, 8, 2):
        a("v_lshrrev_b32 v%d, 16, v%d" % (57 + j, 56 + j))
        a("v_and_b32 v%d, s28, v%d" % (56 + j, 56 + j))
    for j in range(8):
        a("v_subrev_u32 v%d, s29, v%d" % (56 + j, 56 + j))
    for j in range(8):
        a("v_min_u32 v%d, 0x80, v%d" % (48 + j, 48 + j))
    for j in range(8):
        a("v_max_i32 v%d, v%d, v%d" % (56 + j, 56 + j, 48 + j))
    for j in range(8):
        a("v_lshlrev_b32 v%d, 2, v%d" % (56 + j, 56 + j))
    a("v_and_b32 v9, 15, v2")
    a("v_lshrrev_b32 v17, 4, v2")
    a("s_lshl_b32 s26, s3, 3")
    a("s_add_u32 s26, s26, 8")
    a("s_cmp_eq_u32 s3, 0")
    a("s_cselect_b32 s26, 0, s26")
    a("v_add_u32 v18, s26, v9")
    a("v_mul_u32_u24 v18, %d, v18" % TBP)
    a("v_lshl_add_u32 v18, v17, 4, v18")
    a("v_lshlrev_b32 v19, s3, v9")
    a("v_or_b32 v29, 8, v19")
    a("v_ffbh_u32 v29, v29")
    a("v_sub_u32 v29, 28, v29")
    a("v_lshrrev_b32 v19, v29, v19")
    a("v_lshl_add_u32 v19, v29, 3, v19")
    a("v_mul_u32_u24 v19, %d, v19" % TBP)
    a("v_lshl_add_u32 v19, v17, 4, v19")
    a("s_waitcnt vmcnt(%d)" % (4 if "pf1" in X else 0))
    for k in range(7):
        a("v_lshlrev_b32 v%d, 16, v%d" % (10 + k, 10 + k))
    a("v_mul_f32 v16, 0x%x, v16" % f32(1.4426950408889634))
    a("v_exp_f32 v16, v16")
    a.nop(1)
    bf16r(a, 16)
    a("v_mul_f32 v20, v16, v10")
    a("v_mul_f32 v21, v16, v11")
    a("v_mul_f32 v12, v16, v12")
    a("v_mul_f32 v13, v16, v13")
    a("v_mul_f32 v20, 0x%x, v20" % f32(1.4426950408889634))
    a("v_mul_f32 v21, s36, v21")
    a("v_mul_f32 v20, s27, v20")
    a("v_mul_f32 v21, s27, v21")
    a("v_mul_f32 v22, v14, v12")
    a("v_mul_f32 v23, v14, v13")
    a("v_fract_f32 v21, v21")
    a("v_exp_f32 v20, v20")
    a("v_fma_f32 v22, -v15, v13, v22")
    a("v_fma_f32 v23, v15, v12, v23")
    a("v_cos_f32 v24, v21")
    a("v_sin_f32 v25, v21")
    a("v_mov_b32 v26, 1.0")
    a("v_mov_b32 v27, 0")
    a("v_mul_f32 v24, v20, v24")
    a("v_mul_f32 v25, v20, v25")
    a("s_cmp_ge_u32 s3, 2")
    a("s_cbranch_scc0 L_kg_y")
    a("v_mov_b32 v26, v22")
    a("v_mov_b32 v27, v23")
    a.lab("L_kg_y")

    def cmul(dst, x, w):
        a("v_pk_mul_f32 v[30:31], v[%d:%d], v[%d:%d] op_sel:[0,0] op_sel_hi:[1,0]" % (x, x + 1, w, w + 1))
        a("v_pk_fma_f32 v[%d:%d], v[%d:%d], v[%d:%d], v[30:31] op_sel:[1,1,0] op_sel_hi:[0,1,1] neg_lo:[1,0,0]" %
          (dst, dst + 1, x, x + 1, w, w + 1))

    W = [24, 32, 34, 36]
    for k in range(1, 4):
        cmul(W[k], W[k - 1], W[k - 1])
    if "k1slow" in X:
        a("v_mov_b32 v38, v26")
        a("v_mov_b32 v39, v27")
        a("s_mov_b32 s21, 200")
        a.lab("L_slow")
        cmul(38, 38, 24)
        cmul(38, 38, 24)
        a("s_sub_u32 s21, s21, 1")
        a("s_cmp_lg_u32 s21, 0")
        a("s_cbranch_scc1 L_slow")
    for row in range(41):
        a("v_cvt_pk_bf16_f32 v%d, v26, v27" % (40 + (row & 3)))
        if row < 40:
            cmul(26, 26, W[0] if row < 16 else (W[1] if row < 24 else (W[2] if row < 32 else W[3])))
        if row & 1:
            a("ds_write2_b32 v8, v%d, v%d offset0:%d offset1:%d" % (40 + ((row - 1) & 3), 40 + (row & 3), 0, TBP // 4))
            if row < 40:
                a("v_add_u32 v8, %d, v8" % (2 * TBP))
        elif row == 40:
            a("ds_write_b32 v8, v%d" % (40 + (row & 3)))
    a("s_waitcnt lgkmcnt(0)")
    a("s_barrier")
    stamp(a)
    for kap in range(8):
        a("ds_read_b128 v[%d:%d], v18 offset:%d" % (64 + 8 * kap, 67 + 8 * kap, XT + 64 * kap))
        a("ds_read_b128 v[%d:%d], v19 offset:%d" % (68 + 8 * kap, 71 + 8 * kap, YT + 64 * kap))
    a("s_lshl_b32 s26, s3, 7")
    a("s_add_u32 s26, s26, 128")
    a("s_cmp_eq_u32 s3, 0")
    a("s_cselect_b32 s26, 0, s26")
    a("s_mov_b32 s27, 128")
    a("s_cselect_b32 s27, 256, s27")
    a("s_cmp_eq_u32 s3, 3")
    a("s_cselect_b32 s27, 129, s27")
    a("v_lshl_add_u32 v13, v17, 6, v9")
    a("v_add_u32 v15, s26, v13")
    a("v_lshlrev_b32 v15, 2, v15")
    for kap in range(8):
        a("s_waitcnt lgkmcnt(%d)" % (14 - 2 * kap))
        c0 = "0" if kap == 0 else "v[44:47]"
        a("v_mfma_f32_16x16x32_bf16 v[44:47], v[%d:%d], v[%d:%d], %s" % (64 + 8 * kap, 67 + 8 * kap, 68 + 8 * kap, 71 + 8 * kap, c0))
    a("s_lshl_b32 s22, s2, 12")
    a("s_add_u32 s22, s22, 0x%x" % WS_RK)
    a("v_lshlrev_b32 v3, 4, v0")
    a.nop(5)
    for reg in range(4):
        a("v_add_u32 v14, %d, v13" % (16 * reg))
        a("v_cmp_gt_u32 vcc, s27, v14")
        a("s_and_saveexec_b64 s[30:31], vcc")
        a("ds_write_b32 v15, v%d offset:%d" % (44 + reg, KT + 64 * reg))
        a("s_mov_b64 exec, s[30:31]")
    if FUSED:
        poll_flags(a, "cv")
    a("s_waitcnt lgkmcnt(0)")
    a("s_barrier")
    stamp(a)
    if FUSED:
        return
    for j in range(8):
        a("ds_read_b32 v%d, v%d offset:%d" % (64 + j, 56 + j, KT))
    a("s_waitcnt lgkmcnt(0)")
    for q in range(4):
        a("v_cvt_pk_bf16_f32 v%d, v%d, v%d" % (8 + q, 64 + 2 * q, 65 + 2 * q))
    a("buffer_store_dwordx4 v[8:11], v3, s[8:11], s22 offen")
    stamp(a)
    dump_stamps(a, 77, 64)
    trace_end(a, 0)
    a("s_endpgm")


CP = 4416
UB = 8 * CP
UP = 144
K2_LDS = 49152


def gen_conv(a, first_wg):
    a.c("---- conv role: one channel per workgroup")
    a.cur = "conv"
    if not FUSED:
        trace_begin(a)
    stamp(a)
    if FUSED:
        for j in range(8):
            a("ds_read_b32 v%d, v%d offset:%d" % (64 + j, 56 + j, KT))
    if first_wg:
        a("s_sub_u32 s2, s2, %d" % first_wg)
    a("s_load_dwordx2 s[4:5], s[0:1], 136")
    a("s_load_dwordx2 s[6:7], s[0:1], 96")
    a("s_load_dwordx2 s[42:43], s[0:1], 64")
    a("v_lshrrev_b32 v1, 6, v0")
    a("v_and_b32 v2, 63, v0")
    a("v_readfirstlane_b32 s3, v1")
    a("s_lshl_b32 s25, s2, 1")
    a("v_mov_b32 v6, 0")
    a("v_lshlrev_b32 v3, 4, v0")
    a("s_lshl_b32 s21, s2, 12")
    a("s_add_u32 s20, s21, 0x%x" % WS_RK)
    a("s_add_u32 s22, s21, 0x%x" % WS_UF)
    a("s_add_u32 s23, s21, 0x%x" % WS_AF)
    a("s_waitcnt lgkmcnt(0)")
    if not FUSED:
        a("s_add_u32 s12, s4, s20")
        a("s_addc_u32 s13, s5, 0")
        a("s_mov_b32 s14, 4096")
        a("s_mov_b32 s15, 0x00020000")
        a("buffer_load_dwordx4 v[8:11], v3, s[12:15], 0 offen")
        a("buffer_load_dwordx4 v[12:15], v3, s[12:15], 0 offen offset:16")
    else:
        for q in range(4):
            a("v_cvt_pk_bf16_f32 v%d, v%d, v%d" % (8 + q, 64 + 2 * q, 65 + 2 * q))
        a("ds_write_b128 v3, v[8:11]")
    srd(a, 8, 4, WS_SIZE)
    a("buffer_load_dwordx4 v[152:155], v3, s[8:11], s22 offen")
    srd(a, 16, 42, 1024)
    a("v_lshlrev_b32 v7, 5, v0")
    a("s_mov_b32 s24, 0x%x" % WS_GT)
    a("buffer_load_dwordx4 v[156:159], v7, s[8:11], s24 offen")
    a("buffer_load_dwordx4 v[160:163], v7, s[8:11], s24 offen offset:16")
    a("buffer_load_ushort v164, v6, s[16:19], s25 offen")
    NPF = 0
    if "pf2" in X:
        NPF = 4
        srd(a, 68, 6, 2048 * 1792 * 2)
        a("s_lshl_b32 s26, s2, 14")
        for k in range(4):
            a("buffer_load_dwordx4 v[%d:%d], v3, s[68:71], s26 offen" % (128 + 4 * k, 131 + 4 * k))
            if k < 3:
                a("s_add_u32 s26, s26, 4096")
    for k in range(4):
        a("v_mov_b32 v%d, 0" % (48 + k))
    a("ds_write_b128 v3, v[48:51] offset:%d" % UB)
    a("v_lshrrev_b32 v4, 3, v2")
    a("v_mul_u32_u24 v4, %d, v4" % CP)
    a("v_and_b32 v7, 7, v2")
    a("v_lshl_add_u32 v4, v7, 4, v4")
    a("v_add_u32 v4, 4096, v4")
    a("v_add_u32 v5, %d, v3" % (UB + 4096))
    a("s_cmp_eq_u32 s3, 0")
    a("s_cbranch_scc1 L_cv_z0")
    a("s_cmp_eq_u32 s3, 1")
    a("s_cbranch_scc0 L_cv_z1")
    a("ds_write_b128 v4, v[48:51]")
    a("s_branch L_cv_z1")
    a.lab("L_cv_z0")
    a("s_mov_b32 exec_hi, 0")
    a("ds_write_b128 v5, v[48:51]")
    a("s_mov_b64 exec, -1")
    a.lab("L_cv_z1")
    a("v_lshrrev_b32 v6, 3, v0")
    a("v_mul_u32_u24 v6, %d, v6" % UP)
    a("v_and_b32 v7, 7, v0")
    a("v_lshl_add_u32 v6, v7, 4, v6")
    a("v_and_b32 v20, 31, v2")
    a("v_lshrrev_b32 v21, 5, v2")
    a("v_and_b32 v22, 7, v20")
    a("v_sub_u32 v22, 7, v22")
    a("v_mul_u32_u24 v22, %d, v22" % CP)
    a("v_lshrrev_b32 v23, 3, v20")
    a("v_sub_u32 v23, v21, v23")
    a("v_lshl_add_u32 v22, v23, 4, v22")
    a("s_lshl_b32 s28, s3, 10")
    a("s_sub_u32 s28, %d, s28" % (16 * 255 - 128 * 7 - 64))
    a("v_add_u32 v18, s28, v22")
    a("v_mul_u32_u24 v23, %d, v20" % UP)
    a("v_lshl_add_u32 v23, v21, 4, v23")
    a("s_mul_i32 s29, s3, %d" % (8 * UP))
    a("s_sub_u32 s29, %d, s29" % (UB + UP * 25))
    a("v_add_u32 v19, s29, v23")
    if FUSED:
        a("s_waitcnt lgkmcnt(0)")
        a("s_barrier")
        a("ds_read_b128 v[12:15], v3 offset:16")
        a("s_waitcnt lgkmcnt(0)")
    else:
        a("s_waitcnt vmcnt(%d)" % (4 + NPF))
    for k in range(1, 8):
        a("v_mov_b32 v%d, v%d" % (65 + k, 8 + k))
    for k in range(7):
        a("v_alignbit_b32 v%d, v%d, v%d, 16" % (74 + k, 9 + k, 8 + k))
    for k in range(1, 7):
        a("v_alignbit_b32 v%d, v%d, v%d, 16" % (83 + k, 9 + k, 8 + k))
    src = {0: 8, 2: 66, 4: 10, 6: 68, 1: 74, 3: 84, 5: 76, 7: 86}
    for s in range(1 if FUSED else 0, 8):
        a("ds_write_b128 v3, v[%d:%d] offset:%d" % (src[s], src[s] + 3, s * CP))
    a("s_waitcnt vmcnt(%d)" % (3 + NPF))
    a("ds_write_b128 v6, v[152:155] offset:%d" % (UB + 32 * UP))
    a("s_waitcnt lgkmcnt(0)")
    a("s_barrier")
    stamp(a)
    ACC = [64, 80]
    FA = [24 + 4 * k for k in range(10)]
    FB = [[96 + 4 * k for k in range(4)], [112 + 4 * k for k in range(4)]]
    free = list(range(10))
    cur = {}

    def loadA(dl, rel):
        sl = free.pop(0)
        a("ds_read_b128 v[%d:%d], v18 offset:%d" % (FA[sl], FA[sl] + 3, 128 * (7 - dl) + 64 - 2 * rel))
        return sl

    def loadB(dl):
        for k in range(4):
            a("ds_read_b128 v[%d:%d], v19 offset:%d" % (FB[dl & 1][k], FB[dl & 1][k] + 3, UP * (7 - dl) + 32 * k))

    for rel in (-48, -32, -16, 0, 16, 32):
        cur[rel] = loadA(0, rel)
    loadB(0)
    for dl in range(8):
        nxt = {}
        if dl < 7:
            nxt[-48] = cur[16]
            nxt[-32] = cur[32]
            for rel in (-16, 0, 16, 32):
                nxt[rel] = loadA(dl + 1, rel)
            loadB(dl + 1)
            a("s_waitcnt lgkmcnt(8)")
        else:
            a("s_waitcnt lgkmcnt(0)")
        for k in range(4):
            for beta in range(2):
                rel = 32 * beta - 16 * k
                c = "0" if (dl == 0 and k == 0) else "v[%d:%d]" % (ACC[beta], ACC[beta] + 15)
                a("v_mfma_f32_32x32x16_bf16 v[%d:%d], v[%d:%d], v[%d:%d], %s" %
                  (ACC[beta], ACC[beta] + 15, FA[cur[rel]], FA[cur[rel]] + 3, FB[dl & 1][k], FB[dl & 1][k] + 3, c))
        for rel in (-48, -32, -16, 0):
            free.append(cur[rel])
        cur = nxt
    a("v_mul_u32_u24 v24, 272, v20")
    a("v_lshl_add_u32 v24, v21, 4, v24")
    a("s_mul_i32 s28, s3, 8704")
    a("v_add_u32 v24, s28, v24")
    a("v_lshrrev_b32 v25, 3, v0")
    a("v_mul_u32_u24 v25, 272, v25")
    a("v_and_b32 v26, 7, v0")
    a("v_lshl_add_u32 v25, v26, 5, v25")
    a("s_mov_b32 s27, 0xffff0000")
    a("s_waitcnt vmcnt(0)")
    a("s_barrier")
    if "cv3" in X:
        trace_end(a, 1)
        a("s_endpgm")
    stamp(a)
    a.nop(4)
    for beta in range(2):
        for rq in range(4):
            a("ds_write_b128 v24, v[%d:%d] offset:%d" % (ACC[beta] + 4 * rq, ACC[beta] + 4 * rq + 3, (32 * beta + 8 * rq) * 4))
    a("v_lshlrev_b32 v164, 16, v164")
    a("v_mov_b32 v165, v164")
    for q in range(4):
        a("v_lshlrev_b32 v%d, 16, v%d" % (128 + 2 * q, 152 + q))
        a("v_and_b32 v%d, s27, v%d" % (129 + 2 * q, 152 + q))
    for q in range(4):
        a("v_pk_mul_f32 v[%d:%d], v[%d:%d], v[164:165]" % (128 + 2 * q, 129 + 2 * q, 128 + 2 * q, 129 + 2 * q))
    a("s_waitcnt lgkmcnt(0)")
    a("s_barrier")
    for w in range(4):
        a("ds_read_b128 v[%d:%d], v25 offset:%d" % (32 + 8 * w, 35 + 8 * w, w * 8704))
        a("ds_read_b128 v[%d:%d], v25 offset:%d" % (36 + 8 * w, 39 + 8 * w, w * 8704 + 16))
    a("s_waitcnt lgkmcnt(4)")
    for q in range(4):
        a("v_pk_add_f32 v[%d:%d], v[%d:%d], v[%d:%d]" % (32 + 2 * q, 33 + 2 * q, 32 + 2 * q, 33 + 2 * q, 40 + 2 * q, 41 + 2 * q))
    a("s_waitcnt lgkmcnt(0)")
    for q in range(4):
        a("v_pk_add_f32 v[%d:%d], v[%d:%d], v[%d:%d]" % (48 + 2 * q, 49 + 2 * q, 48 + 2 * q, 49 + 2 * q, 56 + 2 * q, 57 + 2 * q))
    for q in range(4):
        a("v_pk_add_f32 v[%d:%d], v[%d:%d], v[%d:%d]" % (32 + 2 * q, 33 + 2 * q, 32 + 2 * q, 33 + 2 * q, 48 + 2 * q, 49 + 2 * q))
    for q in range(4):
        a("v_pk_add_f32 v[%d:%d], v[%d:%d], v[%d:%d]" % (32 + 2 * q, 33 + 2 * q, 32 + 2 * q, 33 + 2 * q, 128 + 2 * q, 129 + 2 * q))
    for q in range(4):
        a("v_pk_mul_f32 v[%d:%d], v[%d:%d], v[%d:%d]" % (32 + 2 * q, 33 + 2 * q, 32 + 2 * q, 33 + 2 * q, 156 + 2 * q, 157 + 2 * q))
    for q in range(4):
        a("v_cvt_pk_bf16_f32 v%d, v%d, v%d" % (72 + q, 32 + 2 * q, 33 + 2 * q))
    a("buffer_store_dwordx4 v[72:75], v3, s[8:11], s23 offen")
    if "pf2e" in X:
        srd(a, 68, 6, 2048 * 1792 * 2)
        a("s_lshl_b32 s26, s2, 14")
        for k in range(4):
            a("buffer_load_dwordx4 v[%d:%d], v3, s[68:71], s26 offen" % (128 + 4 * k, 131 + 4 * k))
            if k < 3:
                a("s_add_u32 s26, s26, 4096")
    stamp(a)
    dump_stamps(a, 77, 64)
    trace_end(a, 0 if FUSED else 1)
    a("s_endpgm")


TP = 144
RED = 49152
K3_LDS = 65536 + 64 * TP


def gen_gemm(a, which):
    g1 = (which == 1)
    NOCT = 256 if g1 else 224
    S = 32 if g1 else 28
    NS = 6 if g1 else 8
    for tok in X.split(","):
        if tok.startswith("ns%d=" % which):
            NS = int(tok[4:])
    PW = 3584 if g1 else 4096
    WOFF = 80 if g1 else 96
    WBYTES = 2048 * 1792 * 2
    DOFF = WS_HF if g1 else WS_GF
    TPITCH = NOCT * 512
    NQ = 28 if g1 else 32
    TBASE = 65536
    a.c("---- gemm%d role" % which)
    a.cur = "g%d" % which
    trace_begin(a)
    stamp(a)
    a("s_load_dwordx2 s[4:5], s[0:1], %d" % WOFF)
    a("s_load_dwordx2 s[6:7], s[0:1], 136")
    a("s_load_dwordx2 s[36:37], s[0:1], %d" % (88 if g1 else 104))
    if not g1:
        a("s_load_dwordx2 s[38:39], s[0:1], 120")
    a("v_lshrrev_b32 v1, 6, v0")
    a("v_and_b32 v2, 63, v0")
    a("v_readfirstlane_b32 s3, v1")
    a("s_and_b32 s20, s2, 7")
    a("s_lshr_b32 s21, s2, 3")
    a("s_mul_i32 s20, s20, %d" % NQ)
    a("s_add_u32 s20, s20, s21")
    a("s_lshr_b32 s21, s20, 3")
    a("s_and_b32 s22, s20, 7")
    a("s_mul_i32 s23, s22, %d" % (2 * TPITCH))
    a("s_mul_i32 s24, s3, %d" % (S * 1024))
    a("s_add_u32 s23, s23, s24")
    a("s_add_u32 s23, s23, 0x%x" % DOFF)
    a("v_lshlrev_b32 v3, 4, v2")
    a("v_add_u32 v4, %d, v3" % TPITCH)
    a("v_lshrrev_b32 v5, 3, v2")
    a("v_and_b32 v6, 7, v2")
    a("v_lshlrev_b32 v7, 1, v5")
    a("v_and_b32 v7, 4, v7")
    a("v_xor_b32 v6, v6, v7")
    a("v_mul_u32_u24 v5, %d, v5" % PW)
    a("v_lshl_add_u32 v5, v6, 4, v5")
    a("s_lshl_b32 s24, s21, 7")
    a("v_add_u32 v5, s24, v5")
    a("s_mul_i32 s25, s3, %d" % (S * 16 * PW))
    a("s_mul_i32 s26, s3, %d" % (NS * 2048))
    a("s_waitcnt lgkmcnt(0)")
    srd(a, 8, 4, WBYTES)
    srd(a, 12, 6, WS_SIZE)
    ACC = [[16, 32], [48, 64]]
    DF = [80 + 8 * k for k in range(NS)]
    WFB = 80 + 8 * NS
    XR = WFB + 16

    a("s_and_b32 s48, s21, 3")
    a("s_lshl2_add_u32 s48, s22, s48")
    if "norot" in X:
        a("s_mov_b32 s48, 0")
    a("s_sub_u32 s49, s48, %d" % S)
    a("s_cmp_ge_u32 s48, %d" % S)
    a("s_cselect_b32 s48, s49, s48")

    def issue(st):
        sl = st % NS
        a("s_mul_i32 s27, s48, %d" % (16 * PW))
        a("s_add_u32 m0, s26, %d" % (sl * 2048))
        a("s_add_u32 s27, s27, s25")
        if "wreg" in X:
            a("buffer_load_dwordx4 v[%d:%d], v5, s[8:11], s27 offen" % (WFB + 8 * (st & 1), WFB + 8 * (st & 1) + 3))
        else:
            a("buffer_load_dwordx4 v5, s[8:11], s27 offen lds" + WH)
        a("s_add_u32 m0, s26, %d" % (sl * 2048 + 1024))
        a("s_add_u32 s27, s27, %d" % (8 * PW))
        a("s_lshl_b32 s28, s48, 10")
        if "wreg" in X:
            a("buffer_load_dwordx4 v[%d:%d], v5, s[8:11], s27 offen" % (WFB + 8 * (st & 1) + 4, WFB + 8 * (st & 1) + 7))
        else:
            a("buffer_load_dwordx4 v5, s[8:11], s27 offen lds" + WH)
        a("s_add_u32 s28, s28, s23")
        a("s_add_u32 s48, s48, 1")
        for t in range(2):
            r = DF[sl] + 4 * t
            a("buffer_load_dwordx4 v[%d:%d], v%d, s[12:15], s28 offen" % (r, r + 3, 3 + t) + DH)
        a("s_cmp_lg_u32 s48, %d" % S)
        a("s_cselect_b32 s48, s48, 0")

    if g1 and FUSED:
        a("s_mov_b32 s51, s48")
        for st in range(NS):
            a("s_mul_i32 s27, s51, %d" % (16 * PW))
            a("s_add_u32 s27, s27, s25")
            a("buffer_load_dwordx4 v[%d:%d], v5, s[8:11], s27 offen" % (DF[st], DF[st] + 3))
            a("s_add_u32 s27, s27, %d" % (8 * PW))
            a("s_add_u32 s51, s51, 1")
            a("buffer_load_dwordx4 v[%d:%d], v5, s[8:11], s27 offen" % (DF[st] + 4, DF[st] + 7))
            a("s_cmp_lg_u32 s51, %d" % S)
            a("s_cselect_b32 s51, s51, 0")
        poll_flags(a, "g1")
        a("s_waitcnt vmcnt(0)")
        a("s_barrier")
    issue(0)
    issue(1)
    srd(a, 40, 36, 3584 if g1 else 4096)
    if not g1:
        srd(a, 44, 38, 2 * MB)
    for st in range(2, NS):
        issue(st)
    a("v_lshrrev_b32 v8, 4, v2")
    a("v_and_b32 v9, 15, v2")
    a("v_lshrrev_b32 v10, 2, v9")
    a("v_and_b32 v11, 3, v9")
    a("v_lshrrev_b32 v12, 1, v8")
    a("v_lshl_add_u32 v12, v12, 3, v10")
    a("v_lshlrev_b32 v12, 7, v12")
    a("v_and_b32 v13, 1, v8")
    a("v_lshlrev_b32 v13, 1, v13")
    a("v_lshrrev_b32 v14, 1, v11")
    a("v_add_u32 v13, v13, v14")
    a("v_lshlrev_b32 v14, 1, v10")
    a("v_and_b32 v14, 4, v14")
    a("v_xor_b32 v13, v13, v14")
    a("v_lshl_add_u32 v12, v13, 4, v12")
    a("v_and_b32 v14, 1, v11")
    a("v_lshl_add_u32 v12, v14, 3, v12")
    a("v_add_u32 v12, s26, v12")
    a("v_xor_b32 v13, 64, v12")
    a("s_lshr_b32 s29, s3, 1")
    a("s_and_b32 s30, s3, 1")
    a("v_and_b32 v6, 31, v2")
    a("v_lshrrev_b32 v7, 5, v2")
    NX = 0
    if g1:
        a("s_lshl_b32 s31, s21, 7")
        a("s_lshl_b32 s32, s29, 6")
        a("s_add_u32 s31, s31, s32")
        a("v_lshlrev_b32 v14, 3, v7")
        for rq in range(4):
            a("buffer_load_dwordx2 v[%d:%d], v14, s[40:43], s31 offen offset:%d" % (XR + 2 * rq, XR + 2 * rq + 1, 16 * rq))
        NX = 4
    else:
        a("s_lshl_b32 s31, s22, 18")
        a("s_lshl_b32 s32, s21, 7")
        a("s_add_u32 s31, s31, s32")
        a("s_add_u32 s31, s31, 0x%x" % WS_AF)
        a("s_add_u32 s32, s31, 131072")
        a("v_lshrrev_b32 v14, 3, v0")
        a("v_and_b32 v15, 7, v0")
        a("v_lshlrev_b32 v15, 4, v15")
        a("v_lshl_add_u32 v15, v14, 12, v15")
        a("buffer_load_dwordx4 v[%d:%d], v15, s[12:15], s31 offen" % (XR, XR + 3))
        a("buffer_load_dwordx4 v[%d:%d], v15, s[12:15], s32 offen" % (XR + 4, XR + 7))
        a("s_lshl_b32 s33, s21, 6")
        a("s_lshl_b32 s34, s30, 5")
        a("s_add_u32 s33, s33, s34")
        a("v_add_u32 v14, s33, v6")
        a("v_lshlrev_b32 v15, 2, v14")
        a("s_mov_b32 s34, 0x%x" % WS_GT)
        a("buffer_load_dword v%d, v15, s[12:15], s34 offen" % (XR + 8))
        a("v_lshlrev_b32 v15, 1, v14")
        a("buffer_load_ushort v%d, v15, s[40:43], 0 offen" % (XR + 9))
        NX = 4
    stamp(a)

    def trreads(st):
        if "wreg" in X:
            return
        sl = st % NS
        for nu in range(2):
            for h in range(2):
                r = WFB + 8 * (st & 1) + 4 * nu + 2 * h
                a("ds_read_b64_tr_b16 v[%d:%d], v%d offset:%d" % (r, r + 1, 12 + nu, sl * 2048 + h * 512))

    def stage(st, sl, par, do_issue, wait_next, first=False):
        if wait_next is not None:
            a("s_waitcnt vmcnt(%d)" % wait_next)
            trreads2((sl + 1) % NS, par ^ 1)
            a("s_waitcnt lgkmcnt(4)")
        else:
            a("s_waitcnt lgkmcnt(0)")
        for nu in range(2):
            for t in range(2):
                wf = WFB + 8 * par + 4 * nu
                df = DF[sl] + 4 * t
                if g1:
                    acc = ACC[nu][t]
                    A_, B_ = wf, df
                else:
                    acc = ACC[t][nu]
                    A_, B_ = df, wf
                a("v_mfma_f32_32x32x16_bf16 v[%d:%d], v[%d:%d], v[%d:%d], v[%d:%d]" % (acc, acc + 15, A_, A_ + 3, B_, B_ + 3, acc, acc + 15))
        if do_issue:
            issue(sl)

    def trreads2(sl, par):
        if "wreg" in X:
            return
        for nu in range(2):
            for h in range(2):
                r = WFB + 8 * par + 4 * nu + 2 * h
                a("ds_read_b64_tr_b16 v[%d:%d], v%d offset:%d" % (r, r + 1, 12 + nu, sl * 2048 + h * 512))

    assert NS % 2 == 0
    for r in range(16, 80):
        a("v_mov_b32 v%d, 0" % r)
    NL = (S - NS) // NS
    a("s_mov_b32 s50, %d" % NL)
    a("s_waitcnt vmcnt(%d)" % (4 * (NS - 1) + NX))
    trreads2(0, 0)
    a.lab("L_g%d_loop" % which)
    for k in range(NS):
        stage(k, k, k & 1, True, 4 * (NS - 2))
    a("s_sub_u32 s50, s50, 1")
    a("s_cmp_lg_u32 s50, 0")
    a("s_cbranch_scc1 L_g%d_loop" % which)
    for st in range(NL * NS, S):
        k = st % NS
        iss = st + NS < S
        later = min(S - 1, st + NS - 1) - (st + 1)
        stage(st, k, st & 1, iss, (4 * later) if st + 1 < S else None)
    stamp(a)
    F = 80
    a("s_mov_b32 s27, 0xffff0000")
    if not g1:
        a("v_lshrrev_b32 v9, 3, v0")
        a("v_mul_u32_u24 v9, %d, v9" % TP)
        a("v_and_b32 v10, 7, v0")
        a("v_lshl_add_u32 v9, v10, 4, v9")
        a("v_add_u32 v9, %d, v9" % TBASE)
        a("s_waitcnt vmcnt(0)")
        a("ds_write_b128 v9, v[%d:%d]" % (XR, XR + 3))
        a("ds_write_b128 v9, v[%d:%d] offset:%d" % (XR + 4, XR + 7, 32 * TP))
    a("s_barrier")
    a.nop(4)
    for qd in range(4):
        acc = ACC[qd >> 1][qd & 1]
        a("s_cmp_eq_u32 s3, %d" % qd)
        a("s_cbranch_scc1 L_g%d_own%d" % (which, qd))
        a("s_sub_u32 s28, s3, %d" % (qd + 1))
        a("s_and_b32 s28, s28, 3")
        a("s_add_u32 s28, s28, %d" % (qd * 3))
        a("s_lshl_b32 s28, s28, 12")
        a("v_add_u32 v8, s28, v3")
        for rq in range(4):
            a("ds_write_b128 v8, v[%d:%d] offset:%d" % (acc + 4 * rq, acc + 4 * rq + 3, rq * 1024))
        a("s_branch L_g%d_nx%d" % (which, qd))
        a.lab("L_g%d_own%d" % (which, qd))
        for k in range(8):
            a("v_pk_add_f32 v[%d:%d], v[%d:%d], 0" % (F + 2 * k, F + 2 * k + 1, acc + 2 * k, acc + 2 * k + 1))
        a.lab("L_g%d_nx%d" % (which, qd))
    a("s_mul_i32 s28, s3, %d" % (3 * 4096))
    a("v_add_u32 v8, s28, v3")
    if g1:
        a("s_lshl_b32 s32, s22, 1")
        a("s_add_u32 s32, s32, s30")
        a("s_mul_i32 s32, s32, %d" % (224 * 512))
        a("s_lshl_b32 s33, s21, 12")
        a("s_add_u32 s32, s32, s33")
        a("s_lshl_b32 s33, s29, 11")
        a("s_add_u32 s32, s32, s33")
        a("s_add_u32 s32, s32, 0x%x" % WS_GF)
        a("v_lshlrev_b32 v11, 4, v6")
        a("v_lshl_add_u32 v11, v7, 3, v11")
    else:
        a("v_lshrrev_b32 v9, 4, v2")
        a("v_and_b32 v10, 15, v2")
        a("v_lshrrev_b32 v13, 2, v10")
        a("v_lshl_add_u32 v13, v7, 2, v13")
        a("v_mul_u32_u24 v13, %d, v13" % TP)
        a("v_and_b32 v10, 3, v10")
        a("v_lshl_add_u32 v13, v10, 3, v13")
        a("v_and_b32 v9, 1, v9")
        a("v_lshl_add_u32 v13, v9, 5, v13")
        a("s_mul_i32 s32, s29, %d" % (32 * TP))
        a("s_lshl_b32 s33, s30, 6")
        a("s_add_u32 s32, s32, s33")
        a("s_add_u32 s32, s32, %d" % TBASE)
        a("v_add_u32 v13, s32, v13")
        a("v_lshlrev_b32 v14, 10, v14")
        a("v_lshl_add_u32 v14, v7, 3, v14")
        a("s_lshl_b32 s33, s22, 7")
        a("s_lshl_b32 s34, s29, 6")
        a("s_add_u32 s33, s33, s34")
    a("s_waitcnt lgkmcnt(0)")
    a("s_barrier")
    P = 96
    for rq in range(4):
        for k in range(3):
            a("ds_read_b128 v[%d:%d], v8 offset:%d" % (P + 16 * k + 4 * rq, P + 16 * k + 4 * rq + 3, k * 4096 + rq * 1024))
    if not g1:
        for rq in range(4):
            a("ds_read_b64_tr_b16 v[%d:%d], v13 offset:%d" % (16 + 2 * rq, 17 + 2 * rq, 8 * rq * TP))
        a("v_lshlrev_b32 v%d, 16, v%d" % (XR + 9, XR + 9))
        a("v_sub_f32 v%d, 1.0, v%d" % (XR + 8, XR + 8))
        bf16r(a, XR + 8)
        a("v_mov_b32 v%d, v%d" % (XR + 11, XR + 9))
        a("v_mov_b32 v%d, v%d" % (XR + 10, XR + 9))
        a("v_mov_b32 v%d, v%d" % (XR + 9, XR + 8))
    else:
        a("s_waitcnt vmcnt(0)")
        k1 = -2.0 * 0.7978845608028654 * 1.4426950408889634
        a("v_mov_b32 v16, 0x%x" % f32(k1))
        a("v_mov_b32 v17, 0x%x" % f32(k1))
        a("v_mov_b32 v18, 0x%x" % f32(k1 * 0.044715))
        a("v_mov_b32 v19, 0x%x" % f32(k1 * 0.044715))
        a("v_mov_b32 v20, 1.0")
        a("v_mov_b32 v21, 1.0")
    nrd = 12 + (0 if g1 else 4)

    def pk(op, d, x, y):
        a("v_pk_%s_f32 v[%d:%d], v[%d:%d], v[%d:%d]" % (op, d, d + 1, x, x + 1, y, y + 1))

    def rnd(base, n, tmp):
        for k in range(n // 2):
            a("v_cvt_pk_bf16_f32 v%d, v%d, v%d" % (tmp + k, base + 2 * k, base + 2 * k + 1))
        for k in range(n // 2):
            a("v_lshlrev_b32 v%d, 16, v%d" % (base + 2 * k, tmp + k))
            a("v_and_b32 v%d, s27, v%d" % (base + 2 * k + 1, tmp + k))

    for half in range(2):
        a("s_waitcnt lgkmcnt(%d)" % (nrd - 6 * (half + 1)))
        for k in range(3):
            for e in range(4):
                pk("add", F + 8 * half + 2 * e, F + 8 * half + 2 * e, P + 16 * k + 8 * half + 2 * e)
    TM = 48
    B = 32
    if g1:
        for k in range(8):
            a("v_lshlrev_b32 v%d, 16, v%d" % (B + 2 * k, XR + k))
            a("v_and_b32 v%d, s27, v%d" % (B + 2 * k + 1, XR + k))
        for e in range(8):
            pk("add", F + 2 * e, F + 2 * e, B + 2 * e)
        for e in range(8):
            pk("mul", B + 2 * e, F + 2 * e, F + 2 * e)
        for e in range(8):
            a("v_pk_fma_f32 v[%d:%d], v[%d:%d], v[18:19], v[16:17]" % (B + 2 * e, B + 2 * e + 1, B + 2 * e, B + 2 * e + 1))
        for e in range(8):
            pk("mul", B + 2 * e, B + 2 * e, F + 2 * e)
        for j in range(16):
            a("v_exp_f32 v%d, v%d" % (B + j, B + j))
        for e in range(8):
            pk("add", B + 2 * e, B + 2 * e, 20)
        for j in range(16):
            a("v_rcp_f32 v%d, v%d" % (B + j, B + j))
        a.nop(1)
        for e in range(8):
            pk("mul", F + 2 * e, F + 2 * e, B + 2 * e)
        for k in range(8):
            a("v_cvt_pk_bf16_f32 v%d, v%d, v%d" % (TM + k, F + 2 * k, F + 2 * k + 1))
        for rq in range(4):
            a("buffer_store_dwordx2 v[%d:%d], v11, s[12:15], s32 offen offset:%d" % (TM + 2 * rq, TM + 2 * rq + 1, 512 * rq))
    else:
        for e in range(8):
            pk("add", F + 2 * e, F + 2 * e, XR + 10)
        a("s_waitcnt lgkmcnt(0)")
        for k in range(8):
            a("v_lshlrev_b32 v%d, 16, v%d" % (B + 2 * k, 16 + k))
            a("v_and_b32 v%d, s27, v%d" % (B + 2 * k + 1, 16 + k))
        for e in range(8):
            a("v_pk_fma_f32 v[%d:%d], v[%d:%d], v[%d:%d], v[%d:%d]" % (F + 2 * e, F + 2 * e + 1, F + 2 * e, F + 2 * e + 1, XR + 8, XR + 9, B + 2 * e, B + 2 * e + 1))
        for k in range(8):
            a("v_cvt_pk_bf16_f32 v%d, v%d, v%d" % (TM + k, F + 2 * k, F + 2 * k + 1))
        for rq in range(4):
            a("buffer_store_dwordx2 v[%d:%d], v14, s[44:47], s33 offen offset:%d" % (TM + 2 * rq, TM + 2 * rq + 1, 16 * rq))
    stamp(a)
    dump_stamps(a, 9)
    trace_end(a, which - (1 if FUSED else 0))
    a("s_endpgm")


def kd(name, vgpr, sgpr=102):
    acc = (vgpr + 3) // 4 * 4
    return """.amdhsa_kernel %s
  .amdhsa_next_free_vgpr %d
  .amdhsa_next_free_sgpr %d
  .amdhsa_accum_offset %d
  .amdhsa_group_segment_fixed_size 0
  .amdhsa_kernarg_size 144
  .amdhsa_user_sgpr_count 2
  .amdhsa_user_sgpr_kernarg_segment_ptr 1
  .amdhsa_system_sgpr_workgroup_id_x 1
.end_amdhsa_kernel
""" % (name, vgpr, sgpr, acc)


def main(out):
    ref = open("cdna_kernels/%s.s.ref" % NAME).read()
    head = []
    for ln in ref.splitlines():
        if ln.startswith("; @launch"):
            break
        if ln.startswith("; Override") or ln.startswith("; grid=ceil"):
            continue
        head.append(ln)
    a = A()
    K1, K2, K3 = "k1_prep_kernel", "k2_gemm1_conv_kernel", "k3_gemm2_kernel"
    if not FUSED:
        head.append("; @launch kernel=%s grid=(%d,1,1) block=(256,1,1) lds=%d" % (K1, 768, K1_LDS))
    head.append("; @launch kernel=%s grid=(%d,1,1) block=(256,1,1) lds=%d" % (K2, 224 + 512, K2_LDS))
    head.append("; @launch kernel=%s grid=(%d,1,1) block=(256,1,1) lds=%d" % (K3, 256, K3_LDS))
    a.L += head
    a.L.append('.amdgcn_target "amdgcn-amd-amdhsa--gfx950"')
    a.L.append(".text")

    def start(k):
        a.L.append(".globl %s" % k)
        a.L.append(".p2align 8")
        a.L.append(".type %s,@function" % k)
        a.lab(k)

    if not FUSED:
        start(K1)
        a("s_cmp_ge_u32 s2, 768")
        a("s_cbranch_scc1 L_k1_exit")
        a("s_cmp_ge_u32 s2, 512")
        a("s_cbranch_scc1 L_k1_prep")
        gen_kgen(a, 0)
        a.lab("L_k1_exit")
        a("s_endpgm")
        a.lab("L_k1_prep")
        gen_prep(a, 512)

    start(K2)
    a("s_cmp_ge_u32 s2, %d" % (224 + 512))
    a("s_cbranch_scc1 L_k2_exit")
    a("s_cmp_lt_u32 s2, 512")
    a("s_cbranch_scc1 L_k2_conv")
    a("s_sub_u32 s2, s2, 512")
    if "noprio" not in X:
        a("s_setprio 3")
    gen_gemm(a, 1)
    a.lab("L_k2_exit")
    a("s_endpgm")
    a.lab("L_k2_conv")
    if FUSED:
        a.cur = "conv"
        trace_begin(a)
        a("s_cmp_ge_u32 s2, 256")
        a("s_cbranch_scc1 L_k2_kgen")
        gen_prep(a, 0)
        a.lab("L_k2_kgen")
        gen_kgen(a, 0)
    gen_conv(a, 0)

    start(K3)
    a("s_cmp_ge_u32 s2, 256")
    a("s_cbranch_scc1 L_k3_exit")
    gen_gemm(a, 2)
    a.lab("L_k3_exit")
    a("s_endpgm")

    a.L.append('.section .rodata,"a"')
    for k, v in ((K1, 144), (K2, 168), (K3, 176))[1 if FUSED else 0:]:
        a.L.append(".p2align 6")
        a.L.append(kd(k, v))
    open(out, "w").write("\n".join(a.L) + "\n")


if __name__ == "__main__":
    main(sys.argv[1] if len(sys.argv) > 1 else "cdna_kernels/%s.s" % NAME)
```

```python
import struct, sys, os
X = os.environ.get("GENX", "")
GX = X
FUSED = "fuse" in X
SC = " sc1" if FUSED else ""
WH = " nt" if "wnt" in X else (" sc1" if "wsc1" in X else "")
DH = " nt" if "dnt" in X else (" sc1" if "dsc1" in X else "")

NAME = "gated_mix__ssm_conv_s4__mixer_token_mlp__prompt"

MB = 1 << 20
WS_HF = 0
WS_UF = 2 * MB
WS_GF = 4 * MB
WS_AF = 6 * MB
WS_GT = 8 * MB
WS_RK = 9 * MB
WS_SIZE = 268435456

NPREP = 64
HILO = True


def f32(x):
    return struct.unpack("<I", struct.pack("<f", x))[0]


class A:
    def __init__(self):
        self.L = []
        self.cur = ""

    def __call__(self, s):
        self.L.append("    " + s)

    def lab(self, s):
        self.L.append(s + ":")

    def nop(self, n):
        while n > 0:
            k = min(n, 16)
            self("s_nop %d" % (k - 1))
            n -= k

    def c(self, s):
        self.L.append("    ; " + s)


STAMPS = [0]
def stamp(a):
    if "stamp" not in X:
        return
    k = STAMPS[0]
    a("s_memtime s[%d:%d]" % (72 + 2 * k, 73 + 2 * k))
    STAMPS[0] += 1


def dump_stamps(a, wg, off=0):
    if "stamp" not in X:
        return
    n = STAMPS[0]
    STAMPS[0] = 0
    a("s_waitcnt vmcnt(0) lgkmcnt(0)")
    a("s_memtime s[%d:%d]" % (72 + 2 * n, 73 + 2 * n))
    n += 1
    a("s_load_dwordx2 s[96:97], s[0:1], 128")
    a("s_waitcnt lgkmcnt(0)")
    a("s_mov_b32 s98, 256")
    a("s_mov_b32 s99, 0x00020000")
    a("s_mov_b64 exec, -1")
    a("v_lshrrev_b32 v1, 6, v0")
    a("s_nop 1")
    a("v_readfirstlane_b32 s95, v1")
    a("s_cmp_lg_u32 s95, 0")
    a("s_cbranch_scc1 L_nostamp%d" % len(a.L))
    lab = "L_nostamp%d" % (len(a.L) - 1)
    a("s_cmp_lg_u32 s2, %d" % wg)
    a("s_cbranch_scc1 %s" % lab)
    a("s_mov_b64 exec, 1")
    a("v_mov_b32 v1, 0")
    for k in range(n):
        a("v_mov_b32 v2, s%d" % (72 + 2 * k))
        a("buffer_store_dword v2, v1, s[96:99], 0 offen offset:%d" % (off + 4 * k))
    a.lab(lab)


def trace_begin(a):
    if "trace" not in X:
        return
    a("s_memrealtime s[88:89]")
    a("s_memtime s[90:91]")
    a("s_mov_b32 s94, s2")
    a("s_mov_b32 s86, 0")
    if a.cur == "g1":
        a("s_add_u32 s94, s94, 512")


def trace_end(a, launch):
    if "trace" not in X:
        return
    a("s_waitcnt vmcnt(0) lgkmcnt(0)")
    a("s_memrealtime s[92:93]")
    if FUSED:
        a("s_mov_b32 s84, s86")
    else:
        a("s_memtime s[84:85]")
    a("s_load_dwordx2 s[96:97], s[0:1], 136")
    a("s_waitcnt lgkmcnt(0)")
    a("s_mov_b32 s98, 0x%x" % WS_SIZE)
    a("s_mov_b32 s99, 0x00020000")
    a("s_mov_b64 exec, -1")
    a("v_lshrrev_b32 v1, 6, v0")
    a("s_nop 1")
    a("v_readfirstlane_b32 s95, v1")
    a("s_cmp_lg_u32 s95, 0")
    a("s_cbranch_scc1 L_notr%d" % len(a.L))
    lab = "L_notr%d" % (len(a.L) - 1)
    a("s_lshl_b32 s94, s94, 4")
    a("s_add_u32 s94, s94, 0x%x" % (64 * MB + launch * 65536))
    a("s_mov_b64 exec, 1")
    a("v_mov_b32 v1, 0")
    a("v_mov_b32 v4, s88")
    a("v_mov_b32 v5, s92")
    if "hwid" in X:
        a("s_getreg_b32 s90, hwreg(HW_REG_HW_ID)")
        a("s_getreg_b32 s84, hwreg(HW_REG_XCC_ID)")
    a("v_mov_b32 v6, s90")
    a("v_mov_b32 v7, s84")
    a("buffer_store_dwordx4 v[4:7], v1, s[96:99], s94 offen")
    a.lab(lab)


def poll_flags(a, tag, sreg=72):
    a("s_cmp_lg_u32 s3, 0")
    a("s_cbranch_scc1 L_pf_done_%s" % tag)
    a("s_load_dwordx2 s[%d:%d], s[0:1], 128" % (sreg, sreg + 1))
    a("v_lshlrev_b32 v72, 2, v2")
    a("s_mov_b32 s%d, 4" % (sreg + 4))
    a("s_mov_b32 s%d, 0x40000" % (sreg + 5))
    a("s_waitcnt lgkmcnt(0)")
    a("s_mov_b32 s%d, 256" % (sreg + 2))
    a("s_mov_b32 s%d, 0x00020000" % (sreg + 3))
    a.lab("L_pf_loop_%s" % tag)
    a("buffer_load_dword v73, v72, s[%d:%d], 0 offen sc1" % (sreg, sreg + 3))
    a("s_waitcnt vmcnt(0)")
    a("v_cmp_ne_u32 vcc, s%d, v73" % (sreg + 4))
    a("s_nop 4")
    a("s_cbranch_vccz L_pf_done_%s" % tag)
    a("s_sleep %d" % (64 if "slow" in X else 4))
    a("s_sub_u32 s%d, s%d, 1" % (sreg + 5, sreg + 5))
    a("s_cmp_lg_u32 s%d, 0" % (sreg + 5))
    a("s_cbranch_scc1 L_pf_loop_%s" % tag)
    a.lab("L_pf_done_%s" % tag)
    if "trace" in X:
        a("s_memrealtime s[90:91]")
        a("s_waitcnt lgkmcnt(0)")


def srd(a, d, base, nbytes, off=0):
    if off:
        a("s_add_u32 s%d, s%d, 0x%x" % (d, base, off))
        a("s_addc_u32 s%d, s%d, 0" % (d + 1, base + 1))
    else:
        a("s_mov_b32 s%d, s%d" % (d, base))
        a("s_mov_b32 s%d, s%d" % (d + 1, base + 1))
    a("s_mov_b32 s%d, 0x%x" % (d + 2, nbytes))
    a("s_mov_b32 s%d, 0x00020000" % (d + 3))


def bf16r(a, v):
    a("v_cvt_pk_bf16_f32 v%d, v%d, v%d" % (v, v, v))
    a("v_lshlrev_b32 v%d, 16, v%d" % (v, v))


def wave_reduce(a, regs):
    assert len(regs) >= 3
    steps = ["quad_perm:[1,0,3,2] row_mask:0xf bank_mask:0xf",
             "quad_perm:[2,3,0,1] row_mask:0xf bank_mask:0xf",
             "row_half_mirror row_mask:0xf bank_mask:0xf",
             "row_mirror row_mask:0xf bank_mask:0xf",
             "row_bcast:15 row_mask:0xa bank_mask:0xf",
             "row_bcast:31 row_mask:0xc bank_mask:0xf"]
    a.nop(2)
    for st in steps:
        for r in regs:
            a("v_add_f32_dpp v%d, v%d, v%d %s" % (r, r, r, st))
    a.nop(1)


RP = 1024 + 64
UTP = 128 + 64
TBP = 528
XT = 0
YT = 41 * TBP
KT = 45056 if FUSED else 82 * TBP
K1_LDS = KT + 2576
DSTEPS = ["quad_perm:[1,0,3,2] row_mask:0xf bank_mask:0xf",
          "quad_perm:[2,3,0,1] row_mask:0xf bank_mask:0xf",
          "row_half_mirror row_mask:0xf bank_mask:0xf",
          "row_mirror row_mask:0xf bank_mask:0xf",
          "row_bcast:15 row_mask:0xa bank_mask:0xf",
          "row_bcast:31 row_mask:0xc bank_mask:0xf"]


def prep_row(R, SR):
    a = A()
    XV, T, M = R + 8, R + 16, R + 24
    GW = 24
    for q in range(4):
        a("v_lshlrev_b32 v%d, 16, v%d" % (XV + 2 * q, R + q))
        a("v_and_b32 v%d, s27, v%d" % (XV + 2 * q + 1, R + q))
    for q in range(4):
        a("v_pk_mul_f32 v[%d:%d], v[%d:%d], v[%d:%d]" % (T + 2 * q, T + 2 * q + 1, XV + 2 * q, XV + 2 * q + 1, GW + 2 * q, GW + 2 * q + 1))
    a("v_pk_add_f32 v[%d:%d], v[%d:%d], v[%d:%d]" % (M, M + 1, XV, XV + 1, XV + 2, XV + 3))
    a("v_pk_add_f32 v[%d:%d], v[%d:%d], v[%d:%d]" % (M + 2, M + 3, XV + 4, XV + 5, XV + 6, XV + 7))
    for q in range(4):
        a("v_cvt_pk_bf16_f32 v%d, v%d, v%d" % (M + 4 + q, T + 2 * q, T + 2 * q + 1))
    a("v_pk_add_f32 v[%d:%d], v[%d:%d], v[%d:%d]" % (M, M + 1, M, M + 1, M + 2, M + 3))
    for q in range(4):
        a("v_lshlrev_b32 v%d, 16, v%d" % (T + 2 * q, M + 4 + q))
        a("v_and_b32 v%d, s27, v%d" % (T + 2 * q + 1, M + 4 + q))
    a("v_add_f32 v%d, v%d, v%d" % (M, M, M + 1))
    a("v_pk_add_f32 v[%d:%d], v[%d:%d], v[%d:%d]" % (M + 2, M + 3, T, T + 1, T + 2, T + 3))
    a("v_pk_add_f32 v[%d:%d], v[%d:%d], v[%d:%d]" % (M + 4, M + 5, T + 4, T + 5, T + 6, T + 7))
    a("v_pk_add_f32 v[%d:%d], v[%d:%d], v[%d:%d]" % (M + 2, M + 3, M + 2, M + 3, M + 4, M + 5))
    a("v_add_f32 v%d, v%d, v%d" % (M + 1, M + 2, M + 3))
    a.nop(1)
    for st in DSTEPS:
        a("v_add_f32_dpp v%d, v%d, v%d %s" % (M, M, M, st))
        a("v_add_f32_dpp v%d, v%d, v%d %s" % (M + 1, M + 1, M + 1, st))
        a.nop(1)
    a("v_readlane_b32 s%d, v%d, 63" % (SR, M))
    a("v_readlane_b32 s%d, v%d, 63" % (SR + 1, M + 1))
    a.nop(2)
    G = M + 10
    a("v_mul_f32 v%d, s%d, v60" % (M + 2, SR))
    a("v_mul_f32 v%d, s%d, v60" % (M + 3, SR))
    a("v_mov_b32 v%d, s%d" % (G, SR + 1))
    for q in range(4):
        a("v_pk_add_f32 v[%d:%d], v[%d:%d], v[%d:%d] neg_lo:[0,1] neg_hi:[0,1]" % (T + 2 * q, T + 2 * q + 1, XV + 2 * q, XV + 2 * q + 1, M + 2, M + 3))
    a("v_pk_mul_f32 v[%d:%d], v[%d:%d], v[%d:%d]" % (M + 4, M + 5, T, T + 1, T, T + 1))
    a("v_pk_mul_f32 v[%d:%d], v[%d:%d], v[%d:%d]" % (M + 6, M + 7, T + 2, T + 3, T + 2, T + 3))
    a("v_pk_fma_f32 v[%d:%d], v[%d:%d], v[%d:%d], v[%d:%d]" % (M + 4, M + 5, T + 4, T + 5, T + 4, T + 5, M + 4, M + 5))
    a("v_pk_fma_f32 v[%d:%d], v[%d:%d], v[%d:%d], v[%d:%d]" % (M + 6, M + 7, T + 6, T + 7, T + 6, T + 7, M + 6, M + 7))
    bf16r(a, G)
    a("v_pk_add_f32 v[%d:%d], v[%d:%d], v[%d:%d]" % (M + 4, M + 5, M + 4, M + 5, M + 6, M + 7))
    a("v_mul_f32 v%d, 0x%x, v%d" % (G, f32(-1.4426950408889634), G))
    a("v_add_f32 v%d, v%d, v%d" % (M + 4, M + 4, M + 5))
    a("v_exp_f32 v%d, v%d" % (G, G))
    bf16r(a, M + 2)
    for k, st in enumerate(DSTEPS):
        a("v_add_f32_dpp v%d, v%d, v%d %s" % (M + 4, M + 4, M + 4, st))
        if k == 0:
            a("v_add_f32 v%d, 1.0, v%d" % (G, G))
            a("v_mov_b32 v%d, v%d" % (M + 3, M + 2))
        elif k == 1:
            a("v_rcp_f32 v%d, v%d" % (G, G))
            a.nop(1)
        else:
            a.nop(2)
    a("v_readlane_b32 s%d, v%d, 63" % (SR + 2, M + 4))
    for q in range(4):
        a("v_pk_add_f32 v[%d:%d], v[%d:%d], v[%d:%d] neg_lo:[0,1] neg_hi:[0,1]" % (XV + 2 * q, XV + 2 * q + 1, XV + 2 * q, XV + 2 * q + 1, M + 2, M + 3))
    a("v_mul_f32 v%d, s%d, v60" % (M + 4, SR + 2))
    for q in range(4):
        a("v_cvt_pk_bf16_f32 v%d, v%d, v%d" % (T + q, XV + 2 * q, XV + 2 * q + 1))
    bf16r(a, M + 4)
    bf16r(a, G)
    a("v_add_f32 v%d, v%d, v61" % (M + 4, M + 4))
    for q in range(4):
        a("v_lshlrev_b32 v%d, 16, v%d" % (XV + 2 * q, T + q))
        a("v_and_b32 v%d, s27, v%d" % (XV + 2 * q + 1, T + q))
    bf16r(a, M + 4)
    a("v_sqrt_f32 v%d, v%d" % (M + 4, M + 4))
    a.nop(1)
    bf16r(a, M + 4)
    a("v_rcp_f32 v%d, v%d" % (M + 4, M + 4))
    a.nop(1)
    a("v_mov_b32 v%d, v%d" % (M + 5, M + 4))
    for q in range(4):
        a("v_pk_mul_f32 v[%d:%d], v[%d:%d], v[%d:%d]" % (XV + 2 * q, XV + 2 * q + 1, XV + 2 * q, XV + 2 * q + 1, M + 4, M + 5))
    for q in range(4):
        a("v_cvt_pk_bf16_f32 v%d, v%d, v%d" % (T + q, XV + 2 * q, XV + 2 * q + 1))
    return a.L, T, G


def gen_prep(a, first_wg):
    a.c("---- prep role: wave handles 2 rows, WG = 8 rows")
    a.cur = "prep"
    if not FUSED:
        trace_begin(a)
    stamp(a)
    if first_wg:
        a("s_sub_u32 s2, s2, %d" % first_wg)
    a("s_load_dwordx2 s[4:5], s[0:1], 0")
    a("s_load_dwordx2 s[6:7], s[0:1], 112")
    a("s_load_dwordx2 s[8:9], s[0:1], 136")
    a("v_lshrrev_b32 v1, 6, v0")
    a("v_and_b32 v2, 63, v0")
    a("v_readfirstlane_b32 s3, v1")
    a("v_lshlrev_b32 v3, 4, v2")
    a("s_lshl_b32 s24, s2, 3")
    a("s_lshl_b32 s25, s3, 1")
    a("s_add_u32 s24, s24, s25")
    a("s_lshl_b32 s25, s24, 10")
    a("s_mov_b32 s27, 0xffff0000")
    a("s_waitcnt lgkmcnt(0)")
    srd(a, 12, 4, 2 * MB)
    srd(a, 16, 6, 1024)
    R0, R1 = 64, 104
    a("buffer_load_dwordx4 v[%d:%d], v3, s[12:15], s25 offen" % (R0, R0 + 3))
    a("buffer_load_dwordx4 v[%d:%d], v3, s[12:15], s25 offen offset:1024" % (R1, R1 + 3))
    a("buffer_load_dwordx4 v[12:15], v3, s[16:19], 0 offen")
    a("s_lshr_b32 s40, s2, 3")
    a("s_and_b32 s41, s2, 7")
    a("s_lshl_b32 s42, s40, 16")
    a("s_lshl_b32 s43, s41, 7")
    a("s_add_u32 s42, s42, s43")
    a("v_lshrrev_b32 v44, 3, v0")
    a("v_and_b32 v45, 7, v0")
    a("v_lshlrev_b32 v43, 10, v44")
    a("v_lshl_add_u32 v43, v45, 4, v43")
    a("buffer_load_dwordx4 v[32:35], v43, s[12:15], s42 offen")
    a("s_add_u32 s43, s42, 32768")
    a("buffer_load_dwordx4 v[36:39], v43, s[12:15], s43 offen")
    a("v_mul_u32_u24 v40, %d, v44" % UTP)
    a("v_lshl_add_u32 v40, v45, 4, v40")
    a("v_and_b32 v44, 15, v2")
    a("v_lshrrev_b32 v41, 2, v44")
    a("s_lshl_b32 s44, s3, 4")
    a("v_add_u32 v41, s44, v41")
    a("v_mul_u32_u24 v41, %d, v41" % UTP)
    a("v_and_b32 v44, 3, v44")
    a("v_lshl_add_u32 v41, v44, 3, v41")
    a("v_lshrrev_b32 v44, 4, v2")
    a("v_lshl_add_u32 v41, v44, 5, v41")
    a("v_lshlrev_b32 v42, 12, v2")
    a("s_lshl_b32 s44, s41, 18")
    a("s_lshl_b32 s45, s40, 7")
    a("s_add_u32 s44, s44, s45")
    a("s_lshl_b32 s45, s3, 5")
    a("s_add_u32 s44, s44, s45")
    a("s_add_u32 s44, s44, 0x%x" % WS_UF)
    srd(a, 20, 8, WS_SIZE)
    a("s_mul_i32 s26, s3, %d" % (2 * RP))
    a("v_add_u32 v4, s26, v3")
    a("v_and_b32 v5, 15, v2")
    a("v_lshrrev_b32 v6, 2, v5")
    a("v_mul_u32_u24 v6, %d, v6" % RP)
    a("v_and_b32 v5, 3, v5")
    a("v_lshl_add_u32 v6, v5, 3, v6")
    a("v_lshrrev_b32 v5, 4, v2")
    a("v_lshl_add_u32 v6, v5, 5, v6")
    a("s_lshl_b32 s26, s3, 8")
    a("v_add_u32 v6, s26, v6")
    a("v_lshrrev_b32 v7, 5, v2")
    a("s_lshl_b32 s26, s3, 2")
    a("v_add_u32 v7, s26, v7")
    a("v_lshlrev_b32 v7, 17, v7")
    a("v_and_b32 v5, 31, v2")
    a("v_lshl_add_u32 v7, v5, 4, v7")
    a("s_lshl_b32 s28, s2, 9")
    a("s_add_u32 s29, s28, %d" % (2 * 131072))
    a("v_mov_b32 v60, 0x%x" % f32(1.0 / 512))
    a("v_mov_b32 v61, 0x%x" % f32(1e-5))
    a("s_lshl_b32 s30, s24, 2")
    a("s_add_u32 s30, s30, 0x%x" % WS_GT)
    a("v_mov_b32 v8, 0")
    a("s_waitcnt vmcnt(2)")
    stamp(a)
    for q in range(4):
        a("v_lshlrev_b32 v%d, 16, v%d" % (24 + 2 * q, 12 + q))
        a("v_and_b32 v%d, s27, v%d" % (25 + 2 * q, 12 + q))
    L0, T0, G0 = prep_row(R0, 32)
    L1, T1, G1 = prep_row(R1, 36)
    for x, y in zip(L0, L1):
        if "s_nop 0" in x:
            continue
        if "s_nop 1" in x:
            a("s_nop 0")
            continue
        a.L.append(x)
        a.L.append(y)
    a("s_waitcnt vmcnt(0)")
    a("ds_write_b128 v40, v[32:35] offset:%d" % (8 * RP))
    a("ds_write_b128 v40, v[36:39] offset:%d" % (8 * RP + 32 * UTP))
    a("ds_write_b128 v4, v[%d:%d]" % (T0, T0 + 3))
    a("ds_write_b128 v4, v[%d:%d] offset:%d" % (T1, T1 + 3, RP))
    GL = 8 * RP + 64 * UTP
    a("s_lshl_b32 s31, s3, 3")
    a("v_mov_b32 v9, s31")
    a("s_mov_b64 exec, 1")
    a("ds_write2_b32 v9, v%d, v%d offset0:%d offset1:%d" % (G0, G1, 0, 1) if False else "v_add_u32 v9, %d, v9" % GL)
    a("ds_write2_b32 v9, v%d, v%d offset0:0 offset1:1" % (G0, G1))
    a("s_mov_b64 exec, -1")
    a("s_waitcnt lgkmcnt(0)")
    a("s_barrier")
    stamp(a)
    for p in range(2):
        a("ds_read_b64_tr_b16 v[%d:%d], v6 offset:%d" % (8 + 4 * p, 9 + 4 * p, 128 * p))
        a("ds_read_b64_tr_b16 v[%d:%d], v6 offset:%d" % (10 + 4 * p, 11 + 4 * p, 4 * RP + 128 * p))
    for p in range(2):
        for h in range(2):
            a("ds_read_b64_tr_b16 v[%d:%d], v41 offset:%d" % (32 + 4 * p + 2 * h, 33 + 4 * p + 2 * h, 8 * RP + (8 * p + 4 * h) * UTP))
    a("s_waitcnt lgkmcnt(6)")
    a("buffer_store_dwordx4 v[8:11], v7, s[20:23], s28 offen" + SC)
    a("s_waitcnt lgkmcnt(4)")
    a("buffer_store_dwordx4 v[12:15], v7, s[20:23], s29 offen" + SC)
    a("v_mul_u32_u24 v42, 144, v2")
    a("s_lshl_b32 s45, s3, 5")
    a("v_add_u32 v42, s45, v42")
    a("s_waitcnt lgkmcnt(0)")
    a("ds_write_b128 v42, v[32:35] offset:%d" % (GL + 64))
    a("ds_write_b128 v42, v[36:39] offset:%d" % (GL + 64 + 16))
    a("v_lshrrev_b32 v44, 3, v0")
    a("v_and_b32 v45, 7, v0")
    a("v_mul_u32_u24 v42, 144, v44")
    a("v_lshl_add_u32 v42, v45, 4, v42")
    a("v_lshlrev_b32 v43, 12, v44")
    a("v_lshl_add_u32 v43, v45, 4, v43")
    a("s_lshl_b32 s44, s41, 18")
    a("s_lshl_b32 s45, s40, 7")
    a("s_add_u32 s44, s44, s45")
    a("s_add_u32 s44, s44, 0x%x" % WS_UF)
    a("s_add_u32 s45, s44, %d" % (32 * 4096))
    a("v_lshlrev_b32 v9, 2, v2")
    a("s_lshl_b32 s30, s2, 5")
    a("s_add_u32 s30, s30, 0x%x" % WS_GT)
    a("s_waitcnt lgkmcnt(0)")
    a("s_barrier")
    a("ds_read_b128 v[32:35], v42 offset:%d" % (GL + 64))
    a("ds_read_b128 v[36:39], v42 offset:%d" % (GL + 64 + 32 * 144))
    a("ds_read_b32 v10, v9 offset:%d" % GL)
    a("s_waitcnt lgkmcnt(2)")
    a("buffer_store_dwordx4 v[32:35], v43, s[20:23], s44 offen" + SC)
    a("s_waitcnt lgkmcnt(1)")
    a("buffer_store_dwordx4 v[36:39], v43, s[20:23], s45 offen" + SC)
    a("s_waitcnt lgkmcnt(0)")
    a("s_cmp_lg_u32 s3, 0")
    a("s_cbranch_scc1 L_prep_nog")
    a("s_mov_b64 exec, 0xff")
    a("buffer_store_dword v10, v9, s[20:23], s30 offen" + SC)
    a("s_mov_b64 exec, -1")
    a.lab("L_prep_nog")
    if FUSED:
        a("s_load_dwordx2 s[40:41], s[0:1], 128")
        a("s_waitcnt vmcnt(0) lgkmcnt(0)")
        a("s_barrier")
        a("s_mov_b32 s42, 256")
        a("s_mov_b32 s43, 0x00020000")
        a("s_cmp_lg_u32 s3, 0")
        a("s_cbranch_scc1 L_prep_noflag")
        a("v_mov_b32 v9, 1")
        a("v_mov_b32 v8, 0")
        a("s_mov_b64 exec, 1")
        a("s_and_b32 s44, s2, 63")
        a("s_lshl_b32 s44, s44, 2")
        a("buffer_atomic_add v9, v8, s[40:43], s44 offen sc1")
        a("s_mov_b64 exec, -1")
        a.lab("L_prep_noflag")
        if "trace" in X:
            a("s_memrealtime s[86:87]")
            a("s_waitcnt lgkmcnt(0)")
        return
    stamp(a)
    dump_stamps(a, 5)
    trace_end(a, 0)
    a("s_endpgm")


def gen_utr(a, first_wg):
    a.c("---- U transposer role: tile 64 s x 64 d -> UT[d][s]")
    a.cur = "utr"
    trace_begin(a)
    a("s_sub_u32 s2, s2, %d" % first_wg)
    a("s_load_dwordx2 s[4:5], s[0:1], 0")
    a("s_load_dwordx2 s[8:9], s[0:1], 136")
    a("v_lshrrev_b32 v1, 6, v0")
    a("v_and_b32 v2, 63, v0")
    a("v_readfirstlane_b32 s3, v1")
    a("s_lshr_b32 s20, s2, 3")
    a("s_and_b32 s21, s2, 7")
    a("s_lshl_b32 s22, s20, 16")
    a("s_lshl_b32 s23, s21, 7")
    a("s_add_u32 s22, s22, s23")
    a("v_lshrrev_b32 v3, 3, v0")
    a("v_and_b32 v4, 7, v0")
    a("v_lshlrev_b32 v5, 10, v3")
    a("v_lshl_add_u32 v5, v4, 4, v5")
    a("v_mul_u32_u24 v6, %d, v3" % UTP)
    a("v_lshl_add_u32 v6, v4, 4, v6")
    a("s_waitcnt lgkmcnt(0)")
    srd(a, 12, 4, 2 * MB)
    a("buffer_load_dwordx4 v[8:11], v5, s[12:15], s22 offen")
    a("s_add_u32 s23, s22, 32768")
    a("buffer_load_dwordx4 v[12:15], v5, s[12:15], s23 offen")
    srd(a, 16, 8, WS_SIZE)
    a("v_and_b32 v3, 15, v2")
    a("v_lshrrev_b32 v4, 2, v3")
    a("s_lshl_b32 s24, s3, 4")
    a("v_add_u32 v4, s24, v4")
    a("v_mul_u32_u24 v4, %d, v4" % UTP)
    a("v_and_b32 v3, 3, v3")
    a("v_lshl_add_u32 v4, v3, 3, v4")
    a("v_lshrrev_b32 v3, 4, v2")
    a("v_lshl_add_u32 v4, v3, 5, v4")
    a("v_lshlrev_b32 v7, 12, v2")
    a("s_lshl_b32 s24, s21, 18")
    a("s_lshl_b32 s25, s20, 7")
    a("s_add_u32 s24, s24, s25")
    a("s_lshl_b32 s25, s3, 5")
    a("s_add_u32 s24, s24, s25")
    a("s_add_u32 s24, s24, 0x%x" % WS_UF)
    a("s_waitcnt vmcnt(1)")
    a("ds_write_b128 v6, v[8:11]")
    a("s_waitcnt vmcnt(0)")
    a("ds_write_b128 v6, v[12:15] offset:%d" % (32 * UTP))
    a("s_waitcnt lgkmcnt(0)")
    a("s_barrier")
    for p in range(2):
        for h in range(2):
            a("ds_read_b64_tr_b16 v[%d:%d], v4 offset:%d" % (8 + 4 * p + 2 * h, 9 + 4 * p + 2 * h, (8 * p + 4 * h) * UTP))
    a("s_waitcnt lgkmcnt(2)")
    a("buffer_store_dwordx4 v[8:11], v7, s[16:19], s24 offen")
    a("s_waitcnt lgkmcnt(0)")
    a("buffer_store_dwordx4 v[12:15], v7, s[16:19], s24 offen offset:16")
    trace_end(a, 0)
    a("s_endpgm")


def gen_kgen(a, first_wg):
    a.c("---- kgen role: one channel per workgroup")
    a.cur = "kgen"
    if not FUSED:
        trace_begin(a)
    stamp(a)
    if first_wg:
        a("s_sub_u32 s2, s2, %d" % first_wg)
    a("s_load_dwordx4 s[28:31], s[0:1], 8")
    a("s_load_dwordx4 s[32:35], s[0:1], 24")
    a("s_load_dwordx4 s[36:39], s[0:1], 40")
    a("s_load_dwordx2 s[40:41], s[0:1], 56")
    a("s_load_dwordx2 s[4:5], s[0:1], 136")
    a("s_load_dwordx2 s[6:7], s[0:1], 80")
    a("v_lshrrev_b32 v1, 6, v0")
    a("v_and_b32 v2, 63, v0")
    a("v_readfirstlane_b32 s3, v1")
    a("v_and_b32 v3, 127, v0")
    a("v_lshlrev_b32 v4, 1, v3")
    a("s_lshl_b32 s20, s2, 8")
    a("s_lshl_b32 s25, s2, 1")
    a("v_mov_b32 v6, 0")
    a("s_waitcnt lgkmcnt(0)")
    for k in range(6):
        srd(a, 44 + 4 * k, 28 + 2 * k, 131072)
        a("buffer_load_ushort v%d, v4, s[%d:%d], s20 offen" % (10 + k, 44 + 4 * k, 47 + 4 * k))
    srd(a, 12, 40, 1024)
    a("buffer_load_ushort v16, v6, s[12:15], s25 offen")
    if "pf1" in X:
        srd(a, 68, 6, 2048 * 1792 * 2)
        a("s_lshl_b32 s26, s2, 14")
        a("v_lshlrev_b32 v5, 4, v0")
        for k in range(4):
            a("buffer_load_dwordx4 v[%d:%d], v5, s[68:71], s26 offen" % (128 + 4 * k, 131 + 4 * k))
            if k < 3:
                a("s_add_u32 s26, s26, 4096")
    srd(a, 8, 4, WS_SIZE)
    a("s_cmp_ge_u32 s3, 2")
    a("s_cselect_b32 s26, %d, %d" % (XT, YT))
    a("s_cselect_b32 s27, 0x%x, 0x%x" % (f32(16.0), f32(1.0)))
    a("s_cselect_b32 s36, 0x%x, 0x%x" % (f32(0.15915494309189535), f32(-0.15915494309189535)))
    a("v_lshlrev_b32 v8, 2, v3")
    a("v_add_u32 v8, s26, v8")
    a("v_lshlrev_b32 v28, 3, v0")
    a("v_sub_u32 v28, 2047, v28")
    a("s_mov_b32 s28, 0xffff")
    a("s_mov_b32 s29, %d" % (0x4300 - 128))
    for j in range(8):
        a("v_subrev_u32 v%d, %d, v28" % (48 + j, j))
        a("v_cvt_f32_u32 v%d, v%d" % (56 + j, 48 + j))
    for j in range(0, 8, 2):
        a("v_cvt_pk_bf16_f32 v%d, v%d, v%d" % (56 + j, 56 + j, 57 + j))
    for j in range(0, 8, 2):
        a("v_lshrrev_b32 v%d, 16, v%d" % (57 + j, 56 + j))
        a("v_and_b32 v%d, s28, v%d" % (56 + j, 56 + j))
    for j in range(8):
        a("v_subrev_u32 v%d, s29, v%d" % (56 + j, 56 + j))
    for j in range(8):
        a("v_min_u32 v%d, 0x80, v%d" % (48 + j, 48 + j))
    for j in range(8):
        a("v_max_i32 v%d, v%d, v%d" % (56 + j, 56 + j, 48 + j))
    for j in range(8):
        a("v_lshlrev_b32 v%d, 2, v%d" % (56 + j, 56 + j))
    a("v_and_b32 v9, 15, v2")
    a("v_lshrrev_b32 v17, 4, v2")
    a("s_lshl_b32 s26, s3, 3")
    a("s_add_u32 s26, s26, 8")
    a("s_cmp_eq_u32 s3, 0")
    a("s_cselect_b32 s26, 0, s26")
    a("v_add_u32 v18, s26, v9")
    a("v_mul_u32_u24 v18, %d, v18" % TBP)
    a("v_lshl_add_u32 v18, v17, 4, v18")
    a("v_lshlrev_b32 v19, s3, v9")
    a("v_or_b32 v29, 8, v19")
    a("v_ffbh_u32 v29, v29")
    a("v_sub_u32 v29, 28, v29")
    a("v_lshrrev_b32 v19, v29, v19")
    a("v_lshl_add_u32 v19, v29, 3, v19")
    a("v_mul_u32_u24 v19, %d, v19" % TBP)
    a("v_lshl_add_u32 v19, v17, 4, v19")
    a("s_waitcnt vmcnt(%d)" % (4 if "pf1" in X else 0))
    for k in range(7):
        a("v_lshlrev_b32 v%d, 16, v%d" % (10 + k, 10 + k))
    a("v_mul_f32 v16, 0x%x, v16" % f32(1.4426950408889634))
    a("v_exp_f32 v16, v16")
    a.nop(1)
    bf16r(a, 16)
    a("v_mul_f32 v20, v16, v10")
    a("v_mul_f32 v21, v16, v11")
    a("v_mul_f32 v12, v16, v12")
    a("v_mul_f32 v13, v16, v13")
    a("v_mul_f32 v20, 0x%x, v20" % f32(1.4426950408889634))
    a("v_mul_f32 v21, s36, v21")
    a("v_mul_f32 v20, s27, v20")
    a("v_mul_f32 v21, s27, v21")
    a("v_mul_f32 v22, v14, v12")
    a("v_mul_f32 v23, v14, v13")
    a("v_fract_f32 v21, v21")
    a("v_exp_f32 v20, v20")
    a("v_fma_f32 v22, -v15, v13, v22")
    a("v_fma_f32 v23, v15, v12, v23")
    a("v_cos_f32 v24, v21")
    a("v_sin_f32 v25, v21")
    a("v_mov_b32 v26, 1.0")
    a("v_mov_b32 v27, 0")
    a("v_mul_f32 v24, v20, v24")
    a("v_mul_f32 v25, v20, v25")
    a("s_cmp_ge_u32 s3, 2")
    a("s_cbranch_scc0 L_kg_y")
    a("v_mov_b32 v26, v22")
    a("v_mov_b32 v27, v23")
    a.lab("L_kg_y")

    def cmul(dst, x, w):
        a("v_pk_mul_f32 v[30:31], v[%d:%d], v[%d:%d] op_sel:[0,0] op_sel_hi:[1,0]" % (x, x + 1, w, w + 1))
        a("v_pk_fma_f32 v[%d:%d], v[%d:%d], v[%d:%d], v[30:31] op_sel:[1,1,0] op_sel_hi:[0,1,1] neg_lo:[1,0,0]" %
          (dst, dst + 1, x, x + 1, w, w + 1))

    W = [24, 32, 34, 36]
    for k in range(1, 4):
        cmul(W[k], W[k - 1], W[k - 1])
    if "k1slow" in X:
        a("v_mov_b32 v38, v26")
        a("v_mov_b32 v39, v27")
        a("s_mov_b32 s21, 200")
        a.lab("L_slow")
        cmul(38, 38, 24)
        cmul(38, 38, 24)
        a("s_sub_u32 s21, s21, 1")
        a("s_cmp_lg_u32 s21, 0")
        a("s_cbranch_scc1 L_slow")
    for row in range(41):
        a("v_cvt_pk_bf16_f32 v%d, v26, v27" % (40 + (row & 3)))
        if row < 40:
            cmul(26, 26, W[0] if row < 16 else (W[1] if row < 24 else (W[2] if row < 32 else W[3])))
        if row & 1:
            a("ds_write2_b32 v8, v%d, v%d offset0:%d offset1:%d" % (40 + ((row - 1) & 3), 40 + (row & 3), 0, TBP // 4))
            if row < 40:
                a("v_add_u32 v8, %d, v8" % (2 * TBP))
        elif row == 40:
            a("ds_write_b32 v8, v%d" % (40 + (row & 3)))
    a("s_waitcnt lgkmcnt(0)")
    a("s_barrier")
    stamp(a)
    for kap in range(8):
        a("ds_read_b128 v[%d:%d], v18 offset:%d" % (64 + 8 * kap, 67 + 8 * kap, XT + 64 * kap))
        a("ds_read_b128 v[%d:%d], v19 offset:%d" % (68 + 8 * kap, 71 + 8 * kap, YT + 64 * kap))
    a("s_lshl_b32 s26, s3, 7")
    a("s_add_u32 s26, s26, 128")
    a("s_cmp_eq_u32 s3, 0")
    a("s_cselect_b32 s26, 0, s26")
    a("s_mov_b32 s27, 128")
    a("s_cselect_b32 s27, 256, s27")
    a("s_cmp_eq_u32 s3, 3")
    a("s_cselect_b32 s27, 129, s27")
    a("v_lshl_add_u32 v13, v17, 6, v9")
    a("v_add_u32 v15, s26, v13")
    a("v_lshlrev_b32 v15, 2, v15")
    for kap in range(8):
        a("s_waitcnt lgkmcnt(%d)" % (14 - 2 * kap))
        c0 = "0" if kap == 0 else "v[44:47]"
        a("v_mfma_f32_16x16x32_bf16 v[44:47], v[%d:%d], v[%d:%d], %s" % (64 + 8 * kap, 67 + 8 * kap, 68 + 8 * kap, 71 + 8 * kap, c0))
    a("s_lshl_b32 s22, s2, 12")
    a("s_add_u32 s22, s22, 0x%x" % WS_RK)
    a("v_lshlrev_b32 v3, 4, v0")
    a.nop(5)
    for reg in range(4):
        a("v_add_u32 v14, %d, v13" % (16 * reg))
        a("v_cmp_gt_u32 vcc, s27, v14")
        a("s_and_saveexec_b64 s[30:31], vcc")
        a("ds_write_b32 v15, v%d offset:%d" % (44 + reg, KT + 64 * reg))
        a("s_mov_b64 exec, s[30:31]")
    if FUSED:
        poll_flags(a, "cv")
    a("s_waitcnt lgkmcnt(0)")
    a("s_barrier")
    stamp(a)
    if FUSED:
        return
    for j in range(8):
        a("ds_read_b32 v%d, v%d offset:%d" % (64 + j, 56 + j, KT))
    a("s_waitcnt lgkmcnt(0)")
    for q in range(4):
        a("v_cvt_pk_bf16_f32 v%d, v%d, v%d" % (8 + q, 64 + 2 * q, 65 + 2 * q))
    a("buffer_store_dwordx4 v[8:11], v3, s[8:11], s22 offen")
    stamp(a)
    dump_stamps(a, 77, 64)
    trace_end(a, 0)
    a("s_endpgm")


CP = 4416
UB = 8 * CP
UP = 144
K2_LDS = 49152


def gen_conv(a, first_wg):
    a.c("---- conv role: one channel per workgroup")
    a.cur = "conv"
    if not FUSED:
        trace_begin(a)
    stamp(a)
    if FUSED:
        for j in range(8):
            a("ds_read_b32 v%d, v%d offset:%d" % (64 + j, 56 + j, KT))
    if first_wg:
        a("s_sub_u32 s2, s2, %d" % first_wg)
    a("s_load_dwordx2 s[4:5], s[0:1], 136")
    a("s_load_dwordx2 s[6:7], s[0:1], 96")
    a("s_load_dwordx2 s[42:43], s[0:1], 64")
    a("v_lshrrev_b32 v1, 6, v0")
    a("v_and_b32 v2, 63, v0")
    a("v_readfirstlane_b32 s3, v1")
    a("s_lshl_b32 s25, s2, 1")
    a("v_mov_b32 v6, 0")
    a("v_lshlrev_b32 v3, 4, v0")
    a("s_lshl_b32 s21, s2, 12")
    a("s_add_u32 s20, s21, 0x%x" % WS_RK)
    a("s_add_u32 s22, s21, 0x%x" % WS_UF)
    a("s_add_u32 s23, s21, 0x%x" % WS_AF)
    a("s_waitcnt lgkmcnt(0)")
    if not FUSED:
        a("s_add_u32 s12, s4, s20")
        a("s_addc_u32 s13, s5, 0")
        a("s_mov_b32 s14, 4096")
        a("s_mov_b32 s15, 0x00020000")
        a("buffer_load_dwordx4 v[8:11], v3, s[12:15], 0 offen")
        a("buffer_load_dwordx4 v[12:15], v3, s[12:15], 0 offen offset:16")
    else:
        for q in range(4):
            a("v_cvt_pk_bf16_f32 v%d, v%d, v%d" % (8 + q, 64 + 2 * q, 65 + 2 * q))
        a("ds_write_b128 v3, v[8:11]")
    srd(a, 8, 4, WS_SIZE)
    a("buffer_load_dwordx4 v[152:155], v3, s[8:11], s22 offen")
    srd(a, 16, 42, 1024)
    a("v_lshlrev_b32 v7, 5, v0")
    a("s_mov_b32 s24, 0x%x" % WS_GT)
    a("buffer_load_dwordx4 v[156:159], v7, s[8:11], s24 offen")
    a("buffer_load_dwordx4 v[160:163], v7, s[8:11], s24 offen offset:16")
    a("buffer_load_ushort v164, v6, s[16:19], s25 offen")
    NPF = 0
    if "pf2" in X:
        NPF = 4
        srd(a, 68, 6, 2048 * 1792 * 2)
        a("s_lshl_b32 s26, s2, 14")
        for k in range(4):
            a("buffer_load_dwordx4 v[%d:%d], v3, s[68:71], s26 offen" % (128 + 4 * k, 131 + 4 * k))
            if k < 3:
                a("s_add_u32 s26, s26, 4096")
    for k in range(4):
        a("v_mov_b32 v%d, 0" % (48 + k))
    a("ds_write_b128 v3, v[48:51] offset:%d" % UB)
    a("v_lshrrev_b32 v4, 3, v2")
    a("v_mul_u32_u24 v4, %d, v4" % CP)
    a("v_and_b32 v7, 7, v2")
    a("v_lshl_add_u32 v4, v7, 4, v4")
    a("v_add_u32 v4, 4096, v4")
    a("v_add_u32 v5, %d, v3" % (UB + 4096))
    a("s_cmp_eq_u32 s3, 0")
    a("s_cbranch_scc1 L_cv_z0")
    a("s_cmp_eq_u32 s3, 1")
    a("s_cbranch_scc0 L_cv_z1")
    a("ds_write_b128 v4, v[48:51]")
    a("s_branch L_cv_z1")
    a.lab("L_cv_z0")
    a("s_mov_b32 exec_hi, 0")
    a("ds_write_b128 v5, v[48:51]")
    a("s_mov_b64 exec, -1")
    a.lab("L_cv_z1")
    a("v_lshrrev_b32 v6, 3, v0")
    a("v_mul_u32_u24 v6, %d, v6" % UP)
    a("v_and_b32 v7, 7, v0")
    a("v_lshl_add_u32 v6, v7, 4, v6")
    a("v_and_b32 v20, 31, v2")
    a("v_lshrrev_b32 v21, 5, v2")
    a("v_and_b32 v22, 7, v20")
    a("v_sub_u32 v22, 7, v22")
    a("v_mul_u32_u24 v22, %d, v22" % CP)
    a("v_lshrrev_b32 v23, 3, v20")
    a("v_sub_u32 v23, v21, v23")
    a("v_lshl_add_u32 v22, v23, 4, v22")
    a("s_lshl_b32 s28, s3, 10")
    a("s_sub_u32 s28, %d, s28" % (16 * 255 - 128 * 7 - 64))
    a("v_add_u32 v18, s28, v22")
    a("v_mul_u32_u24 v23, %d, v20" % UP)
    a("v_lshl_add_u32 v23, v21, 4, v23")
    a("s_mul_i32 s29, s3, %d" % (8 * UP))
    a("s_sub_u32 s29, %d, s29" % (UB + UP * 25))
    a("v_add_u32 v19, s29, v23")
    if FUSED:
        a("s_waitcnt lgkmcnt(0)")
        a("s_barrier")
        a("ds_read_b128 v[12:15], v3 offset:16")
        a("s_waitcnt lgkmcnt(0)")
    else:
        a("s_waitcnt vmcnt(%d)" % (4 + NPF))
    for k in range(1, 8):
        a("v_mov_b32 v%d, v%d" % (65 + k, 8 + k))
    for k in range(7):
        a("v_alignbit_b32 v%d, v%d, v%d, 16" % (74 + k, 9 + k, 8 + k))
    for k in range(1, 7):
        a("v_alignbit_b32 v%d, v%d, v%d, 16" % (83 + k, 9 + k, 8 + k))
    src = {0: 8, 2: 66, 4: 10, 6: 68, 1: 74, 3: 84, 5: 76, 7: 86}
    for s in range(1 if FUSED else 0, 8):
        a("ds_write_b128 v3, v[%d:%d] offset:%d" % (src[s], src[s] + 3, s * CP))
    a("s_waitcnt vmcnt(%d)" % (3 + NPF))
    a("ds_write_b128 v6, v[152:155] offset:%d" % (UB + 32 * UP))
    a("s_waitcnt lgkmcnt(0)")
    a("s_barrier")
    stamp(a)
    ACC = [64, 80]
    FA = [24 + 4 * k for k in range(10)]
    FB = [[96 + 4 * k for k in range(4)], [112 + 4 * k for k in range(4)]]
    free = list(range(10))
    cur = {}

    def loadA(dl, rel):
        sl = free.pop(0)
        a("ds_read_b128 v[%d:%d], v18 offset:%d" % (FA[sl], FA[sl] + 3, 128 * (7 - dl) + 64 - 2 * rel))
        return sl

    def loadB(dl):
        for k in range(4):
            a("ds_read_b128 v[%d:%d], v19 offset:%d" % (FB[dl & 1][k], FB[dl & 1][k] + 3, UP * (7 - dl) + 32 * k))

    for rel in (-48, -32, -16, 0, 16, 32):
        cur[rel] = loadA(0, rel)
    loadB(0)
    for dl in range(8):
        nxt = {}
        if dl < 7:
            nxt[-48] = cur[16]
            nxt[-32] = cur[32]
            for rel in (-16, 0, 16, 32):
                nxt[rel] = loadA(dl + 1, rel)
            loadB(dl + 1)
            a("s_waitcnt lgkmcnt(8)")
        else:
            a("s_waitcnt lgkmcnt(0)")
        for k in range(4):
            for beta in range(2):
                rel = 32 * beta - 16 * k
                c = "0" if (dl == 0 and k == 0) else "v[%d:%d]" % (ACC[beta], ACC[beta] + 15)
                a("v_mfma_f32_32x32x16_bf16 v[%d:%d], v[%d:%d], v[%d:%d], %s" %
                  (ACC[beta], ACC[beta] + 15, FA[cur[rel]], FA[cur[rel]] + 3, FB[dl & 1][k], FB[dl & 1][k] + 3, c))
        for rel in (-48, -32, -16, 0):
            free.append(cur[rel])
        cur = nxt
    a("v_mul_u32_u24 v24, 272, v20")
    a("v_lshl_add_u32 v24, v21, 4, v24")
    a("s_mul_i32 s28, s3, 8704")
    a("v_add_u32 v24, s28, v24")
    a("v_lshrrev_b32 v25, 3, v0")
    a("v_mul_u32_u24 v25, 272, v25")
    a("v_and_b32 v26, 7, v0")
    a("v_lshl_add_u32 v25, v26, 5, v25")
    a("s_mov_b32 s27, 0xffff0000")
    a("s_waitcnt vmcnt(0)")
    a("s_barrier")
    if "cv3" in X:
        trace_end(a, 1)
        a("s_endpgm")
    stamp(a)
    a.nop(4)
    for beta in range(2):
        for rq in range(4):
            a("ds_write_b128 v24, v[%d:%d] offset:%d" % (ACC[beta] + 4 * rq, ACC[beta] + 4 * rq + 3, (32 * beta + 8 * rq) * 4))
    a("v_lshlrev_b32 v164, 16, v164")
    a("v_mov_b32 v165, v164")
    for q in range(4):
        a("v_lshlrev_b32 v%d, 16, v%d" % (128 + 2 * q, 152 + q))
        a("v_and_b32 v%d, s27, v%d" % (129 + 2 * q, 152 + q))
    for q in range(4):
        a("v_pk_mul_f32 v[%d:%d], v[%d:%d], v[164:165]" % (128 + 2 * q, 129 + 2 * q, 128 + 2 * q, 129 + 2 * q))
    a("s_waitcnt lgkmcnt(0)")
    a("s_barrier")
    for w in range(4):
        a("ds_read_b128 v[%d:%d], v25 offset:%d" % (32 + 8 * w, 35 + 8 * w, w * 8704))
        a("ds_read_b128 v[%d:%d], v25 offset:%d" % (36 + 8 * w, 39 + 8 * w, w * 8704 + 16))
    a("s_waitcnt lgkmcnt(4)")
    for q in range(4):
        a("v_pk_add_f32 v[%d:%d], v[%d:%d], v[%d:%d]" % (32 + 2 * q, 33 + 2 * q, 32 + 2 * q, 33 + 2 * q, 40 + 2 * q, 41 + 2 * q))
    a("s_waitcnt lgkmcnt(0)")
    for q in range(4):
        a("v_pk_add_f32 v[%d:%d], v[%d:%d], v[%d:%d]" % (48 + 2 * q, 49 + 2 * q, 48 + 2 * q, 49 + 2 * q, 56 + 2 * q, 57 + 2 * q))
    for q in range(4):
        a("v_pk_add_f32 v[%d:%d], v[%d:%d], v[%d:%d]" % (32 + 2 * q, 33 + 2 * q, 32 + 2 * q, 33 + 2 * q, 48 + 2 * q, 49 + 2 * q))
    for q in range(4):
        a("v_pk_add_f32 v[%d:%d], v[%d:%d], v[%d:%d]" % (32 + 2 * q, 33 + 2 * q, 32 + 2 * q, 33 + 2 * q, 128 + 2 * q, 129 + 2 * q))
    for q in range(4):
        a("v_pk_mul_f32 v[%d:%d], v[%d:%d], v[%d:%d]" % (32 + 2 * q, 33 + 2 * q, 32 + 2 * q, 33 + 2 * q, 156 + 2 * q, 157 + 2 * q))
    for q in range(4):
        a("v_cvt_pk_bf16_f32 v%d, v%d, v%d" % (72 + q, 32 + 2 * q, 33 + 2 * q))
    a("buffer_store_dwordx4 v[72:75], v3, s[8:11], s23 offen")
    if "pf2e" in X:
        srd(a, 68, 6, 2048 * 1792 * 2)
        a("s_lshl_b32 s26, s2, 14")
        for k in range(4):
            a("buffer_load_dwordx4 v[%d:%d], v3, s[68:71], s26 offen" % (128 + 4 * k, 131 + 4 * k))
            if k < 3:
                a("s_add_u32 s26, s26, 4096")
    stamp(a)
    dump_stamps(a, 77, 64)
    trace_end(a, 0 if FUSED else 1)
    a("s_endpgm")


TP = 144
RED = 49152
K3_LDS = 65536 + 64 * TP


def gen_gemm(a, which):
    g1 = (which == 1)
    NOCT = 256 if g1 else 224
    S = 32 if g1 else 28
    NS = 6 if g1 else 8
    for tok in X.split(","):
        if tok.startswith("ns%d=" % which):
            NS = int(tok[4:])
    PW = 3584 if g1 else 4096
    WOFF = 80 if g1 else 96
    WBYTES = 2048 * 1792 * 2
    DOFF = WS_HF if g1 else WS_GF
    TPITCH = NOCT * 512
    NQ = 28 if g1 else 32
    TBASE = 65536
    a.c("---- gemm%d role" % which)
    a.cur = "g%d" % which
    trace_begin(a)
    stamp(a)
    a("s_load_dwordx2 s[4:5], s[0:1], %d" % WOFF)
    a("s_load_dwordx2 s[6:7], s[0:1], 136")
    a("s_load_dwordx2 s[36:37], s[0:1], %d" % (88 if g1 else 104))
    if not g1:
        a("s_load_dwordx2 s[38:39], s[0:1], 120")
    a("v_lshrrev_b32 v1, 6, v0")
    a("v_and_b32 v2, 63, v0")
    a("v_readfirstlane_b32 s3, v1")
    a("s_and_b32 s20, s2, 7")
    a("s_lshr_b32 s21, s2, 3")
    a("s_mul_i32 s20, s20, %d" % NQ)
    a("s_add_u32 s20, s20, s21")
    a("s_lshr_b32 s21, s20, 3")
    a("s_and_b32 s22, s20, 7")
    a("s_mul_i32 s23, s22, %d" % (2 * TPITCH))
    a("s_mul_i32 s24, s3, %d" % (S * 1024))
    a("s_add_u32 s23, s23, s24")
    a("s_add_u32 s23, s23, 0x%x" % DOFF)
    a("v_lshlrev_b32 v3, 4, v2")
    a("v_add_u32 v4, %d, v3" % TPITCH)
    a("v_lshrrev_b32 v5, 3, v2")
    a("v_and_b32 v6, 7, v2")
    a("v_lshlrev_b32 v7, 1, v5")
    a("v_and_b32 v7, 4, v7")
    a("v_xor_b32 v6, v6, v7")
    a("v_mul_u32_u24 v5, %d, v5" % PW)
    a("v_lshl_add_u32 v5, v6, 4, v5")
    a("s_lshl_b32 s24, s21, 7")
    a("v_add_u32 v5, s24, v5")
    a("s_mul_i32 s25, s3, %d" % (S * 16 * PW))
    a("s_mul_i32 s26, s3, %d" % (NS * 2048))
    a("s_waitcnt lgkmcnt(0)")
    srd(a, 8, 4, WBYTES)
    srd(a, 12, 6, WS_SIZE)
    ACC = [[16, 32], [48, 64]]
    DF = [80 + 8 * k for k in range(NS)]
    WFB = 80 + 8 * NS
    XR = WFB + 16

    a("s_and_b32 s48, s21, 3")
    a("s_lshl2_add_u32 s48, s22, s48")
    if "norot" in X:
        a("s_mov_b32 s48, 0")
    a("s_sub_u32 s49, s48, %d" % S)
    a("s_cmp_ge_u32 s48, %d" % S)
    a("s_cselect_b32 s48, s49, s48")

    def issue(st):
        sl = st % NS
        a("s_mul_i32 s27, s48, %d" % (16 * PW))
        a("s_add_u32 m0, s26, %d" % (sl * 2048))
        a("s_add_u32 s27, s27, s25")
        if "wreg" in X:
            a("buffer_load_dwordx4 v[%d:%d], v5, s[8:11], s27 offen" % (WFB + 8 * (st & 1), WFB + 8 * (st & 1) + 3))
        else:
            a("buffer_load_dwordx4 v5, s[8:11], s27 offen lds" + WH)
        a("s_add_u32 m0, s26, %d" % (sl * 2048 + 1024))
        a("s_add_u32 s27, s27, %d" % (8 * PW))
        a("s_lshl_b32 s28, s48, 10")
        if "wreg" in X:
            a("buffer_load_dwordx4 v[%d:%d], v5, s[8:11], s27 offen" % (WFB + 8 * (st & 1) + 4, WFB + 8 * (st & 1) + 7))
        else:
            a("buffer_load_dwordx4 v5, s[8:11], s27 offen lds" + WH)
        a("s_add_u32 s28, s28, s23")
        a("s_add_u32 s48, s48, 1")
        for t in range(2):
            r = DF[sl] + 4 * t
            a("buffer_load_dwordx4 v[%d:%d], v%d, s[12:15], s28 offen" % (r, r + 3, 3 + t) + DH)
        a("s_cmp_lg_u32 s48, %d" % S)
        a("s_cselect_b32 s48, s48, 0")

    if g1 and FUSED:
        a("s_mov_b32 s51, s48")
        for st in range(NS):
            a("s_mul_i32 s27, s51, %d" % (16 * PW))
            a("s_add_u32 s27, s27, s25")
            a("buffer_load_dwordx4 v[%d:%d], v5, s[8:11], s27 offen" % (DF[st], DF[st] + 3))
            a("s_add_u32 s27, s27, %d" % (8 * PW))
            a("s_add_u32 s51, s51, 1")
            a("buffer_load_dwordx4 v[%d:%d], v5, s[8:11], s27 offen" % (DF[st] + 4, DF[st] + 7))
            a("s_cmp_lg_u32 s51, %d" % S)
            a("s_cselect_b32 s51, s51, 0")
        poll_flags(a, "g1")
        a("s_waitcnt vmcnt(0)")
        a("s_barrier")
    issue(0)
    issue(1)
    srd(a, 40, 36, 3584 if g1 else 4096)
    if not g1:
        srd(a, 44, 38, 2 * MB)
    for st in range(2, NS):
        issue(st)
    a("v_lshrrev_b32 v8, 4, v2")
    a("v_and_b32 v9, 15, v2")
    a("v_lshrrev_b32 v10, 2, v9")
    a("v_and_b32 v11, 3, v9")
    a("v_lshrrev_b32 v12, 1, v8")
    a("v_lshl_add_u32 v12, v12, 3, v10")
    a("v_lshlrev_b32 v12, 7, v12")
    a("v_and_b32 v13, 1, v8")
    a("v_lshlrev_b32 v13, 1, v13")
    a("v_lshrrev_b32 v14, 1, v11")
    a("v_add_u32 v13, v13, v14")
    a("v_lshlrev_b32 v14, 1, v10")
    a("v_and_b32 v14, 4, v14")
    a("v_xor_b32 v13, v13, v14")
    a("v_lshl_add_u32 v12, v13, 4, v12")
    a("v_and_b32 v14, 1, v11")
    a("v_lshl_add_u32 v12, v14, 3, v12")
    a("v_add_u32 v12, s26, v12")
    a("v_xor_b32 v13, 64, v12")
    a("s_lshr_b32 s29, s3, 1")
    a("s_and_b32 s30, s3, 1")
    a("v_and_b32 v6, 31, v2")
    a("v_lshrrev_b32 v7, 5, v2")
    NX = 0
    if g1:
        a("s_lshl_b32 s31, s21, 7")
        a("s_lshl_b32 s32, s29, 6")
        a("s_add_u32 s31, s31, s32")
        a("v_lshlrev_b32 v14, 3, v7")
        for rq in range(4):
            a("buffer_load_dwordx2 v[%d:%d], v14, s[40:43], s31 offen offset:%d" % (XR + 2 * rq, XR + 2 * rq + 1, 16 * rq))
        NX = 4
    else:
        a("s_lshl_b32 s31, s22, 18")
        a("s_lshl_b32 s32, s21, 7")
        a("s_add_u32 s31, s31, s32")
        a("s_add_u32 s31, s31, 0x%x" % WS_AF)
        a("s_add_u32 s32, s31, 131072")
        a("v_lshrrev_b32 v14, 3, v0")
        a("v_and_b32 v15, 7, v0")
        a("v_lshlrev_b32 v15, 4, v15")
        a("v_lshl_add_u32 v15, v14, 12, v15")
        a("buffer_load_dwordx4 v[%d:%d], v15, s[12:15], s31 offen" % (XR, XR + 3))
        a("buffer_load_dwordx4 v[%d:%d], v15, s[12:15], s32 offen" % (XR + 4, XR + 7))
        a("s_lshl_b32 s33, s21, 6")
        a("s_lshl_b32 s34, s30, 5")
        a("s_add_u32 s33, s33, s34")
        a("v_add_u32 v14, s33, v6")
        a("v_lshlrev_b32 v15, 2, v14")
        a("s_mov_b32 s34, 0x%x" % WS_GT)
        a("buffer_load_dword v%d, v15, s[12:15], s34 offen" % (XR + 8))
        a("v_lshlrev_b32 v15, 1, v14")
        a("buffer_load_ushort v%d, v15, s[40:43], 0 offen" % (XR + 9))
        NX = 4
    stamp(a)

    def trreads(st):
        if "wreg" in X:
            return
        sl = st % NS
        for nu in range(2):
            for h in range(2):
                r = WFB + 8 * (st & 1) + 4 * nu + 2 * h
                a("ds_read_b64_tr_b16 v[%d:%d], v%d offset:%d" % (r, r + 1, 12 + nu, sl * 2048 + h * 512))

    def stage(st, sl, par, do_issue, wait_next, first=False):
        if wait_next is not None:
            a("s_waitcnt vmcnt(%d)" % wait_next)
            trreads2((sl + 1) % NS, par ^ 1)
            a("s_waitcnt lgkmcnt(4)")
        else:
            a("s_waitcnt lgkmcnt(0)")
        for nu in range(2):
            for t in range(2):
                wf = WFB + 8 * par + 4 * nu
                df = DF[sl] + 4 * t
                if g1:
                    acc = ACC[nu][t]
                    A_, B_ = wf, df
                else:
                    acc = ACC[t][nu]
                    A_, B_ = df, wf
                a("v_mfma_f32_32x32x16_bf16 v[%d:%d], v[%d:%d], v[%d:%d], v[%d:%d]" % (acc, acc + 15, A_, A_ + 3, B_, B_ + 3, acc, acc + 15))
        if do_issue:
            issue(sl)

    def trreads2(sl, par):
        if "wreg" in X:
            return
        for nu in range(2):
            for h in range(2):
                r = WFB + 8 * par + 4 * nu + 2 * h
                a("ds_read_b64_tr_b16 v[%d:%d], v%d offset:%d" % (r, r + 1, 12 + nu, sl * 2048 + h * 512))

    assert NS % 2 == 0
    for r in range(16, 80):
        a("v_mov_b32 v%d, 0" % r)
    NL = (S - NS) // NS
    a("s_mov_b32 s50, %d" % NL)
    a("s_waitcnt vmcnt(%d)" % (4 * (NS - 1) + NX))
    trreads2(0, 0)
    a.lab("L_g%d_loop" % which)
    for k in range(NS):
        stage(k, k, k & 1, True, 4 * (NS - 2))
    a("s_sub_u32 s50, s50, 1")
    a("s_cmp_lg_u32 s50, 0")
    a("s_cbranch_scc1 L_g%d_loop" % which)
    for st in range(NL * NS, S):
        k = st % NS
        iss = st + NS < S
        later = min(S - 1, st + NS - 1) - (st + 1)
        stage(st, k, st & 1, iss, (4 * later) if st + 1 < S else None)
        if g1 and "pf3" in X and st == S - 2:
            a("s_load_dwordx2 s[52:53], s[0:1], 96")
            a("s_lshl_b32 s56, s2, 2")
            a("s_add_u32 s56, s56, s3")
            a("s_lshl_b32 s56, s56, 13")
            a("s_waitcnt lgkmcnt(0)")
            srd(a, 52, 52, 2048 * 1792 * 2)
            for kk in range(8):
                a("buffer_load_dwordx4 v[%d:%d], v3, s[52:55], s56 offen offset:%d" % (152 + 4 * (kk & 3), 155 + 4 * (kk & 3), (kk & 3) * 1024))
                if kk == 3:
                    a("s_add_u32 s56, s56, 4096")
    stamp(a)
    F = 80
    a("s_mov_b32 s27, 0xffff0000")
    if not g1:
        a("v_lshrrev_b32 v9, 3, v0")
        a("v_mul_u32_u24 v9, %d, v9" % TP)
        a("v_and_b32 v10, 7, v0")
        a("v_lshl_add_u32 v9, v10, 4, v9")
        a("v_add_u32 v9, %d, v9" % TBASE)
        a("s_waitcnt vmcnt(0)")
        a("ds_write_b128 v9, v[%d:%d]" % (XR, XR + 3))
        a("ds_write_b128 v9, v[%d:%d] offset:%d" % (XR + 4, XR + 7, 32 * TP))
    a("s_barrier")
    a.nop(4)
    for qd in range(4):
        acc = ACC[qd >> 1][qd & 1]
        a("s_cmp_eq_u32 s3, %d" % qd)
        a("s_cbranch_scc1 L_g%d_own%d" % (which, qd))
        a("s_sub_u32 s28, s3, %d" % (qd + 1))
        a("s_and_b32 s28, s28, 3")
        a("s_add_u32 s28, s28, %d" % (qd * 3))
        a("s_lshl_b32 s28, s28, 12")
        a("v_add_u32 v8, s28, v3")
        for rq in range(4):
            a("ds_write_b128 v8, v[%d:%d] offset:%d" % (acc + 4 * rq, acc + 4 * rq + 3, rq * 1024))
        a("s_branch L_g%d_nx%d" % (which, qd))
        a.lab("L_g%d_own%d" % (which, qd))
        for k in range(8):
            a("v_pk_add_f32 v[%d:%d], v[%d:%d], 0" % (F + 2 * k, F + 2 * k + 1, acc + 2 * k, acc + 2 * k + 1))
        a.lab("L_g%d_nx%d" % (which, qd))
    a("s_mul_i32 s28, s3, %d" % (3 * 4096))
    a("v_add_u32 v8, s28, v3")
    if g1:
        a("s_lshl_b32 s32, s22, 1")
        a("s_add_u32 s32, s32, s30")
        a("s_mul_i32 s32, s32, %d" % (224 * 512))
        a("s_lshl_b32 s33, s21, 12")
        a("s_add_u32 s32, s32, s33")
        a("s_lshl_b32 s33, s29, 11")
        a("s_add_u32 s32, s32, s33")
        a("s_add_u32 s32, s32, 0x%x" % WS_GF)
        a("v_lshlrev_b32 v11, 4, v6")
        a("v_lshl_add_u32 v11, v7, 3, v11")
    else:
        a("v_lshrrev_b32 v9, 4, v2")
        a("v_and_b32 v10, 15, v2")
        a("v_lshrrev_b32 v13, 2, v10")
        a("v_lshl_add_u32 v13, v7, 2, v13")
        a("v_mul_u32_u24 v13, %d, v13" % TP)
        a("v_and_b32 v10, 3, v10")
        a("v_lshl_add_u32 v13, v10, 3, v13")
        a("v_and_b32 v9, 1, v9")
        a("v_lshl_add_u32 v13, v9, 5, v13")
        a("s_mul_i32 s32, s29, %d" % (32 * TP))
        a("s_lshl_b32 s33, s30, 6")
        a("s_add_u32 s32, s32, s33")
        a("s_add_u32 s32, s32, %d" % TBASE)
        a("v_add_u32 v13, s32, v13")
        a("v_lshlrev_b32 v14, 10, v14")
        a("v_lshl_add_u32 v14, v7, 3, v14")
        a("s_lshl_b32 s33, s22, 7")
        a("s_lshl_b32 s34, s29, 6")
        a("s_add_u32 s33, s33, s34")
    a("s_waitcnt lgkmcnt(0)")
    a("s_barrier")
    P = 96
    for rq in range(4):
        for k in range(3):
            a("ds_read_b128 v[%d:%d], v8 offset:%d" % (P + 16 * k + 4 * rq, P + 16 * k + 4 * rq + 3, k * 4096 + rq * 1024))
    if not g1:
        for rq in range(4):
            a("ds_read_b64_tr_b16 v[%d:%d], v13 offset:%d" % (16 + 2 * rq, 17 + 2 * rq, 8 * rq * TP))
        a("v_lshlrev_b32 v%d, 16, v%d" % (XR + 9, XR + 9))
        a("v_sub_f32 v%d, 1.0, v%d" % (XR + 8, XR + 8))
        bf16r(a, XR + 8)
        a("v_mov_b32 v%d, v%d" % (XR + 11, XR + 9))
        a("v_mov_b32 v%d, v%d" % (XR + 10, XR + 9))
        a("v_mov_b32 v%d, v%d" % (XR + 9, XR + 8))
    else:
        if "pf3" not in X:
            a("s_waitcnt vmcnt(0)")
        k1 = -2.0 * 0.7978845608028654 * 1.4426950408889634
        a("v_mov_b32 v16, 0x%x" % f32(k1))
        a("v_mov_b32 v17, 0x%x" % f32(k1))
        a("v_mov_b32 v18, 0x%x" % f32(k1 * 0.044715))
        a("v_mov_b32 v19, 0x%x" % f32(k1 * 0.044715))
        a("v_mov_b32 v20, 1.0")
        a("v_mov_b32 v21, 1.0")
    nrd = 12 + (0 if g1 else 4)

    def pk(op, d, x, y):
        a("v_pk_%s_f32 v[%d:%d], v[%d:%d], v[%d:%d]" % (op, d, d + 1, x, x + 1, y, y + 1))

    def rnd(base, n, tmp):
        for k in range(n // 2):
            a("v_cvt_pk_bf16_f32 v%d, v%d, v%d" % (tmp + k, base + 2 * k, base + 2 * k + 1))
        for k in range(n // 2):
            a("v_lshlrev_b32 v%d, 16, v%d" % (base + 2 * k, tmp + k))
            a("v_and_b32 v%d, s27, v%d" % (base + 2 * k + 1, tmp + k))

    for half in range(2):
        a("s_waitcnt lgkmcnt(%d)" % (nrd - 6 * (half + 1)))
        for k in range(3):
            for e in range(4):
                pk("add", F + 8 * half + 2 * e, F + 8 * half + 2 * e, P + 16 * k + 8 * half + 2 * e)
    TM = 48
    B = 32
    if g1:
        for k in range(8):
            a("v_lshlrev_b32 v%d, 16, v%d" % (B + 2 * k, XR + k))
            a("v_and_b32 v%d, s27, v%d" % (B + 2 * k + 1, XR + k))
        for e in range(8):
            pk("add", F + 2 * e, F + 2 * e, B + 2 * e)
        for e in range(8):
            pk("mul", B + 2 * e, F + 2 * e, F + 2 * e)
        for e in range(8):
            a("v_pk_fma_f32 v[%d:%d], v[%d:%d], v[18:19], v[16:17]" % (B + 2 * e, B + 2 * e + 1, B + 2 * e, B + 2 * e + 1))
        for e in range(8):
            pk("mul", B + 2 * e, B + 2 * e, F + 2 * e)
        for j in range(16):
            a("v_exp_f32 v%d, v%d" % (B + j, B + j))
        for e in range(8):
            pk("add", B + 2 * e, B + 2 * e, 20)
        for j in range(16):
            a("v_rcp_f32 v%d, v%d" % (B + j, B + j))
        a.nop(1)
        for e in range(8):
            pk("mul", F + 2 * e, F + 2 * e, B + 2 * e)
        for k in range(8):
            a("v_cvt_pk_bf16_f32 v%d, v%d, v%d" % (TM + k, F + 2 * k, F + 2 * k + 1))
        for rq in range(4):
            a("buffer_store_dwordx2 v[%d:%d], v11, s[12:15], s32 offen offset:%d" % (TM + 2 * rq, TM + 2 * rq + 1, 512 * rq))
    else:
        for e in range(8):
            pk("add", F + 2 * e, F + 2 * e, XR + 10)
        a("s_waitcnt lgkmcnt(0)")
        for k in range(8):
            a("v_lshlrev_b32 v%d, 16, v%d" % (B + 2 * k, 16 + k))
            a("v_and_b32 v%d, s27, v%d" % (B + 2 * k + 1, 16 + k))
        for e in range(8):
            a("v_pk_fma_f32 v[%d:%d], v[%d:%d], v[%d:%d], v[%d:%d]" % (F + 2 * e, F + 2 * e + 1, F + 2 * e, F + 2 * e + 1, XR + 8, XR + 9, B + 2 * e, B + 2 * e + 1))
        for k in range(8):
            a("v_cvt_pk_bf16_f32 v%d, v%d, v%d" % (TM + k, F + 2 * k, F + 2 * k + 1))
        for rq in range(4):
            a("buffer_store_dwordx2 v[%d:%d], v14, s[44:47], s33 offen offset:%d" % (TM + 2 * rq, TM + 2 * rq + 1, 16 * rq))
    stamp(a)
    dump_stamps(a, 9)
    trace_end(a, which - (1 if FUSED else 0))
    a("s_endpgm")


def kd(name, vgpr, sgpr=102):
    acc = (vgpr + 3) // 4 * 4
    return """.amdhsa_kernel %s
  .amdhsa_next_free_vgpr %d
  .amdhsa_next_free_sgpr %d
  .amdhsa_accum_offset %d
  .amdhsa_group_segment_fixed_size 0
  .amdhsa_kernarg_size 144
  .amdhsa_user_sgpr_count 2
  .amdhsa_user_sgpr_kernarg_segment_ptr 1
  .amdhsa_system_sgpr_workgroup_id_x 1
.end_amdhsa_kernel
""" % (name, vgpr, sgpr, acc)


def main(out):
    ref = open("cdna_kernels/%s.s.ref" % NAME).read()
    head = []
    for ln in ref.splitlines():
        if ln.startswith("; @launch"):
            break
        if ln.startswith("; Override") or ln.startswith("; grid=ceil"):
            continue
        head.append(ln)
    a = A()
    K1, K2, K3 = "k1_prep_kernel", "k2_gemm1_conv_kernel", "k3_gemm2_kernel"
    if not FUSED:
        head.append("; @launch kernel=%s grid=(%d,1,1) block=(256,1,1) lds=%d" % (K1, 768, K1_LDS))
    head.append("; @launch kernel=%s grid=(%d,1,1) block=(256,1,1) lds=%d" % (K2, 224 + 512, K2_LDS))
    head.append("; @launch kernel=%s grid=(%d,1,1) block=(256,1,1) lds=%d" % (K3, 256, K3_LDS))
    a.L += head
    a.L.append('.amdgcn_target "amdgcn-amd-amdhsa--gfx950"')
    a.L.append(".text")

    def start(k):
        a.L.append(".globl %s" % k)
        a.L.append(".p2align 8")
        a.L.append(".type %s,@function" % k)
        a.lab(k)

    if not FUSED:
        start(K1)
        a("s_cmp_ge_u32 s2, 768")
        a("s_cbranch_scc1 L_k1_exit")
        a("s_cmp_ge_u32 s2, 512")
        a("s_cbranch_scc1 L_k1_prep")
        gen_kgen(a, 0)
        a.lab("L_k1_exit")
        a("s_endpgm")
        a.lab("L_k1_prep")
        gen_prep(a, 512)

    start(K2)
    a("s_cmp_ge_u32 s2, %d" % (224 + 512))
    a("s_cbranch_scc1 L_k2_exit")
    a("s_cmp_lt_u32 s2, 512")
    a("s_cbranch_scc1 L_k2_conv")
    a("s_sub_u32 s2, s2, 512")
    if "noprio" not in X:
        a("s_setprio 3")
    gen_gemm(a, 1)
    a.lab("L_k2_exit")
    a("s_endpgm")
    a.lab("L_k2_conv")
    if FUSED:
        a.cur = "conv"
        trace_begin(a)
        a("s_cmp_ge_u32 s2, 256")
        a("s_cbranch_scc1 L_k2_kgen")
        gen_prep(a, 0)
        a.lab("L_k2_kgen")
        gen_kgen(a, 0)
    gen_conv(a, 0)

    start(K3)
    a("s_cmp_ge_u32 s2, 256")
    a("s_cbranch_scc1 L_k3_exit")
    gen_gemm(a, 2)
    a.lab("L_k3_exit")
    a("s_endpgm")

    a.L.append('.section .rodata,"a"')
    for k, v in ((K1, 144), (K2, 168), (K3, 176))[1 if FUSED else 0:]:
        a.L.append(".p2align 6")
        a.L.append(kd(k, v))
    open(out, "w").write("\n".join(a.L) + "\n")


if __name__ == "__main__":
    main(sys.argv[1] if len(sys.argv) > 1 else "cdna_kernels/%s.s" % NAME)
```

```python
import struct, sys, os
X = os.environ.get("GENX", "")
GX = X
FUSED = "fuse" in X
SC = " sc1" if FUSED else ""
WH = " nt" if "wnt" in X else (" sc1" if "wsc1" in X else "")
DH = " nt" if "dnt" in X else (" sc1" if "dsc1" in X else "")

NAME = "gated_mix__ssm_conv_s4__mixer_token_mlp__prompt"

MB = 1 << 20
WS_HF = 0
WS_UF = 2 * MB
WS_GF = 4 * MB
WS_AF = 6 * MB
WS_GT = 8 * MB
WS_RK = 9 * MB
WS_SIZE = 268435456

NPREP = 64
HILO = True


def f32(x):
    return struct.unpack("<I", struct.pack("<f", x))[0]


class A:
    def __init__(self):
        self.L = []
        self.cur = ""

    def __call__(self, s):
        self.L.append("    " + s)

    def lab(self, s):
        self.L.append(s + ":")

    def nop(self, n):
        while n > 0:
            k = min(n, 16)
            self("s_nop %d" % (k - 1))
            n -= k

    def c(self, s):
        self.L.append("    ; " + s)


STAMPS = [0]
def stamp(a):
    if "stamp" not in X:
        return
    k = STAMPS[0]
    a("s_memtime s[%d:%d]" % (72 + 2 * k, 73 + 2 * k))
    STAMPS[0] += 1


def dump_stamps(a, wg, off=0):
    if "stamp" not in X:
        return
    n = STAMPS[0]
    STAMPS[0] = 0
    a("s_waitcnt vmcnt(0) lgkmcnt(0)")
    a("s_memtime s[%d:%d]" % (72 + 2 * n, 73 + 2 * n))
    n += 1
    a("s_load_dwordx2 s[96:97], s[0:1], 128")
    a("s_waitcnt lgkmcnt(0)")
    a("s_mov_b32 s98, 256")
    a("s_mov_b32 s99, 0x00020000")
    a("s_mov_b64 exec, -1")
    a("v_lshrrev_b32 v1, 6, v0")
    a("s_nop 1")
    a("v_readfirstlane_b32 s95, v1")
    a("s_cmp_lg_u32 s95, 0")
    a("s_cbranch_scc1 L_nostamp%d" % len(a.L))
    lab = "L_nostamp%d" % (len(a.L) - 1)
    a("s_cmp_lg_u32 s2, %d" % wg)
    a("s_cbranch_scc1 %s" % lab)
    a("s_mov_b64 exec, 1")
    a("v_mov_b32 v1, 0")
    for k in range(n):
        a("v_mov_b32 v2, s%d" % (72 + 2 * k))
        a("buffer_store_dword v2, v1, s[96:99], 0 offen offset:%d" % (off + 4 * k))
    a.lab(lab)


def trace_begin(a):
    if "trace" not in X:
        return
    a("s_memrealtime s[88:89]")
    a("s_memtime s[90:91]")
    a("s_mov_b32 s94, s2")
    a("s_mov_b32 s86, 0")
    if a.cur == "g1":
        a("s_add_u32 s94, s94, 512")


def trace_end(a, launch):
    if "trace" not in X:
        return
    a("s_waitcnt vmcnt(0) lgkmcnt(0)")
    a("s_memrealtime s[92:93]")
    if FUSED:
        a("s_mov_b32 s84, s86")
    else:
        a("s_memtime s[84:85]")
    a("s_load_dwordx2 s[96:97], s[0:1], 136")
    a("s_waitcnt lgkmcnt(0)")
    a("s_mov_b32 s98, 0x%x" % WS_SIZE)
    a("s_mov_b32 s99, 0x00020000")
    a("s_mov_b64 exec, -1")
    a("v_lshrrev_b32 v1, 6, v0")
    a("s_nop 1")
    a("v_readfirstlane_b32 s95, v1")
    a("s_cmp_lg_u32 s95, 0")
    a("s_cbranch_scc1 L_notr%d" % len(a.L))
    lab = "L_notr%d" % (len(a.L) - 1)
    a("s_lshl_b32 s94, s94, 4")
    a("s_add_u32 s94, s94, 0x%x" % (64 * MB + launch * 65536))
    a("s_mov_b64 exec, 1")
    a("v_mov_b32 v1, 0")
    a("v_mov_b32 v4, s88")
    a("v_mov_b32 v5, s92")
    if "hwid" in X:
        a("s_getreg_b32 s90, hwreg(HW_REG_HW_ID)")
        a("s_getreg_b32 s84, hwreg(HW_REG_XCC_ID)")
    a("v_mov_b32 v6, s90")
    a("v_mov_b32 v7, s84")
    a("buffer_store_dwordx4 v[4:7], v1, s[96:99], s94 offen")
    a.lab(lab)


def poll_flags(a, tag, sreg=72):
    a("s_cmp_lg_u32 s3, 0")
    a("s_cbranch_scc1 L_pf_done_%s" % tag)
    a("s_load_dwordx2 s[%d:%d], s[0:1], 128" % (sreg, sreg + 1))
    a("v_lshlrev_b32 v72, 2, v2")
    a("s_mov_b32 s%d, 4" % (sreg + 4))
    a("s_mov_b32 s%d, 0x40000" % (sreg + 5))
    a("s_waitcnt lgkmcnt(0)")
    a("s_mov_b32 s%d, 256" % (sreg + 2))
    a("s_mov_b32 s%d, 0x00020000" % (sreg + 3))
    a.lab("L_pf_loop_%s" % tag)
    a("buffer_load_dword v73, v72, s[%d:%d], 0 offen sc1" % (sreg, sreg + 3))
    a("s_waitcnt vmcnt(0)")
    a("v_cmp_ne_u32 vcc, s%d, v73" % (sreg + 4))
    a("s_nop 4")
    a("s_cbranch_vccz L_pf_done_%s" % tag)
    a("s_sleep %d" % (64 if "slow" in X else 4))
    a("s_sub_u32 s%d, s%d, 1" % (sreg + 5, sreg + 5))
    a("s_cmp_lg_u32 s%d, 0" % (sreg + 5))
    a("s_cbranch_scc1 L_pf_loop_%s" % tag)
    a.lab("L_pf_done_%s" % tag)
    if "trace" in X:
        a("s_memrealtime s[90:91]")
        a("s_waitcnt lgkmcnt(0)")


def srd(a, d, base, nbytes, off=0):
    if off:
        a("s_add_u32 s%d, s%d, 0x%x" % (d, base, off))
        a("s_addc_u32 s%d, s%d, 0" % (d + 1, base + 1))
    else:
        a("s_mov_b32 s%d, s%d" % (d, base))
        a("s_mov_b32 s%d, s%d" % (d + 1, base + 1))
    a("s_mov_b32 s%d, 0x%x" % (d + 2, nbytes))
    a("s_mov_b32 s%d, 0x00020000" % (d + 3))


def bf16r(a, v):
    a("v_cvt_pk_bf16_f32 v%d, v%d, v%d" % (v, v, v))
    a("v_lshlrev_b32 v%d, 16, v%d" % (v, v))


def wave_reduce(a, regs):
    assert len(regs) >= 3
    steps = ["quad_perm:[1,0,3,2] row_mask:0xf bank_mask:0xf",
             "quad_perm:[2,3,0,1] row_mask:0xf bank_mask:0xf",
             "row_half_mirror row_mask:0xf bank_mask:0xf",
             "row_mirror row_mask:0xf bank_mask:0xf",
             "row_bcast:15 row_mask:0xa bank_mask:0xf",
             "row_bcast:31 row_mask:0xc bank_mask:0xf"]
    a.nop(2)
    for st in steps:
        for r in regs:
            a("v_add_f32_dpp v%d, v%d, v%d %s" % (r, r, r, st))
    a.nop(1)


RP = 1024 + 64
UTP = 128 + 64
TBP = 528
XT = 0
YT = 41 * TBP
KT = 45056 if FUSED else 82 * TBP
K1_LDS = KT + 2576
DSTEPS = ["quad_perm:[1,0,3,2] row_mask:0xf bank_mask:0xf",
          "quad_perm:[2,3,0,1] row_mask:0xf bank_mask:0xf",
          "row_half_mirror row_mask:0xf bank_mask:0xf",
          "row_mirror row_mask:0xf bank_mask:0xf",
          "row_bcast:15 row_mask:0xa bank_mask:0xf",
          "row_bcast:31 row_mask:0xc bank_mask:0xf"]


def prep_row(R, SR):
    a = A()
    XV, T, M = R + 8, R + 16, R + 24
    GW = 24
    for q in range(4):
        a("v_lshlrev_b32 v%d, 16, v%d" % (XV + 2 * q, R + q))
        a("v_and_b32 v%d, s27, v%d" % (XV + 2 * q + 1, R + q))
    for q in range(4):
        a("v_pk_mul_f32 v[%d:%d], v[%d:%d], v[%d:%d]" % (T + 2 * q, T + 2 * q + 1, XV + 2 * q, XV + 2 * q + 1, GW + 2 * q, GW + 2 * q + 1))
    a("v_pk_add_f32 v[%d:%d], v[%d:%d], v[%d:%d]" % (M, M + 1, XV, XV + 1, XV + 2, XV + 3))
    a("v_pk_add_f32 v[%d:%d], v[%d:%d], v[%d:%d]" % (M + 2, M + 3, XV + 4, XV + 5, XV + 6, XV + 7))
    for q in range(4):
        a("v_cvt_pk_bf16_f32 v%d, v%d, v%d" % (M + 4 + q, T + 2 * q, T + 2 * q + 1))
    a("v_pk_add_f32 v[%d:%d], v[%d:%d], v[%d:%d]" % (M, M + 1, M, M + 1, M + 2, M + 3))
    for q in range(4):
        a("v_lshlrev_b32 v%d, 16, v%d" % (T + 2 * q, M + 4 + q))
        a("v_and_b32 v%d, s27, v%d" % (T + 2 * q + 1, M + 4 + q))
    a("v_add_f32 v%d, v%d, v%d" % (M, M, M + 1))
    a("v_pk_add_f32 v[%d:%d], v[%d:%d], v[%d:%d]" % (M + 2, M + 3, T, T + 1, T + 2, T + 3))
    a("v_pk_add_f32 v[%d:%d], v[%d:%d], v[%d:%d]" % (M + 4, M + 5, T + 4, T + 5, T + 6, T + 7))
    a("v_pk_add_f32 v[%d:%d], v[%d:%d], v[%d:%d]" % (M + 2, M + 3, M + 2, M + 3, M + 4, M + 5))
    a("v_add_f32 v%d, v%d, v%d" % (M + 1, M + 2, M + 3))
    a.nop(1)
    for st in DSTEPS:
        a("v_add_f32_dpp v%d, v%d, v%d %s" % (M, M, M, st))
        a("v_add_f32_dpp v%d, v%d, v%d %s" % (M + 1, M + 1, M + 1, st))
        a.nop(1)
    a("v_readlane_b32 s%d, v%d, 63" % (SR, M))
    a("v_readlane_b32 s%d, v%d, 63" % (SR + 1, M + 1))
    a.nop(2)
    G = M + 10
    a("v_mul_f32 v%d, s%d, v60" % (M + 2, SR))
    a("v_mul_f32 v%d, s%d, v60" % (M + 3, SR))
    a("v_mov_b32 v%d, s%d" % (G, SR + 1))
    for q in range(4):
        a("v_pk_add_f32 v[%d:%d], v[%d:%d], v[%d:%d] neg_lo:[0,1] neg_hi:[0,1]" % (T + 2 * q, T + 2 * q + 1, XV + 2 * q, XV + 2 * q + 1, M + 2, M + 3))
    a("v_pk_mul_f32 v[%d:%d], v[%d:%d], v[%d:%d]" % (M + 4, M + 5, T, T + 1, T, T + 1))
    a("v_pk_mul_f32 v[%d:%d], v[%d:%d], v[%d:%d]" % (M + 6, M + 7, T + 2, T + 3, T + 2, T + 3))
    a("v_pk_fma_f32 v[%d:%d], v[%d:%d], v[%d:%d], v[%d:%d]" % (M + 4, M + 5, T + 4, T + 5, T + 4, T + 5, M + 4, M + 5))
    a("v_pk_fma_f32 v[%d:%d], v[%d:%d], v[%d:%d], v[%d:%d]" % (M + 6, M + 7, T + 6, T + 7, T + 6, T + 7, M + 6, M + 7))
    bf16r(a, G)
    a("v_pk_add_f32 v[%d:%d], v[%d:%d], v[%d:%d]" % (M + 4, M + 5, M + 4, M + 5, M + 6, M + 7))
    a("v_mul_f32 v%d, 0x%x, v%d" % (G, f32(-1.4426950408889634), G))
    a("v_add_f32 v%d, v%d, v%d" % (M + 4, M + 4, M + 5))
    a("v_exp_f32 v%d, v%d" % (G, G))
    bf16r(a, M + 2)
    for k, st in enumerate(DSTEPS):
        a("v_add_f32_dpp v%d, v%d, v%d %s" % (M + 4, M + 4, M + 4, st))
        if k == 0:
            a("v_add_f32 v%d, 1.0, v%d" % (G, G))
            a("v_mov_b32 v%d, v%d" % (M + 3, M + 2))
        elif k == 1:
            a("v_rcp_f32 v%d, v%d" % (G, G))
            a.nop(1)
        else:
            a.nop(2)
    a("v_readlane_b32 s%d, v%d, 63" % (SR + 2, M + 4))
    for q in range(4):
        a("v_pk_add_f32 v[%d:%d], v[%d:%d], v[%d:%d] neg_lo:[0,1] neg_hi:[0,1]" % (XV + 2 * q, XV + 2 * q + 1, XV + 2 * q, XV + 2 * q + 1, M + 2, M + 3))
    a("v_mul_f32 v%d, s%d, v60" % (M + 4, SR + 2))
    for q in range(4):
        a("v_cvt_pk_bf16_f32 v%d, v%d, v%d" % (T + q, XV + 2 * q, XV + 2 * q + 1))
    bf16r(a, M + 4)
    bf16r(a, G)
    a("v_add_f32 v%d, v%d, v61" % (M + 4, M + 4))
    for q in range(4):
        a("v_lshlrev_b32 v%d, 16, v%d" % (XV + 2 * q, T + q))
        a("v_and_b32 v%d, s27, v%d" % (XV + 2 * q + 1, T + q))
    bf16r(a, M + 4)
    a("v_sqrt_f32 v%d, v%d" % (M + 4, M + 4))
    a.nop(1)
    bf16r(a, M + 4)
    a("v_rcp_f32 v%d, v%d" % (M + 4, M + 4))
    a.nop(1)
    a("v_mov_b32 v%d, v%d" % (M + 5, M + 4))
    for q in range(4):
        a("v_pk_mul_f32 v[%d:%d], v[%d:%d], v[%d:%d]" % (XV + 2 * q, XV + 2 * q + 1, XV + 2 * q, XV + 2 * q + 1, M + 4, M + 5))
    for q in range(4):
        a("v_cvt_pk_bf16_f32 v%d, v%d, v%d" % (T + q, XV + 2 * q, XV + 2 * q + 1))
    return a.L, T, G


def gen_prep(a, first_wg):
    a.c("---- prep role: wave handles 2 rows, WG = 8 rows")
    a.cur = "prep"
    if not FUSED:
        trace_begin(a)
    stamp(a)
    if first_wg:
        a("s_sub_u32 s2, s2, %d" % first_wg)
    a("s_load_dwordx2 s[4:5], s[0:1], 0")
    a("s_load_dwordx2 s[6:7], s[0:1], 112")
    a("s_load_dwordx2 s[8:9], s[0:1], 136")
    a("v_lshrrev_b32 v1, 6, v0")
    a("v_and_b32 v2, 63, v0")
    a("v_readfirstlane_b32 s3, v1")
    a("v_lshlrev_b32 v3, 4, v2")
    a("s_lshl_b32 s24, s2, 3")
    a("s_lshl_b32 s25, s3, 1")
    a("s_add_u32 s24, s24, s25")
    a("s_lshl_b32 s25, s24, 10")
    a("s_mov_b32 s27, 0xffff0000")
    a("s_waitcnt lgkmcnt(0)")
    srd(a, 12, 4, 2 * MB)
    srd(a, 16, 6, 1024)
    R0, R1 = 64, 104
    a("buffer_load_dwordx4 v[%d:%d], v3, s[12:15], s25 offen" % (R0, R0 + 3))
    a("buffer_load_dwordx4 v[%d:%d], v3, s[12:15], s25 offen offset:1024" % (R1, R1 + 3))
    a("buffer_load_dwordx4 v[12:15], v3, s[16:19], 0 offen")
    a("s_lshr_b32 s40, s2, 3")
    a("s_and_b32 s41, s2, 7")
    a("s_lshl_b32 s42, s40, 16")
    a("s_lshl_b32 s43, s41, 7")
    a("s_add_u32 s42, s42, s43")
    a("v_lshrrev_b32 v44, 3, v0")
    a("v_and_b32 v45, 7, v0")
    a("v_lshlrev_b32 v43, 10, v44")
    a("v_lshl_add_u32 v43, v45, 4, v43")
    a("buffer_load_dwordx4 v[32:35], v43, s[12:15], s42 offen")
    a("s_add_u32 s43, s42, 32768")
    a("buffer_load_dwordx4 v[36:39], v43, s[12:15], s43 offen")
    a("v_mul_u32_u24 v40, %d, v44" % UTP)
    a("v_lshl_add_u32 v40, v45, 4, v40")
    a("v_and_b32 v44, 15, v2")
    a("v_lshrrev_b32 v41, 2, v44")
    a("s_lshl_b32 s44, s3, 4")
    a("v_add_u32 v41, s44, v41")
    a("v_mul_u32_u24 v41, %d, v41" % UTP)
    a("v_and_b32 v44, 3, v44")
    a("v_lshl_add_u32 v41, v44, 3, v41")
    a("v_lshrrev_b32 v44, 4, v2")
    a("v_lshl_add_u32 v41, v44, 5, v41")
    a("v_lshlrev_b32 v42, 12, v2")
    a("s_lshl_b32 s44, s41, 18")
    a("s_lshl_b32 s45, s40, 7")
    a("s_add_u32 s44, s44, s45")
    a("s_lshl_b32 s45, s3, 5")
    a("s_add_u32 s44, s44, s45")
    a("s_add_u32 s44, s44, 0x%x" % WS_UF)
    srd(a, 20, 8, WS_SIZE)
    a("s_mul_i32 s26, s3, %d" % (2 * RP))
    a("v_add_u32 v4, s26, v3")
    a("v_and_b32 v5, 15, v2")
    a("v_lshrrev_b32 v6, 2, v5")
    a("v_mul_u32_u24 v6, %d, v6" % RP)
    a("v_and_b32 v5, 3, v5")
    a("v_lshl_add_u32 v6, v5, 3, v6")
    a("v_lshrrev_b32 v5, 4, v2")
    a("v_lshl_add_u32 v6, v5, 5, v6")
    a("s_lshl_b32 s26, s3, 8")
    a("v_add_u32 v6, s26, v6")
    a("v_lshrrev_b32 v7, 5, v2")
    a("s_lshl_b32 s26, s3, 2")
    a("v_add_u32 v7, s26, v7")
    a("v_lshlrev_b32 v7, 17, v7")
    a("v_and_b32 v5, 31, v2")
    a("v_lshl_add_u32 v7, v5, 4, v7")
    a("s_lshl_b32 s28, s2, 9")
    a("s_add_u32 s29, s28, %d" % (2 * 131072))
    a("v_mov_b32 v60, 0x%x" % f32(1.0 / 512))
    a("v_mov_b32 v61, 0x%x" % f32(1e-5))
    a("s_lshl_b32 s30, s24, 2")
    a("s_add_u32 s30, s30, 0x%x" % WS_GT)
    a("v_mov_b32 v8, 0")
    a("s_waitcnt vmcnt(2)")
    stamp(a)
    for q in range(4):
        a("v_lshlrev_b32 v%d, 16, v%d" % (24 + 2 * q, 12 + q))
        a("v_and_b32 v%d, s27, v%d" % (25 + 2 * q, 12 + q))
    L0, T0, G0 = prep_row(R0, 32)
    L1, T1, G1 = prep_row(R1, 36)
    for x, y in zip(L0, L1):
        if "s_nop 0" in x:
            continue
        if "s_nop 1" in x:
            a("s_nop 0")
            continue
        a.L.append(x)
        a.L.append(y)
    a("s_waitcnt vmcnt(0)")
    a("ds_write_b128 v40, v[32:35] offset:%d" % (8 * RP))
    a("ds_write_b128 v40, v[36:39] offset:%d" % (8 * RP + 32 * UTP))
    a("ds_write_b128 v4, v[%d:%d]" % (T0, T0 + 3))
    a("ds_write_b128 v4, v[%d:%d] offset:%d" % (T1, T1 + 3, RP))
    GL = 8 * RP + 64 * UTP
    a("s_lshl_b32 s31, s3, 3")
    a("v_mov_b32 v9, s31")
    a("s_mov_b64 exec, 1")
    a("ds_write2_b32 v9, v%d, v%d offset0:%d offset1:%d" % (G0, G1, 0, 1) if False else "v_add_u32 v9, %d, v9" % GL)
    a("ds_write2_b32 v9, v%d, v%d offset0:0 offset1:1" % (G0, G1))
    a("s_mov_b64 exec, -1")
    a("s_waitcnt lgkmcnt(0)")
    a("s_barrier")
    stamp(a)
    for p in range(2):
        a("ds_read_b64_tr_b16 v[%d:%d], v6 offset:%d" % (8 + 4 * p, 9 + 4 * p, 128 * p))
        a("ds_read_b64_tr_b16 v[%d:%d], v6 offset:%d" % (10 + 4 * p, 11 + 4 * p, 4 * RP + 128 * p))
    for p in range(2):
        for h in range(2):
            a("ds_read_b64_tr_b16 v[%d:%d], v41 offset:%d" % (32 + 4 * p + 2 * h, 33 + 4 * p + 2 * h, 8 * RP + (8 * p + 4 * h) * UTP))
    a("s_waitcnt lgkmcnt(6)")
    a("buffer_store_dwordx4 v[8:11], v7, s[20:23], s28 offen" + SC)
    a("s_waitcnt lgkmcnt(4)")
    a("buffer_store_dwordx4 v[12:15], v7, s[20:23], s29 offen" + SC)
    a("v_mul_u32_u24 v42, 144, v2")
    a("s_lshl_b32 s45, s3, 5")
    a("v_add_u32 v42, s45, v42")
    a("s_waitcnt lgkmcnt(0)")
    a("ds_write_b128 v42, v[32:35] offset:%d" % (GL + 64))
    a("ds_write_b128 v42, v[36:39] offset:%d" % (GL + 64 + 16))
    a("v_lshrrev_b32 v44, 3, v0")
    a("v_and_b32 v45, 7, v0")
    a("v_mul_u32_u24 v42, 144, v44")
    a("v_lshl_add_u32 v42, v45, 4, v42")
    a("v_lshlrev_b32 v43, 12, v44")
    a("v_lshl_add_u32 v43, v45, 4, v43")
    a("s_lshl_b32 s44, s41, 18")
    a("s_lshl_b32 s45, s40, 7")
    a("s_add_u32 s44, s44, s45")
    a("s_add_u32 s44, s44, 0x%x" % WS_UF)
    a("s_add_u32 s45, s44, %d" % (32 * 4096))
    a("v_lshlrev_b32 v9, 2, v2")
    a("s_lshl_b32 s30, s2, 5")
    a("s_add_u32 s30, s30, 0x%x" % WS_GT)
    a("s_waitcnt lgkmcnt(0)")
    a("s_barrier")
    a("ds_read_b128 v[32:35], v42 offset:%d" % (GL + 64))
    a("ds_read_b128 v[36:39], v42 offset:%d" % (GL + 64 + 32 * 144))
    a("ds_read_b32 v10, v9 offset:%d" % GL)
    a("s_waitcnt lgkmcnt(2)")
    a("buffer_store_dwordx4 v[32:35], v43, s[20:23], s44 offen" + SC)
    a("s_waitcnt lgkmcnt(1)")
    a("buffer_store_dwordx4 v[36:39], v43, s[20:23], s45 offen" + SC)
    a("s_waitcnt lgkmcnt(0)")
    a("s_cmp_lg_u32 s3, 0")
    a("s_cbranch_scc1 L_prep_nog")
    a("s_mov_b64 exec, 0xff")
    a("buffer_store_dword v10, v9, s[20:23], s30 offen" + SC)
    a("s_mov_b64 exec, -1")
    a.lab("L_prep_nog")
    if FUSED:
        a("s_load_dwordx2 s[40:41], s[0:1], 128")
        a("s_waitcnt vmcnt(0) lgkmcnt(0)")
        a("s_barrier")
        a("s_mov_b32 s42, 256")
        a("s_mov_b32 s43, 0x00020000")
        a("s_cmp_lg_u32 s3, 0")
        a("s_cbranch_scc1 L_prep_noflag")
        a("v_mov_b32 v9, 1")
        a("v_mov_b32 v8, 0")
        a("s_mov_b64 exec, 1")
        a("s_and_b32 s44, s2, 63")
        a("s_lshl_b32 s44, s44, 2")
        a("buffer_atomic_add v9, v8, s[40:43], s44 offen sc1")
        a("s_mov_b64 exec, -1")
        a.lab("L_prep_noflag")
        if "trace" in X:
            a("s_memrealtime s[86:87]")
            a("s_waitcnt lgkmcnt(0)")
        return
    stamp(a)
    dump_stamps(a, 5)
    trace_end(a, 0)
    a("s_endpgm")


def gen_utr(a, first_wg):
    a.c("---- U transposer role: tile 64 s x 64 d -> UT[d][s]")
    a.cur = "utr"
    trace_begin(a)
    a("s_sub_u32 s2, s2, %d" % first_wg)
    a("s_load_dwordx2 s[4:5], s[0:1], 0")
    a("s_load_dwordx2 s[8:9], s[0:1], 136")
    a("v_lshrrev_b32 v1, 6, v0")
    a("v_and_b32 v2, 63, v0")
    a("v_readfirstlane_b32 s3, v1")
    a("s_lshr_b32 s20, s2, 3")
    a("s_and_b32 s21, s2, 7")
    a("s_lshl_b32 s22, s20, 16")
    a("s_lshl_b32 s23, s21, 7")
    a("s_add_u32 s22, s22, s23")
    a("v_lshrrev_b32 v3, 3, v0")
    a("v_and_b32 v4, 7, v0")
    a("v_lshlrev_b32 v5, 10, v3")
    a("v_lshl_add_u32 v5, v4, 4, v5")
    a("v_mul_u32_u24 v6, %d, v3" % UTP)
    a("v_lshl_add_u32 v6, v4, 4, v6")
    a("s_waitcnt lgkmcnt(0)")
    srd(a, 12, 4, 2 * MB)
    a("buffer_load_dwordx4 v[8:11], v5, s[12:15], s22 offen")
    a("s_add_u32 s23, s22, 32768")
    a("buffer_load_dwordx4 v[12:15], v5, s[12:15], s23 offen")
    srd(a, 16, 8, WS_SIZE)
    a("v_and_b32 v3, 15, v2")
    a("v_lshrrev_b32 v4, 2, v3")
    a("s_lshl_b32 s24, s3, 4")
    a("v_add_u32 v4, s24, v4")
    a("v_mul_u32_u24 v4, %d, v4" % UTP)
    a("v_and_b32 v3, 3, v3")
    a("v_lshl_add_u32 v4, v3, 3, v4")
    a("v_lshrrev_b32 v3, 4, v2")
    a("v_lshl_add_u32 v4, v3, 5, v4")
    a("v_lshlrev_b32 v7, 12, v2")
    a("s_lshl_b32 s24, s21, 18")
    a("s_lshl_b32 s25, s20, 7")
    a("s_add_u32 s24, s24, s25")
    a("s_lshl_b32 s25, s3, 5")
    a("s_add_u32 s24, s24, s25")
    a("s_add_u32 s24, s24, 0x%x" % WS_UF)
    a("s_waitcnt vmcnt(1)")
    a("ds_write_b128 v6, v[8:11]")
    a("s_waitcnt vmcnt(0)")
    a("ds_write_b128 v6, v[12:15] offset:%d" % (32 * UTP))
    a("s_waitcnt lgkmcnt(0)")
    a("s_barrier")
    for p in range(2):
        for h in range(2):
            a("ds_read_b64_tr_b16 v[%d:%d], v4 offset:%d" % (8 + 4 * p + 2 * h, 9 + 4 * p + 2 * h, (8 * p + 4 * h) * UTP))
    a("s_waitcnt lgkmcnt(2)")
    a("buffer_store_dwordx4 v[8:11], v7, s[16:19], s24 offen")
    a("s_waitcnt lgkmcnt(0)")
    a("buffer_store_dwordx4 v[12:15], v7, s[16:19], s24 offen offset:16")
    trace_end(a, 0)
    a("s_endpgm")


def gen_kgen(a, first_wg):
    a.c("---- kgen role: one channel per workgroup")
    a.cur = "kgen"
    if not FUSED:
        trace_begin(a)
    stamp(a)
    if first_wg:
        a("s_sub_u32 s2, s2, %d" % first_wg)
    a("s_load_dwordx4 s[28:31], s[0:1], 8")
    a("s_load_dwordx4 s[32:35], s[0:1], 24")
    a("s_load_dwordx4 s[36:39], s[0:1], 40")
    a("s_load_dwordx2 s[40:41], s[0:1], 56")
    a("s_load_dwordx2 s[4:5], s[0:1], 136")
    a("s_load_dwordx2 s[6:7], s[0:1], 80")
    a("v_lshrrev_b32 v1, 6, v0")
    a("v_and_b32 v2, 63, v0")
    a("v_readfirstlane_b32 s3, v1")
    a("v_and_b32 v3, 127, v0")
    a("v_lshlrev_b32 v4, 1, v3")
    a("s_lshl_b32 s20, s2, 8")
    a("s_lshl_b32 s25, s2, 1")
    a("v_mov_b32 v6, 0")
    a("s_waitcnt lgkmcnt(0)")
    for k in range(6):
        srd(a, 44 + 4 * k, 28 + 2 * k, 131072)
        a("buffer_load_ushort v%d, v4, s[%d:%d], s20 offen" % (10 + k, 44 + 4 * k, 47 + 4 * k))
    srd(a, 12, 40, 1024)
    a("buffer_load_ushort v16, v6, s[12:15], s25 offen")
    if "pf1" in X:
        srd(a, 68, 6, 2048 * 1792 * 2)
        a("s_lshl_b32 s26, s2, 14")
        a("v_lshlrev_b32 v5, 4, v0")
        for k in range(4):
            a("buffer_load_dwordx4 v[%d:%d], v5, s[68:71], s26 offen" % (128 + 4 * k, 131 + 4 * k))
            if k < 3:
                a("s_add_u32 s26, s26, 4096")
    srd(a, 8, 4, WS_SIZE)
    a("s_cmp_ge_u32 s3, 2")
    a("s_cselect_b32 s26, %d, %d" % (XT, YT))
    a("s_cselect_b32 s27, 0x%x, 0x%x" % (f32(16.0), f32(1.0)))
    a("s_cselect_b32 s36, 0x%x, 0x%x" % (f32(0.15915494309189535), f32(-0.15915494309189535)))
    a("v_lshlrev_b32 v8, 2, v3")
    a("v_add_u32 v8, s26, v8")
    a("v_lshlrev_b32 v28, 3, v0")
    a("v_sub_u32 v28, 2047, v28")
    a("s_mov_b32 s28, 0xffff")
    a("s_mov_b32 s29, %d" % (0x4300 - 128))
    for j in range(8):
        a("v_subrev_u32 v%d, %d, v28" % (48 + j, j))
        a("v_cvt_f32_u32 v%d, v%d" % (56 + j, 48 + j))
    for j in range(0, 8, 2):
        a("v_cvt_pk_bf16_f32 v%d, v%d, v%d" % (56 + j, 56 + j, 57 + j))
    for j in range(0, 8, 2):
        a("v_lshrrev_b32 v%d, 16, v%d" % (57 + j, 56 + j))
        a("v_and_b32 v%d, s28, v%d" % (56 + j, 56 + j))
    for j in range(8):
        a("v_subrev_u32 v%d, s29, v%d" % (56 + j, 56 + j))
    for j in range(8):
        a("v_min_u32 v%d, 0x80, v%d" % (48 + j, 48 + j))
    for j in range(8):
        a("v_max_i32 v%d, v%d, v%d" % (56 + j, 56 + j, 48 + j))
    for j in range(8):
        a("v_lshlrev_b32 v%d, 2, v%d" % (56 + j, 56 + j))
    a("v_and_b32 v9, 15, v2")
    a("v_lshrrev_b32 v17, 4, v2")
    a("s_lshl_b32 s26, s3, 3")
    a("s_add_u32 s26, s26, 8")
    a("s_cmp_eq_u32 s3, 0")
    a("s_cselect_b32 s26, 0, s26")
    a("v_add_u32 v18, s26, v9")
    a("v_mul_u32_u24 v18, %d, v18" % TBP)
    a("v_lshl_add_u32 v18, v17, 4, v18")
    a("v_lshlrev_b32 v19, s3, v9")
    a("v_or_b32 v29, 8, v19")
    a("v_ffbh_u32 v29, v29")
    a("v_sub_u32 v29, 28, v29")
    a("v_lshrrev_b32 v19, v29, v19")
    a("v_lshl_add_u32 v19, v29, 3, v19")
    a("v_mul_u32_u24 v19, %d, v19" % TBP)
    a("v_lshl_add_u32 v19, v17, 4, v19")
    a("s_waitcnt vmcnt(%d)" % (4 if "pf1" in X else 0))
    for k in range(7):
        a("v_lshlrev_b32 v%d, 16, v%d" % (10 + k, 10 + k))
    a("v_mul_f32 v16, 0x%x, v16" % f32(1.4426950408889634))
    a("v_exp_f32 v16, v16")
    a.nop(1)
    bf16r(a, 16)
    a("v_mul_f32 v20, v16, v10")
    a("v_mul_f32 v21, v16, v11")
    a("v_mul_f32 v12, v16, v12")
    a("v_mul_f32 v13, v16, v13")
    a("v_mul_f32 v20, 0x%x, v20" % f32(1.4426950408889634))
    a("v_mul_f32 v21, s36, v21")
    a("v_mul_f32 v20, s27, v20")
    a("v_mul_f32 v21, s27, v21")
    a("v_mul_f32 v22, v14, v12")
    a("v_mul_f32 v23, v14, v13")
    a("v_fract_f32 v21, v21")
    a("v_exp_f32 v20, v20")
    a("v_fma_f32 v22, -v15, v13, v22")
    a("v_fma_f32 v23, v15, v12, v23")
    a("v_cos_f32 v24, v21")
    a("v_sin_f32 v25, v21")
    a("v_mov_b32 v26, 1.0")
    a("v_mov_b32 v27, 0")
    a("v_mul_f32 v24, v20, v24")
    a("v_mul_f32 v25, v20, v25")
    a("s_cmp_ge_u32 s3, 2")
    a("s_cbranch_scc0 L_kg_y")
    a("v_mov_b32 v26, v22")
    a("v_mov_b32 v27, v23")
    a.lab("L_kg_y")

    def cmul(dst, x, w):
        a("v_pk_mul_f32 v[30:31], v[%d:%d], v[%d:%d] op_sel:[0,0] op_sel_hi:[1,0]" % (x, x + 1, w, w + 1))
        a("v_pk_fma_f32 v[%d:%d], v[%d:%d], v[%d:%d], v[30:31] op_sel:[1,1,0] op_sel_hi:[0,1,1] neg_lo:[1,0,0]" %
          (dst, dst + 1, x, x + 1, w, w + 1))

    W = [24, 32, 34, 36]
    for k in range(1, 4):
        cmul(W[k], W[k - 1], W[k - 1])
    if "k1slow" in X:
        a("v_mov_b32 v38, v26")
        a("v_mov_b32 v39, v27")
        a("s_mov_b32 s21, 200")
        a.lab("L_slow")
        cmul(38, 38, 24)
        cmul(38, 38, 24)
        a("s_sub_u32 s21, s21, 1")
        a("s_cmp_lg_u32 s21, 0")
        a("s_cbranch_scc1 L_slow")
    for row in range(41):
        a("v_cvt_pk_bf16_f32 v%d, v26, v27" % (40 + (row & 3)))
        if row < 40:
            cmul(26, 26, W[0] if row < 16 else (W[1] if row < 24 else (W[2] if row < 32 else W[3])))
        if row & 1:
            a("ds_write2_b32 v8, v%d, v%d offset0:%d offset1:%d" % (40 + ((row - 1) & 3), 40 + (row & 3), 0, TBP // 4))
            if row < 40:
                a("v_add_u32 v8, %d, v8" % (2 * TBP))
        elif row == 40:
            a("ds_write_b32 v8, v%d" % (40 + (row & 3)))
    a("s_waitcnt lgkmcnt(0)")
    a("s_barrier")
    stamp(a)
    for kap in range(8):
        a("ds_read_b128 v[%d:%d], v18 offset:%d" % (64 + 8 * kap, 67 + 8 * kap, XT + 64 * kap))
        a("ds_read_b128 v[%d:%d], v19 offset:%d" % (68 + 8 * kap, 71 + 8 * kap, YT + 64 * kap))
    a("s_lshl_b32 s26, s3, 7")
    a("s_add_u32 s26, s26, 128")
    a("s_cmp_eq_u32 s3, 0")
    a("s_cselect_b32 s26, 0, s26")
    a("s_mov_b32 s27, 128")
    a("s_cselect_b32 s27, 256, s27")
    a("s_cmp_eq_u32 s3, 3")
    a("s_cselect_b32 s27, 129, s27")
    a("v_lshl_add_u32 v13, v17, 6, v9")
    a("v_add_u32 v15, s26, v13")
    a("v_lshlrev_b32 v15, 2, v15")
    for kap in range(8):
        a("s_waitcnt lgkmcnt(%d)" % (14 - 2 * kap))
        c0 = "0" if kap == 0 else "v[44:47]"
        a("v_mfma_f32_16x16x32_bf16 v[44:47], v[%d:%d], v[%d:%d], %s" % (64 + 8 * kap, 67 + 8 * kap, 68 + 8 * kap, 71 + 8 * kap, c0))
    a("s_lshl_b32 s22, s2, 12")
    a("s_add_u32 s22, s22, 0x%x" % WS_RK)
    a("v_lshlrev_b32 v3, 4, v0")
    a.nop(5)
    for reg in range(4):
        a("v_add_u32 v14, %d, v13" % (16 * reg))
        a("v_cmp_gt_u32 vcc, s27, v14")
        a("s_and_saveexec_b64 s[30:31], vcc")
        a("ds_write_b32 v15, v%d offset:%d" % (44 + reg, KT + 64 * reg))
        a("s_mov_b64 exec, s[30:31]")
    if FUSED:
        poll_flags(a, "cv")
    a("s_waitcnt lgkmcnt(0)")
    a("s_barrier")
    stamp(a)
    if FUSED:
        return
    for j in range(8):
        a("ds_read_b32 v%d, v%d offset:%d" % (64 + j, 56 + j, KT))
    a("s_waitcnt lgkmcnt(0)")
    for q in range(4):
        a("v_cvt_pk_bf16_f32 v%d, v%d, v%d" % (8 + q, 64 + 2 * q, 65 + 2 * q))
    a("buffer_store_dwordx4 v[8:11], v3, s[8:11], s22 offen")
    stamp(a)
    dump_stamps(a, 77, 64)
    trace_end(a, 0)
    a("s_endpgm")


CP = 4416
UB = 8 * CP
UP = 144
K2_LDS = 52480


def gen_conv(a, first_wg):
    a.c("---- conv role: one channel per workgroup")
    a.cur = "conv"
    if not FUSED:
        trace_begin(a)
    stamp(a)
    if FUSED:
        for j in range(8):
            a("ds_read_b32 v%d, v%d offset:%d" % (64 + j, 56 + j, KT))
    if first_wg:
        a("s_sub_u32 s2, s2, %d" % first_wg)
    a("s_load_dwordx2 s[4:5], s[0:1], 136")
    a("s_load_dwordx2 s[6:7], s[0:1], 96")
    a("s_load_dwordx2 s[42:43], s[0:1], 64")
    a("v_lshrrev_b32 v1, 6, v0")
    a("v_and_b32 v2, 63, v0")
    a("v_readfirstlane_b32 s3, v1")
    a("s_lshl_b32 s25, s2, 1")
    a("v_mov_b32 v6, 0")
    a("v_lshlrev_b32 v3, 4, v0")
    a("s_lshl_b32 s21, s2, 12")
    a("s_add_u32 s20, s21, 0x%x" % WS_RK)
    a("s_add_u32 s22, s21, 0x%x" % WS_UF)
    a("s_add_u32 s23, s21, 0x%x" % WS_AF)
    a("s_waitcnt lgkmcnt(0)")
    if not FUSED:
        a("s_add_u32 s12, s4, s20")
        a("s_addc_u32 s13, s5, 0")
        a("s_mov_b32 s14, 4096")
        a("s_mov_b32 s15, 0x00020000")
        a("buffer_load_dwordx4 v[8:11], v3, s[12:15], 0 offen")
        a("buffer_load_dwordx4 v[12:15], v3, s[12:15], 0 offen offset:16")
    else:
        for q in range(4):
            a("v_cvt_pk_bf16_f32 v%d, v%d, v%d" % (8 + q, 64 + 2 * q, 65 + 2 * q))
        a("ds_write_b128 v3, v[8:11]")
    srd(a, 8, 4, WS_SIZE)
    a("buffer_load_dwordx4 v[152:155], v3, s[8:11], s22 offen")
    srd(a, 16, 42, 1024)
    a("v_lshlrev_b32 v7, 5, v0")
    a("s_mov_b32 s24, 0x%x" % WS_GT)
    a("buffer_load_dwordx4 v[156:159], v7, s[8:11], s24 offen")
    a("buffer_load_dwordx4 v[160:163], v7, s[8:11], s24 offen offset:16")
    a("buffer_load_ushort v164, v6, s[16:19], s25 offen")
    NPF = 0
    if "pf2" in X:
        NPF = 4
        srd(a, 68, 6, 2048 * 1792 * 2)
        a("s_lshl_b32 s26, s2, 14")
        for k in range(4):
            a("buffer_load_dwordx4 v[%d:%d], v3, s[68:71], s26 offen" % (128 + 4 * k, 131 + 4 * k))
            if k < 3:
                a("s_add_u32 s26, s26, 4096")
    for k in range(4):
        a("v_mov_b32 v%d, 0" % (48 + k))
    a("ds_write_b128 v3, v[48:51] offset:%d" % UB)
    a("v_lshrrev_b32 v4, 3, v2")
    a("v_mul_u32_u24 v4, %d, v4" % CP)
    a("v_and_b32 v7, 7, v2")
    a("v_lshl_add_u32 v4, v7, 4, v4")
    a("v_add_u32 v4, 4096, v4")
    a("v_add_u32 v5, %d, v3" % (UB + 4096))
    a("s_cmp_eq_u32 s3, 0")
    a("s_cbranch_scc1 L_cv_z0")
    a("s_cmp_eq_u32 s3, 1")
    a("s_cbranch_scc0 L_cv_z1")
    a("ds_write_b128 v4, v[48:51]")
    a("s_branch L_cv_z1")
    a.lab("L_cv_z0")
    a("s_mov_b32 exec_hi, 0")
    a("ds_write_b128 v5, v[48:51]")
    a("s_mov_b64 exec, -1")
    a.lab("L_cv_z1")
    a("v_lshrrev_b32 v6, 3, v0")
    a("v_mul_u32_u24 v6, %d, v6" % UP)
    a("v_and_b32 v7, 7, v0")
    a("v_lshl_add_u32 v6, v7, 4, v6")
    a("v_and_b32 v20, 31, v2")
    a("v_lshrrev_b32 v21, 5, v2")
    a("v_and_b32 v22, 7, v20")
    a("v_sub_u32 v22, 7, v22")
    a("v_mul_u32_u24 v22, %d, v22" % CP)
    a("v_lshrrev_b32 v23, 3, v20")
    a("v_sub_u32 v23, v21, v23")
    a("v_lshl_add_u32 v22, v23, 4, v22")
    a("s_lshl_b32 s28, s3, 9")
    a("s_sub_u32 s30, %d, s28" % (16 * 255 - 128 * 3 - 64))
    a("v_add_u32 v18, s30, v22")
    a("v_mul_u32_u24 v23, %d, v20" % UP)
    a("v_lshl_add_u32 v23, v21, 4, v23")
    a("s_mul_i32 s29, s3, %d" % (4 * UP))
    a("s_sub_u32 s30, %d, s29" % (UB + UP * 29))
    a("v_add_u32 v19, s30, v23")
    a("v_and_b32 v22, 15, v2")
    a("v_lshrrev_b32 v23, 4, v2")
    a("v_and_b32 v16, 7, v2")
    a("v_sub_u32 v16, 7, v16")
    a("v_mul_u32_u24 v16, %d, v16" % CP)
    a("v_lshrrev_b32 v17, 3, v22")
    a("v_sub_u32 v17, v23, v17")
    a("v_lshl_add_u32 v16, v17, 4, v16")
    a("s_sub_u32 s30, %d, s28" % (16 * 255 - 128 * 16 - 128 * 3 - 96))
    a("v_add_u32 v16, s30, v16")
    a("v_mul_u32_u24 v17, %d, v22" % UP)
    a("v_lshl_add_u32 v17, v23, 4, v17")
    a("s_sub_u32 s30, %d, s29" % (UB + UP * 29))
    a("v_add_u32 v17, s30, v17")
    a("v_mul_u32_u24 v7, 272, v22")
    a("v_lshl_add_u32 v7, v23, 4, v7")
    if FUSED:
        a("s_waitcnt lgkmcnt(0)")
        a("s_barrier")
        a("ds_read_b128 v[12:15], v3 offset:16")
        a("s_waitcnt lgkmcnt(0)")
    else:
        a("s_waitcnt vmcnt(%d)" % (4 + NPF))
    for k in range(1, 8):
        a("v_mov_b32 v%d, v%d" % (65 + k, 8 + k))
    for k in range(7):
        a("v_alignbit_b32 v%d, v%d, v%d, 16" % (74 + k, 9 + k, 8 + k))
    for k in range(1, 7):
        a("v_alignbit_b32 v%d, v%d, v%d, 16" % (83 + k, 9 + k, 8 + k))
    src = {0: 8, 2: 66, 4: 10, 6: 68, 1: 74, 3: 84, 5: 76, 7: 86}
    for s in range(1 if FUSED else 0, 8):
        a("ds_write_b128 v3, v[%d:%d] offset:%d" % (src[s], src[s] + 3, s * CP))
    a("s_waitcnt vmcnt(%d)" % (3 + NPF))
    a("ds_write_b128 v6, v[152:155] offset:%d" % (UB + 32 * UP))
    a("s_waitcnt lgkmcnt(0)")
    a("s_barrier")
    stamp(a)
    ACC = [64, 80]
    D16 = 136
    FA = [24 + 4 * k for k in range(10)]
    FB = [[96 + 4 * k for k in range(4)], [112 + 4 * k for k in range(4)]]
    free = list(range(10))

    def loadA(step, rel):
        sl = free.pop(0)
        if step < 4:
            a("ds_read_b128 v[%d:%d], v18 offset:%d" % (FA[sl], FA[sl] + 3, 128 * (3 - step) + 64 - 2 * rel))
        else:
            a("ds_read_b128 v[%d:%d], v16 offset:%d" % (FA[sl], FA[sl] + 3, 128 * (7 - step) + 96 - 2 * rel))
        return sl

    def loadB(step):
        if step < 4:
            for k in range(4):
                a("ds_read_b128 v[%d:%d], v19 offset:%d" % (FB[step & 1][k], FB[step & 1][k] + 3, UP * (3 - step) + 32 * k))
            return 4
        for k in range(2):
            a("ds_read_b128 v[%d:%d], v17 offset:%d" % (FB[step & 1][k], FB[step & 1][k] + 3, UP * (7 - step) + 64 * k))
        return 2

    R32 = (-48, -32, -16, 0, 16, 32)
    R16 = (-32, -16, 0, 16, 32, 48)
    cur = {}
    for rel in R32:
        cur[rel] = loadA(0, rel)
    loadB(0)
    for step in range(8):
        nxt = {}
        n = 0
        if step < 7:
            RN = R32 if step + 1 < 4 else R16
            if step + 1 == 4:
                for rel in RN[:4]:
                    nxt[rel] = loadA(step + 1, rel)
                n = 4
            else:
                nxt[RN[0]] = cur[RN[4]]
                nxt[RN[1]] = cur[RN[5]]
                for rel in RN[2:]:
                    nxt[rel] = loadA(step + 1, rel)
                n = 4
            n += loadB(step + 1)
            a("s_waitcnt lgkmcnt(%d)" % n)
        else:
            a("s_waitcnt lgkmcnt(0)")
        if step < 4:
            for k in range(4):
                for beta in range(2):
                    rel = 32 * beta - 16 * k
                    c = "0" if (step == 0 and k == 0) else "v[%d:%d]" % (ACC[beta], ACC[beta] + 15)
                    a("v_mfma_f32_32x32x16_bf16 v[%d:%d], v[%d:%d], v[%d:%d], %s" %
                      (ACC[beta], ACC[beta] + 15, FA[cur[rel]], FA[cur[rel]] + 3, FB[step & 1][k], FB[step & 1][k] + 3, c))
        else:
            for ki in range(2):
                for mi in range(4):
                    rel = 16 * mi - 32 * ki
                    d = D16 + 4 * mi
                    c = "0" if (step == 4 and ki == 0) else "v[%d:%d]" % (d, d + 3)
                    a("v_mfma_f32_16x16x32_bf16 v[%d:%d], v[%d:%d], v[%d:%d], %s" %
                      (d, d + 3, FA[cur[rel]], FA[cur[rel]] + 3, FB[step & 1][ki], FB[step & 1][ki] + 3, c))
        RC = R32 if step < 4 else R16
        if step == 3:
            for rel in RC:
                free.append(cur[rel])
            for rel in R16[4:]:
                nxt[rel] = loadA(4, rel)
        else:
            for rel in RC[:4]:
                free.append(cur[rel])
        cur = nxt
    a("v_mul_u32_u24 v24, 272, v20")
    a("v_lshl_add_u32 v24, v21, 4, v24")
    a("s_mul_i32 s28, s3, 8704")
    a("v_add_u32 v24, s28, v24")
    a("v_lshrrev_b32 v25, 3, v0")
    a("v_mul_u32_u24 v25, 272, v25")
    a("v_and_b32 v26, 7, v0")
    a("v_lshl_add_u32 v25, v26, 5, v25")
    a("s_mov_b32 s27, 0xffff0000")
    a("s_waitcnt vmcnt(0)")
    a("s_barrier")
    if "cv3" in X:
        trace_end(a, 1)
        a("s_endpgm")
    stamp(a)
    a.nop(4)
    for beta in range(2):
        for rq in range(4):
            a("ds_write_b128 v24, v[%d:%d] offset:%d" % (ACC[beta] + 4 * rq, ACC[beta] + 4 * rq + 3, (32 * beta + 8 * rq) * 4))
    a("s_mul_i32 s29, s3, 4352")
    a("v_add_u32 v7, s29, v7")
    for mi in range(4):
        a("ds_write_b128 v7, v[%d:%d] offset:%d" % (D16 + 4 * mi, D16 + 4 * mi + 3, 34816 + 64 * mi))
    a("v_lshlrev_b32 v164, 16, v164")
    a("v_mov_b32 v165, v164")
    for q in range(4):
        a("v_lshlrev_b32 v%d, 16, v%d" % (128 + 2 * q, 152 + q))
        a("v_and_b32 v%d, s27, v%d" % (129 + 2 * q, 152 + q))
    for q in range(4):
        a("v_pk_mul_f32 v[%d:%d], v[%d:%d], v[164:165]" % (128 + 2 * q, 129 + 2 * q, 128 + 2 * q, 129 + 2 * q))
    a("s_waitcnt lgkmcnt(0)")
    a("s_barrier")
    for w in range(4):
        a("ds_read_b128 v[%d:%d], v25 offset:%d" % (32 + 8 * w, 35 + 8 * w, w * 8704))
        a("ds_read_b128 v[%d:%d], v25 offset:%d" % (36 + 8 * w, 39 + 8 * w, w * 8704 + 16))
    a("s_cmp_lt_u32 s3, 2")
    a("s_cbranch_scc1 L_cv_no16")
    for w in range(4):
        a("ds_read_b128 v[%d:%d], v25 offset:%d" % (96 + 8 * w, 99 + 8 * w, 34816 - 16 * 272 + w * 4352))
        a("ds_read_b128 v[%d:%d], v25 offset:%d" % (100 + 8 * w, 103 + 8 * w, 34816 - 16 * 272 + w * 4352 + 16))
    a("s_waitcnt lgkmcnt(0)")
    for w in range(4):
        for q in range(4):
            a("v_pk_add_f32 v[%d:%d], v[%d:%d], v[%d:%d]" % (128 + 2 * q, 129 + 2 * q, 128 + 2 * q, 129 + 2 * q, 96 + 8 * w + 2 * q, 97 + 8 * w + 2 * q))
    a.lab("L_cv_no16")
    a("s_waitcnt lgkmcnt(4)")
    for q in range(4):
        a("v_pk_add_f32 v[%d:%d], v[%d:%d], v[%d:%d]" % (32 + 2 * q, 33 + 2 * q, 32 + 2 * q, 33 + 2 * q, 40 + 2 * q, 41 + 2 * q))
    a("s_waitcnt lgkmcnt(0)")
    for q in range(4):
        a("v_pk_add_f32 v[%d:%d], v[%d:%d], v[%d:%d]" % (48 + 2 * q, 49 + 2 * q, 48 + 2 * q, 49 + 2 * q, 56 + 2 * q, 57 + 2 * q))
    for q in range(4):
        a("v_pk_add_f32 v[%d:%d], v[%d:%d], v[%d:%d]" % (32 + 2 * q, 33 + 2 * q, 32 + 2 * q, 33 + 2 * q, 48 + 2 * q, 49 + 2 * q))
    for q in range(4):
        a("v_pk_add_f32 v[%d:%d], v[%d:%d], v[%d:%d]" % (32 + 2 * q, 33 + 2 * q, 32 + 2 * q, 33 + 2 * q, 128 + 2 * q, 129 + 2 * q))
    for q in range(4):
        a("v_pk_mul_f32 v[%d:%d], v[%d:%d], v[%d:%d]" % (32 + 2 * q, 33 + 2 * q, 32 + 2 * q, 33 + 2 * q, 156 + 2 * q, 157 + 2 * q))
    for q in range(4):
        a("v_cvt_pk_bf16_f32 v%d, v%d, v%d" % (72 + q, 32 + 2 * q, 33 + 2 * q))
    a("buffer_store_dwordx4 v[72:75], v3, s[8:11], s23 offen")
    if "pf2e" in X:
        srd(a, 68, 6, 2048 * 1792 * 2)
        a("s_lshl_b32 s26, s2, 14")
        for k in range(4):
            a("buffer_load_dwordx4 v[%d:%d], v3, s[68:71], s26 offen" % (128 + 4 * k, 131 + 4 * k))
            if k < 3:
                a("s_add_u32 s26, s26, 4096")
    stamp(a)
    dump_stamps(a, 77, 64)
    trace_end(a, 0 if FUSED else 1)
    a("s_endpgm")


TP = 144
RED = 49152
K3_LDS = 65536 + 64 * TP


def gen_gemm(a, which):
    g1 = (which == 1)
    NOCT = 256 if g1 else 224
    S = 32 if g1 else 28
    NS = 6 if g1 else 8
    for tok in X.split(","):
        if tok.startswith("ns%d=" % which):
            NS = int(tok[4:])
    PW = 3584 if g1 else 4096
    WOFF = 80 if g1 else 96
    WBYTES = 2048 * 1792 * 2
    DOFF = WS_HF if g1 else WS_GF
    TPITCH = NOCT * 512
    NQ = 28 if g1 else 32
    TBASE = 65536
    a.c("---- gemm%d role" % which)
    a.cur = "g%d" % which
    trace_begin(a)
    stamp(a)
    a("s_load_dwordx2 s[4:5], s[0:1], %d" % WOFF)
    a("s_load_dwordx2 s[6:7], s[0:1], 136")
    a("s_load_dwordx2 s[36:37], s[0:1], %d" % (88 if g1 else 104))
    if not g1:
        a("s_load_dwordx2 s[38:39], s[0:1], 120")
    a("v_lshrrev_b32 v1, 6, v0")
    a("v_and_b32 v2, 63, v0")
    a("v_readfirstlane_b32 s3, v1")
    a("s_and_b32 s20, s2, 7")
    a("s_lshr_b32 s21, s2, 3")
    a("s_mul_i32 s20, s20, %d" % NQ)
    a("s_add_u32 s20, s20, s21")
    a("s_lshr_b32 s21, s20, 3")
    a("s_and_b32 s22, s20, 7")
    a("s_mul_i32 s23, s22, %d" % (2 * TPITCH))
    a("s_mul_i32 s24, s3, %d" % (S * 1024))
    a("s_add_u32 s23, s23, s24")
    a("s_add_u32 s23, s23, 0x%x" % DOFF)
    a("v_lshlrev_b32 v3, 4, v2")
    a("v_add_u32 v4, %d, v3" % TPITCH)
    a("v_lshrrev_b32 v5, 3, v2")
    a("v_and_b32 v6, 7, v2")
    a("v_lshlrev_b32 v7, 1, v5")
    a("v_and_b32 v7, 4, v7")
    a("v_xor_b32 v6, v6, v7")
    a("v_mul_u32_u24 v5, %d, v5" % PW)
    a("v_lshl_add_u32 v5, v6, 4, v5")
    a("s_lshl_b32 s24, s21, 7")
    a("v_add_u32 v5, s24, v5")
    a("s_mul_i32 s25, s3, %d" % (S * 16 * PW))
    a("s_mul_i32 s26, s3, %d" % (NS * 2048))
    a("s_waitcnt lgkmcnt(0)")
    srd(a, 8, 4, WBYTES)
    srd(a, 12, 6, WS_SIZE)
    ACC = [[16, 32], [48, 64]]
    DF = [80 + 8 * k for k in range(NS)]
    WFB = 80 + 8 * NS
    XR = WFB + 16

    a("s_and_b32 s48, s21, 3")
    a("s_lshl2_add_u32 s48, s22, s48")
    if "norot" in X:
        a("s_mov_b32 s48, 0")
    a("s_sub_u32 s49, s48, %d" % S)
    a("s_cmp_ge_u32 s48, %d" % S)
    a("s_cselect_b32 s48, s49, s48")

    def issue(st):
        sl = st % NS
        a("s_mul_i32 s27, s48, %d" % (16 * PW))
        a("s_add_u32 m0, s26, %d" % (sl * 2048))
        a("s_add_u32 s27, s27, s25")
        if "wreg" in X:
            a("buffer_load_dwordx4 v[%d:%d], v5, s[8:11], s27 offen" % (WFB + 8 * (st & 1), WFB + 8 * (st & 1) + 3))
        else:
            a("buffer_load_dwordx4 v5, s[8:11], s27 offen lds" + WH)
        a("s_add_u32 m0, s26, %d" % (sl * 2048 + 1024))
        a("s_add_u32 s27, s27, %d" % (8 * PW))
        a("s_lshl_b32 s28, s48, 10")
        if "wreg" in X:
            a("buffer_load_dwordx4 v[%d:%d], v5, s[8:11], s27 offen" % (WFB + 8 * (st & 1) + 4, WFB + 8 * (st & 1) + 7))
        else:
            a("buffer_load_dwordx4 v5, s[8:11], s27 offen lds" + WH)
        a("s_add_u32 s28, s28, s23")
        a("s_add_u32 s48, s48, 1")
        for t in range(2):
            r = DF[sl] + 4 * t
            a("buffer_load_dwordx4 v[%d:%d], v%d, s[12:15], s28 offen" % (r, r + 3, 3 + t) + DH)
        a("s_cmp_lg_u32 s48, %d" % S)
        a("s_cselect_b32 s48, s48, 0")

    if g1 and FUSED:
        a("s_mov_b32 s51, s48")
        for st in range(NS):
            a("s_mul_i32 s27, s51, %d" % (16 * PW))
            a("s_add_u32 s27, s27, s25")
            a("buffer_load_dwordx4 v[%d:%d], v5, s[8:11], s27 offen" % (DF[st], DF[st] + 3))
            a("s_add_u32 s27, s27, %d" % (8 * PW))
            a("s_add_u32 s51, s51, 1")
            a("buffer_load_dwordx4 v[%d:%d], v5, s[8:11], s27 offen" % (DF[st] + 4, DF[st] + 7))
            a("s_cmp_lg_u32 s51, %d" % S)
            a("s_cselect_b32 s51, s51, 0")
        poll_flags(a, "g1")
        a("s_waitcnt vmcnt(0)")
        a("s_barrier")
    issue(0)
    issue(1)
    srd(a, 40, 36, 3584 if g1 else 4096)
    if not g1:
        srd(a, 44, 38, 2 * MB)
    for st in range(2, NS):
        issue(st)
    a("v_lshrrev_b32 v8, 4, v2")
    a("v_and_b32 v9, 15, v2")
    a("v_lshrrev_b32 v10, 2, v9")
    a("v_and_b32 v11, 3, v9")
    a("v_lshrrev_b32 v12, 1, v8")
    a("v_lshl_add_u32 v12, v12, 3, v10")
    a("v_lshlrev_b32 v12, 7, v12")
    a("v_and_b32 v13, 1, v8")
    a("v_lshlrev_b32 v13, 1, v13")
    a("v_lshrrev_b32 v14, 1, v11")
    a("v_add_u32 v13, v13, v14")
    a("v_lshlrev_b32 v14, 1, v10")
    a("v_and_b32 v14, 4, v14")
    a("v_xor_b32 v13, v13, v14")
    a("v_lshl_add_u32 v12, v13, 4, v12")
    a("v_and_b32 v14, 1, v11")
    a("v_lshl_add_u32 v12, v14, 3, v12")
    a("v_add_u32 v12, s26, v12")
    a("v_xor_b32 v13, 64, v12")
    a("s_lshr_b32 s29, s3, 1")
    a("s_and_b32 s30, s3, 1")
    a("v_and_b32 v6, 31, v2")
    a("v_lshrrev_b32 v7, 5, v2")
    NX = 0
    if g1:
        a("s_lshl_b32 s31, s21, 7")
        a("s_lshl_b32 s32, s29, 6")
        a("s_add_u32 s31, s31, s32")
        a("v_lshlrev_b32 v14, 3, v7")
        for rq in range(4):
            a("buffer_load_dwordx2 v[%d:%d], v14, s[40:43], s31 offen offset:%d" % (XR + 2 * rq, XR + 2 * rq + 1, 16 * rq))
        NX = 4
    else:
        a("s_lshl_b32 s31, s22, 18")
        a("s_lshl_b32 s32, s21, 7")
        a("s_add_u32 s31, s31, s32")
        a("s_add_u32 s31, s31, 0x%x" % WS_AF)
        a("s_add_u32 s32, s31, 131072")
        a("v_lshrrev_b32 v14, 3, v0")
        a("v_and_b32 v15, 7, v0")
        a("v_lshlrev_b32 v15, 4, v15")
        a("v_lshl_add_u32 v15, v14, 12, v15")
        a("buffer_load_dwordx4 v[%d:%d], v15, s[12:15], s31 offen" % (XR, XR + 3))
        a("buffer_load_dwordx4 v[%d:%d], v15, s[12:15], s32 offen" % (XR + 4, XR + 7))
        a("s_lshl_b32 s33, s21, 6")
        a("s_lshl_b32 s34, s30, 5")
        a("s_add_u32 s33, s33, s34")
        a("v_add_u32 v14, s33, v6")
        a("v_lshlrev_b32 v15, 2, v14")
        a("s_mov_b32 s34, 0x%x" % WS_GT)
        a("buffer_load_dword v%d, v15, s[12:15], s34 offen" % (XR + 8))
        a("v_lshlrev_b32 v15, 1, v14")
        a("buffer_load_ushort v%d, v15, s[40:43], 0 offen" % (XR + 9))
        NX = 4
    stamp(a)

    def trreads(st):
        if "wreg" in X:
            return
        sl = st % NS
        for nu in range(2):
            for h in range(2):
                r = WFB + 8 * (st & 1) + 4 * nu + 2 * h
                a("ds_read_b64_tr_b16 v[%d:%d], v%d offset:%d" % (r, r + 1, 12 + nu, sl * 2048 + h * 512))

    def stage(st, sl, par, do_issue, wait_next, first=False):
        if wait_next is not None:
            a("s_waitcnt vmcnt(%d)" % wait_next)
            trreads2((sl + 1) % NS, par ^ 1)
            a("s_waitcnt lgkmcnt(4)")
        else:
            a("s_waitcnt lgkmcnt(0)")
        for nu in range(2):
            for t in range(2):
                wf = WFB + 8 * par + 4 * nu
                df = DF[sl] + 4 * t
                if g1:
                    acc = ACC[nu][t]
                    A_, B_ = wf, df
                else:
                    acc = ACC[t][nu]
                    A_, B_ = df, wf
                a("v_mfma_f32_32x32x16_bf16 v[%d:%d], v[%d:%d], v[%d:%d], v[%d:%d]" % (acc, acc + 15, A_, A_ + 3, B_, B_ + 3, acc, acc + 15))
        if do_issue:
            issue(sl)

    def trreads2(sl, par):
        if "wreg" in X:
            return
        for nu in range(2):
            for h in range(2):
                r = WFB + 8 * par + 4 * nu + 2 * h
                a("ds_read_b64_tr_b16 v[%d:%d], v%d offset:%d" % (r, r + 1, 12 + nu, sl * 2048 + h * 512))

    assert NS % 2 == 0
    for r in range(16, 80):
        a("v_mov_b32 v%d, 0" % r)
    NL = (S - NS) // NS
    a("s_mov_b32 s50, %d" % NL)
    a("s_waitcnt vmcnt(%d)" % (4 * (NS - 1) + NX))
    trreads2(0, 0)
    a.lab("L_g%d_loop" % which)
    for k in range(NS):
        stage(k, k, k & 1, True, 4 * (NS - 2))
    a("s_sub_u32 s50, s50, 1")
    a("s_cmp_lg_u32 s50, 0")
    a("s_cbranch_scc1 L_g%d_loop" % which)
    for st in range(NL * NS, S):
        k = st % NS
        iss = st + NS < S
        later = min(S - 1, st + NS - 1) - (st + 1)
        stage(st, k, st & 1, iss, (4 * later) if st + 1 < S else None)
        if g1 and "pf3" in X and st == S - 2:
            a("s_load_dwordx2 s[52:53], s[0:1], 96")
            a("s_lshl_b32 s56, s2, 2")
            a("s_add_u32 s56, s56, s3")
            a("s_lshl_b32 s56, s56, 13")
            a("s_waitcnt lgkmcnt(0)")
            srd(a, 52, 52, 2048 * 1792 * 2)
            for kk in range(8):
                a("buffer_load_dwordx4 v[%d:%d], v3, s[52:55], s56 offen offset:%d" % (152 + 4 * (kk & 3), 155 + 4 * (kk & 3), (kk & 3) * 1024))
                if kk == 3:
                    a("s_add_u32 s56, s56, 4096")
    stamp(a)
    F = 80
    a("s_mov_b32 s27, 0xffff0000")
    if not g1:
        a("v_lshrrev_b32 v9, 3, v0")
        a("v_mul_u32_u24 v9, %d, v9" % TP)
        a("v_and_b32 v10, 7, v0")
        a("v_lshl_add_u32 v9, v10, 4, v9")
        a("v_add_u32 v9, %d, v9" % TBASE)
        a("s_waitcnt vmcnt(0)")
        a("ds_write_b128 v9, v[%d:%d]" % (XR, XR + 3))
        a("ds_write_b128 v9, v[%d:%d] offset:%d" % (XR + 4, XR + 7, 32 * TP))
    a("s_barrier")
    a.nop(4)
    for qd in range(4):
        acc = ACC[qd >> 1][qd & 1]
        a("s_cmp_eq_u32 s3, %d" % qd)
        a("s_cbranch_scc1 L_g%d_own%d" % (which, qd))
        a("s_sub_u32 s28, s3, %d" % (qd + 1))
        a("s_and_b32 s28, s28, 3")
        a("s_add_u32 s28, s28, %d" % (qd * 3))
        a("s_lshl_b32 s28, s28, 12")
        a("v_add_u32 v8, s28, v3")
        for rq in range(4):
            a("ds_write_b128 v8, v[%d:%d] offset:%d" % (acc + 4 * rq, acc + 4 * rq + 3, rq * 1024))
        a("s_branch L_g%d_nx%d" % (which, qd))
        a.lab("L_g%d_own%d" % (which, qd))
        for k in range(8):
            a("v_pk_add_f32 v[%d:%d], v[%d:%d], 0" % (F + 2 * k, F + 2 * k + 1, acc + 2 * k, acc + 2 * k + 1))
        a.lab("L_g%d_nx%d" % (which, qd))
    a("s_mul_i32 s28, s3, %d" % (3 * 4096))
    a("v_add_u32 v8, s28, v3")
    if g1:
        a("s_lshl_b32 s32, s22, 1")
        a("s_add_u32 s32, s32, s30")
        a("s_mul_i32 s32, s32, %d" % (224 * 512))
        a("s_lshl_b32 s33, s21, 12")
        a("s_add_u32 s32, s32, s33")
        a("s_lshl_b32 s33, s29, 11")
        a("s_add_u32 s32, s32, s33")
        a("s_add_u32 s32, s32, 0x%x" % WS_GF)
        a("v_lshlrev_b32 v11, 4, v6")
        a("v_lshl_add_u32 v11, v7, 3, v11")
    else:
        a("v_lshrrev_b32 v9, 4, v2")
        a("v_and_b32 v10, 15, v2")
        a("v_lshrrev_b32 v13, 2, v10")
        a("v_lshl_add_u32 v13, v7, 2, v13")
        a("v_mul_u32_u24 v13, %d, v13" % TP)
        a("v_and_b32 v10, 3, v10")
        a("v_lshl_add_u32 v13, v10, 3, v13")
        a("v_and_b32 v9, 1, v9")
        a("v_lshl_add_u32 v13, v9, 5, v13")
        a("s_mul_i32 s32, s29, %d" % (32 * TP))
        a("s_lshl_b32 s33, s30, 6")
        a("s_add_u32 s32, s32, s33")
        a("s_add_u32 s32, s32, %d" % TBASE)
        a("v_add_u32 v13, s32, v13")
        a("v_lshlrev_b32 v14, 10, v14")
        a("v_lshl_add_u32 v14, v7, 3, v14")
        a("s_lshl_b32 s33, s22, 7")
        a("s_lshl_b32 s34, s29, 6")
        a("s_add_u32 s33, s33, s34")
    a("s_waitcnt lgkmcnt(0)")
    a("s_barrier")
    P = 96
    for rq in range(4):
        for k in range(3):
            a("ds_read_b128 v[%d:%d], v8 offset:%d" % (P + 16 * k + 4 * rq, P + 16 * k + 4 * rq + 3, k * 4096 + rq * 1024))
    if not g1:
        for rq in range(4):
            a("ds_read_b64_tr_b16 v[%d:%d], v13 offset:%d" % (16 + 2 * rq, 17 + 2 * rq, 8 * rq * TP))
        a("v_lshlrev_b32 v%d, 16, v%d" % (XR + 9, XR + 9))
        a("v_sub_f32 v%d, 1.0, v%d" % (XR + 8, XR + 8))
        bf16r(a, XR + 8)
        a("v_mov_b32 v%d, v%d" % (XR + 11, XR + 9))
        a("v_mov_b32 v%d, v%d" % (XR + 10, XR + 9))
        a("v_mov_b32 v%d, v%d" % (XR + 9, XR + 8))
    else:
        if "pf3" not in X:
            a("s_waitcnt vmcnt(0)")
        k1 = -2.0 * 0.7978845608028654 * 1.4426950408889634
        a("v_mov_b32 v16, 0x%x" % f32(k1))
        a("v_mov_b32 v17, 0x%x" % f32(k1))
        a("v_mov_b32 v18, 0x%x" % f32(k1 * 0.044715))
        a("v_mov_b32 v19, 0x%x" % f32(k1 * 0.044715))
        a("v_mov_b32 v20, 1.0")
        a("v_mov_b32 v21, 1.0")
    nrd = 12 + (0 if g1 else 4)

    def pk(op, d, x, y):
        a("v_pk_%s_f32 v[%d:%d], v[%d:%d], v[%d:%d]" % (op, d, d + 1, x, x + 1, y, y + 1))

    def rnd(base, n, tmp):
        for k in range(n // 2):
            a("v_cvt_pk_bf16_f32 v%d, v%d, v%d" % (tmp + k, base + 2 * k, base + 2 * k + 1))
        for k in range(n // 2):
            a("v_lshlrev_b32 v%d, 16, v%d" % (base + 2 * k, tmp + k))
            a("v_and_b32 v%d, s27, v%d" % (base + 2 * k + 1, tmp + k))

    for half in range(2):
        a("s_waitcnt lgkmcnt(%d)" % (nrd - 6 * (half + 1)))
        for k in range(3):
            for e in range(4):
                pk("add", F + 8 * half + 2 * e, F + 8 * half + 2 * e, P + 16 * k + 8 * half + 2 * e)
    TM = 48
    B = 32
    if g1:
        for k in range(8):
            a("v_lshlrev_b32 v%d, 16, v%d" % (B + 2 * k, XR + k))
            a("v_and_b32 v%d, s27, v%d" % (B + 2 * k + 1, XR + k))
        for e in range(8):
            pk("add", F + 2 * e, F + 2 * e, B + 2 * e)
        for e in range(8):
            pk("mul", B + 2 * e, F + 2 * e, F + 2 * e)
        for e in range(8):
            a("v_pk_fma_f32 v[%d:%d], v[%d:%d], v[18:19], v[16:17]" % (B + 2 * e, B + 2 * e + 1, B + 2 * e, B + 2 * e + 1))
        for e in range(8):
            pk("mul", B + 2 * e, B + 2 * e, F + 2 * e)
        for j in range(16):
            a("v_exp_f32 v%d, v%d" % (B + j, B + j))
        for e in range(8):
            pk("add", B + 2 * e, B + 2 * e, 20)
        for j in range(16):
            a("v_rcp_f32 v%d, v%d" % (B + j, B + j))
        a.nop(1)
        for e in range(8):
            pk("mul", F + 2 * e, F + 2 * e, B + 2 * e)
        for k in range(8):
            a("v_cvt_pk_bf16_f32 v%d, v%d, v%d" % (TM + k, F + 2 * k, F + 2 * k + 1))
        for rq in range(4):
            a("buffer_store_dwordx2 v[%d:%d], v11, s[12:15], s32 offen offset:%d" % (TM + 2 * rq, TM + 2 * rq + 1, 512 * rq))
    else:
        for e in range(8):
            pk("add", F + 2 * e, F + 2 * e, XR + 10)
        a("s_waitcnt lgkmcnt(0)")
        for k in range(8):
            a("v_lshlrev_b32 v%d, 16, v%d" % (B + 2 * k, 16 + k))
            a("v_and_b32 v%d, s27, v%d" % (B + 2 * k + 1, 16 + k))
        for e in range(8):
            a("v_pk_fma_f32 v[%d:%d], v[%d:%d], v[%d:%d], v[%d:%d]" % (F + 2 * e, F + 2 * e + 1, F + 2 * e, F + 2 * e + 1, XR + 8, XR + 9, B + 2 * e, B + 2 * e + 1))
        for k in range(8):
            a("v_cvt_pk_bf16_f32 v%d, v%d, v%d" % (TM + k, F + 2 * k, F + 2 * k + 1))
        for rq in range(4):
            a("buffer_store_dwordx2 v[%d:%d], v14, s[44:47], s33 offen offset:%d" % (TM + 2 * rq, TM + 2 * rq + 1, 16 * rq))
    stamp(a)
    dump_stamps(a, 9)
    trace_end(a, which - (1 if FUSED else 0))
    a("s_endpgm")


def kd(name, vgpr, sgpr=102):
    acc = (vgpr + 3) // 4 * 4
    return """.amdhsa_kernel %s
  .amdhsa_next_free_vgpr %d
  .amdhsa_next_free_sgpr %d
  .amdhsa_accum_offset %d
  .amdhsa_group_segment_fixed_size 0
  .amdhsa_kernarg_size 144
  .amdhsa_user_sgpr_count 2
  .amdhsa_user_sgpr_kernarg_segment_ptr 1
  .amdhsa_system_sgpr_workgroup_id_x 1
.end_amdhsa_kernel
""" % (name, vgpr, sgpr, acc)


def main(out):
    ref = open("cdna_kernels/%s.s.ref" % NAME).read()
    head = []
    for ln in ref.splitlines():
        if ln.startswith("; @launch"):
            break
        if ln.startswith("; Override") or ln.startswith("; grid=ceil"):
            continue
        head.append(ln)
    a = A()
    K1, K2, K3 = "k1_prep_kernel", "k2_gemm1_conv_kernel", "k3_gemm2_kernel"
    if not FUSED:
        head.append("; @launch kernel=%s grid=(%d,1,1) block=(256,1,1) lds=%d" % (K1, 768, K1_LDS))
    head.append("; @launch kernel=%s grid=(%d,1,1) block=(256,1,1) lds=%d" % (K2, 224 + 512, K2_LDS))
    head.append("; @launch kernel=%s grid=(%d,1,1) block=(256,1,1) lds=%d" % (K3, 256, K3_LDS))
    a.L += head
    a.L.append('.amdgcn_target "amdgcn-amd-amdhsa--gfx950"')
    a.L.append(".text")

    def start(k):
        a.L.append(".globl %s" % k)
        a.L.append(".p2align 8")
        a.L.append(".type %s,@function" % k)
        a.lab(k)

    if not FUSED:
        start(K1)
        a("s_cmp_ge_u32 s2, 768")
        a("s_cbranch_scc1 L_k1_exit")
        a("s_cmp_ge_u32 s2, 512")
        a("s_cbranch_scc1 L_k1_prep")
        gen_kgen(a, 0)
        a.lab("L_k1_exit")
        a("s_endpgm")
        a.lab("L_k1_prep")
        gen_prep(a, 512)

    start(K2)
    a("s_cmp_ge_u32 s2, %d" % (224 + 512))
    a("s_cbranch_scc1 L_k2_exit")
    a("s_cmp_lt_u32 s2, 512")
    a("s_cbranch_scc1 L_k2_conv")
    a("s_sub_u32 s2, s2, 512")
    if "noprio" not in X:
        a("s_setprio 3")
    gen_gemm(a, 1)
    a.lab("L_k2_exit")
    a("s_endpgm")
    a.lab("L_k2_conv")
    if FUSED:
        a.cur = "conv"
        trace_begin(a)
        a("s_cmp_ge_u32 s2, 256")
        a("s_cbranch_scc1 L_k2_kgen")
        gen_prep(a, 0)
        a.lab("L_k2_kgen")
        gen_kgen(a, 0)
    gen_conv(a, 0)

    start(K3)
    a("s_cmp_ge_u32 s2, 256")
    a("s_cbranch_scc1 L_k3_exit")
    gen_gemm(a, 2)
    a.lab("L_k3_exit")
    a("s_endpgm")

    a.L.append('.section .rodata,"a"')
    for k, v in ((K1, 144), (K2, 168), (K3, 176))[1 if FUSED else 0:]:
        a.L.append(".p2align 6")
        a.L.append(kd(k, v))
    open(out, "w").write("\n".join(a.L) + "\n")


if __name__ == "__main__":
    main(sys.argv[1] if len(sys.argv) > 1 else "cdna_kernels/%s.s" % NAME)
```

```python
import struct, sys, os
X = os.environ.get("GENX", "")
GX = X
FUSED = "fuse" in X
SC = " sc1" if FUSED else ""
WH = " nt" if "wnt" in X else (" sc1" if "wsc1" in X else "")
DH = " nt" if "dnt" in X else (" sc1" if "dsc1" in X else "")

NAME = "gated_mix__ssm_conv_s4__mixer_token_mlp__prompt"

MB = 1 << 20
WS_HF = 0
WS_UF = 2 * MB
WS_GF = 4 * MB
WS_AF = 6 * MB
WS_GT = 8 * MB
WS_RK = 9 * MB
WS_SIZE = 268435456

NPREP = 64
HILO = True


def f32(x):
    return struct.unpack("<I", struct.pack("<f", x))[0]


class A:
    def __init__(self):
        self.L = []
        self.cur = ""

    def __call__(self, s):
        self.L.append("    " + s)

    def lab(self, s):
        self.L.append(s + ":")

    def nop(self, n):
        while n > 0:
            k = min(n, 16)
            self("s_nop %d" % (k - 1))
            n -= k

    def c(self, s):
        self.L.append("    ; " + s)


STAMPS = [0]
def stamp(a):
    if "stamp" not in X:
        return
    k = STAMPS[0]
    a("s_memtime s[%d:%d]" % (72 + 2 * k, 73 + 2 * k))
    STAMPS[0] += 1


def dump_stamps(a, wg, off=0):
    if "stamp" not in X:
        return
    n = STAMPS[0]
    STAMPS[0] = 0
    a("s_waitcnt vmcnt(0) lgkmcnt(0)")
    a("s_memtime s[%d:%d]" % (72 + 2 * n, 73 + 2 * n))
    n += 1
    a("s_load_dwordx2 s[96:97], s[0:1], 128")
    a("s_waitcnt lgkmcnt(0)")
    a("s_mov_b32 s98, 256")
    a("s_mov_b32 s99, 0x00020000")
    a("s_mov_b64 exec, -1")
    a("v_lshrrev_b32 v1, 6, v0")
    a("s_nop 1")
    a("v_readfirstlane_b32 s95, v1")
    a("s_cmp_lg_u32 s95, 0")
    a("s_cbranch_scc1 L_nostamp%d" % len(a.L))
    lab = "L_nostamp%d" % (len(a.L) - 1)
    a("s_cmp_lg_u32 s2, %d" % wg)
    a("s_cbranch_scc1 %s" % lab)
    a("s_mov_b64 exec, 1")
    a("v_mov_b32 v1, 0")
    for k in range(n):
        a("v_mov_b32 v2, s%d" % (72 + 2 * k))
        a("buffer_store_dword v2, v1, s[96:99], 0 offen offset:%d" % (off + 4 * k))
    a.lab(lab)


def trace_begin(a):
    if "trace" not in X:
        return
    a("s_memrealtime s[88:89]")
    a("s_memtime s[90:91]")
    a("s_mov_b32 s94, s2")
    a("s_mov_b32 s86, 0")
    if a.cur == "g1":
        a("s_add_u32 s94, s94, 512")


def trace_end(a, launch):
    if "trace" not in X:
        return
    a("s_waitcnt vmcnt(0) lgkmcnt(0)")
    a("s_memrealtime s[92:93]")
    if FUSED:
        a("s_mov_b32 s84, s86")
    else:
        a("s_memtime s[84:85]")
    a("s_load_dwordx2 s[96:97], s[0:1], 136")
    a("s_waitcnt lgkmcnt(0)")
    a("s_mov_b32 s98, 0x%x" % WS_SIZE)
    a("s_mov_b32 s99, 0x00020000")
    a("s_mov_b64 exec, -1")
    a("v_lshrrev_b32 v1, 6, v0")
    a("s_nop 1")
    a("v_readfirstlane_b32 s95, v1")
    a("s_cmp_lg_u32 s95, 0")
    a("s_cbranch_scc1 L_notr%d" % len(a.L))
    lab = "L_notr%d" % (len(a.L) - 1)
    a("s_lshl_b32 s94, s94, 4")
    a("s_add_u32 s94, s94, 0x%x" % (64 * MB + launch * 65536))
    a("s_mov_b64 exec, 1")
    a("v_mov_b32 v1, 0")
    a("v_mov_b32 v4, s88")
    a("v_mov_b32 v5, s92")
    if "hwid" in X:
        a("s_getreg_b32 s90, hwreg(HW_REG_HW_ID)")
        a("s_getreg_b32 s84, hwreg(HW_REG_XCC_ID)")
    a("v_mov_b32 v6, s90")
    a("v_mov_b32 v7, s84")
    a("buffer_store_dwordx4 v[4:7], v1, s[96:99], s94 offen")
    a.lab(lab)


def poll_flags(a, tag, sreg=72):
    a("s_cmp_lg_u32 s3, 0")
    a("s_cbranch_scc1 L_pf_done_%s" % tag)
    a("s_load_dwordx2 s[%d:%d], s[0:1], 128" % (sreg, sreg + 1))
    a("v_lshlrev_b32 v72, 2, v2")
    a("s_mov_b32 s%d, 4" % (sreg + 4))
    a("s_mov_b32 s%d, 0x40000" % (sreg + 5))
    a("s_waitcnt lgkmcnt(0)")
    a("s_mov_b32 s%d, 256" % (sreg + 2))
    a("s_mov_b32 s%d, 0x00020000" % (sreg + 3))
    a.lab("L_pf_loop_%s" % tag)
    a("buffer_load_dword v73, v72, s[%d:%d], 0 offen sc1" % (sreg, sreg + 3))
    a("s_waitcnt vmcnt(0)")
    a("v_cmp_ne_u32 vcc, s%d, v73" % (sreg + 4))
    a("s_nop 4")
    a("s_cbranch_vccz L_pf_done_%s" % tag)
    a("s_sleep %d" % (64 if "slow" in X else 4))
    a("s_sub_u32 s%d, s%d, 1" % (sreg + 5, sreg + 5))
    a("s_cmp_lg_u32 s%d, 0" % (sreg + 5))
    a("s_cbranch_scc1 L_pf_loop_%s" % tag)
    a.lab("L_pf_done_%s" % tag)
    if "trace" in X:
        a("s_memrealtime s[90:91]")
        a("s_waitcnt lgkmcnt(0)")


def srd(a, d, base, nbytes, off=0):
    if off:
        a("s_add_u32 s%d, s%d, 0x%x" % (d, base, off))
        a("s_addc_u32 s%d, s%d, 0" % (d + 1, base + 1))
    else:
        a("s_mov_b32 s%d, s%d" % (d, base))
        a("s_mov_b32 s%d, s%d" % (d + 1, base + 1))
    a("s_mov_b32 s%d, 0x%x" % (d + 2, nbytes))
    a("s_mov_b32 s%d, 0x00020000" % (d + 3))


def bf16r(a, v):
    a("v_cvt_pk_bf16_f32 v%d, v%d, v%d" % (v, v, v))
    a("v_lshlrev_b32 v%d, 16, v%d" % (v, v))


def wave_reduce(a, regs):
    assert len(regs) >= 3
    steps = ["quad_perm:[1,0,3,2] row_mask:0xf bank_mask:0xf",
             "quad_perm:[2,3,0,1] row_mask:0xf bank_mask:0xf",
             "row_half_mirror row_mask:0xf bank_mask:0xf",
             "row_mirror row_mask:0xf bank_mask:0xf",
             "row_bcast:15 row_mask:0xa bank_mask:0xf",
             "row_bcast:31 row_mask:0xc bank_mask:0xf"]
    a.nop(2)
    for st in steps:
        for r in regs:
            a("v_add_f32_dpp v%d, v%d, v%d %s" % (r, r, r, st))
    a.nop(1)


RP = 1024 + 64
UTP = 128 + 64
TBP = 528
XT = 0
YT = 41 * TBP
KT = 45056 if FUSED else 82 * TBP
K1_LDS = KT + 2576
DSTEPS = ["quad_perm:[1,0,3,2] row_mask:0xf bank_mask:0xf",
          "quad_perm:[2,3,0,1] row_mask:0xf bank_mask:0xf",
          "row_half_mirror row_mask:0xf bank_mask:0xf",
          "row_mirror row_mask:0xf bank_mask:0xf",
          "row_bcast:15 row_mask:0xa bank_mask:0xf",
          "row_bcast:31 row_mask:0xc bank_mask:0xf"]


def prep_row(R, SR):
    a = A()
    XV, T, M = R + 8, R + 16, R + 24
    GW = 24
    for q in range(4):
        a("v_lshlrev_b32 v%d, 16, v%d" % (XV + 2 * q, R + q))
        a("v_and_b32 v%d, s27, v%d" % (XV + 2 * q + 1, R + q))
    for q in range(4):
        a("v_pk_mul_f32 v[%d:%d], v[%d:%d], v[%d:%d]" % (T + 2 * q, T + 2 * q + 1, XV + 2 * q, XV + 2 * q + 1, GW + 2 * q, GW + 2 * q + 1))
    a("v_pk_add_f32 v[%d:%d], v[%d:%d], v[%d:%d]" % (M, M + 1, XV, XV + 1, XV + 2, XV + 3))
    a("v_pk_add_f32 v[%d:%d], v[%d:%d], v[%d:%d]" % (M + 2, M + 3, XV + 4, XV + 5, XV + 6, XV + 7))
    for q in range(4):
        a("v_cvt_pk_bf16_f32 v%d, v%d, v%d" % (M + 4 + q, T + 2 * q, T + 2 * q + 1))
    a("v_pk_add_f32 v[%d:%d], v[%d:%d], v[%d:%d]" % (M, M + 1, M, M + 1, M + 2, M + 3))
    for q in range(4):
        a("v_lshlrev_b32 v%d, 16, v%d" % (T + 2 * q, M + 4 + q))
        a("v_and_b32 v%d, s27, v%d" % (T + 2 * q + 1, M + 4 + q))
    a("v_add_f32 v%d, v%d, v%d" % (M, M, M + 1))
    a("v_pk_add_f32 v[%d:%d], v[%d:%d], v[%d:%d]" % (M + 2, M + 3, T, T + 1, T + 2, T + 3))
    a("v_pk_add_f32 v[%d:%d], v[%d:%d], v[%d:%d]" % (M + 4, M + 5, T + 4, T + 5, T + 6, T + 7))
    a("v_pk_add_f32 v[%d:%d], v[%d:%d], v[%d:%d]" % (M + 2, M + 3, M + 2, M + 3, M + 4, M + 5))
    a("v_add_f32 v%d, v%d, v%d" % (M + 1, M + 2, M + 3))
    a.nop(1)
    for st in DSTEPS:
        a("v_add_f32_dpp v%d, v%d, v%d %s" % (M, M, M, st))
        a("v_add_f32_dpp v%d, v%d, v%d %s" % (M + 1, M + 1, M + 1, st))
        a.nop(1)
    a("v_readlane_b32 s%d, v%d, 63" % (SR, M))
    a("v_readlane_b32 s%d, v%d, 63" % (SR + 1, M + 1))
    a.nop(2)
    G = M + 10
    a("v_mul_f32 v%d, s%d, v60" % (M + 2, SR))
    a("v_mul_f32 v%d, s%d, v60" % (M + 3, SR))
    a("v_mov_b32 v%d, s%d" % (G, SR + 1))
    for q in range(4):
        a("v_pk_add_f32 v[%d:%d], v[%d:%d], v[%d:%d] neg_lo:[0,1] neg_hi:[0,1]" % (T + 2 * q, T + 2 * q + 1, XV + 2 * q, XV + 2 * q + 1, M + 2, M + 3))
    a("v_pk_mul_f32 v[%d:%d], v[%d:%d], v[%d:%d]" % (M + 4, M + 5, T, T + 1, T, T + 1))
    a("v_pk_mul_f32 v[%d:%d], v[%d:%d], v[%d:%d]" % (M + 6, M + 7, T + 2, T + 3, T + 2, T + 3))
    a("v_pk_fma_f32 v[%d:%d], v[%d:%d], v[%d:%d], v[%d:%d]" % (M + 4, M + 5, T + 4, T + 5, T + 4, T + 5, M + 4, M + 5))
    a("v_pk_fma_f32 v[%d:%d], v[%d:%d], v[%d:%d], v[%d:%d]" % (M + 6, M + 7, T + 6, T + 7, T + 6, T + 7, M + 6, M + 7))
    bf16r(a, G)
    a("v_pk_add_f32 v[%d:%d], v[%d:%d], v[%d:%d]" % (M + 4, M + 5, M + 4, M + 5, M + 6, M + 7))
    a("v_mul_f32 v%d, 0x%x, v%d" % (G, f32(-1.4426950408889634), G))
    a("v_add_f32 v%d, v%d, v%d" % (M + 4, M + 4, M + 5))
    a("v_exp_f32 v%d, v%d" % (G, G))
    bf16r(a, M + 2)
    for k, st in enumerate(DSTEPS):
        a("v_add_f32_dpp v%d, v%d, v%d %s" % (M + 4, M + 4, M + 4, st))
        if k == 0:
            a("v_add_f32 v%d, 1.0, v%d" % (G, G))
            a("v_mov_b32 v%d, v%d" % (M + 3, M + 2))
        elif k == 1:
            a("v_rcp_f32 v%d, v%d" % (G, G))
            a.nop(1)
        else:
            a.nop(2)
    a("v_readlane_b32 s%d, v%d, 63" % (SR + 2, M + 4))
    for q in range(4):
        a("v_pk_add_f32 v[%d:%d], v[%d:%d], v[%d:%d] neg_lo:[0,1] neg_hi:[0,1]" % (XV + 2 * q, XV + 2 * q + 1, XV + 2 * q, XV + 2 * q + 1, M + 2, M + 3))
    a("v_mul_f32 v%d, s%d, v60" % (M + 4, SR + 2))
    for q in range(4):
        a("v_cvt_pk_bf16_f32 v%d, v%d, v%d" % (T + q, XV + 2 * q, XV + 2 * q + 1))
    bf16r(a, M + 4)
    bf16r(a, G)
    a("v_add_f32 v%d, v%d, v61" % (M + 4, M + 4))
    for q in range(4):
        a("v_lshlrev_b32 v%d, 16, v%d" % (XV + 2 * q, T + q))
        a("v_and_b32 v%d, s27, v%d" % (XV + 2 * q + 1, T + q))
    bf16r(a, M + 4)
    a("v_sqrt_f32 v%d, v%d" % (M + 4, M + 4))
    a.nop(1)
    bf16r(a, M + 4)
    a("v_rcp_f32 v%d, v%d" % (M + 4, M + 4))
    a.nop(1)
    a("v_mov_b32 v%d, v%d" % (M + 5, M + 4))
    for q in range(4):
        a("v_pk_mul_f32 v[%d:%d], v[%d:%d], v[%d:%d]" % (XV + 2 * q, XV + 2 * q + 1, XV + 2 * q, XV + 2 * q + 1, M + 4, M + 5))
    for q in range(4):
        a("v_cvt_pk_bf16_f32 v%d, v%d, v%d" % (T + q, XV + 2 * q, XV + 2 * q + 1))
    return a.L, T, G


def gen_prep(a, first_wg):
    a.c("---- prep role: wave handles 2 rows, WG = 8 rows")
    a.cur = "prep"
    if not FUSED:
        trace_begin(a)
    stamp(a)
    if first_wg:
        a("s_sub_u32 s2, s2, %d" % first_wg)
    a("s_load_dwordx2 s[4:5], s[0:1], 0")
    a("s_load_dwordx2 s[6:7], s[0:1], 112")
    a("s_load_dwordx2 s[8:9], s[0:1], 136")
    a("v_lshrrev_b32 v1, 6, v0")
    a("v_and_b32 v2, 63, v0")
    a("v_readfirstlane_b32 s3, v1")
    a("v_lshlrev_b32 v3, 4, v2")
    a("s_lshl_b32 s24, s2, 3")
    a("s_lshl_b32 s25, s3, 1")
    a("s_add_u32 s24, s24, s25")
    a("s_lshl_b32 s25, s24, 10")
    a("s_mov_b32 s27, 0xffff0000")
    a("s_waitcnt lgkmcnt(0)")
    srd(a, 12, 4, 2 * MB)
    srd(a, 16, 6, 1024)
    R0, R1 = 64, 104
    a("buffer_load_dwordx4 v[%d:%d], v3, s[12:15], s25 offen" % (R0, R0 + 3))
    a("buffer_load_dwordx4 v[%d:%d], v3, s[12:15], s25 offen offset:1024" % (R1, R1 + 3))
    a("buffer_load_dwordx4 v[12:15], v3, s[16:19], 0 offen")
    a("s_lshr_b32 s40, s2, 3")
    a("s_and_b32 s41, s2, 7")
    a("s_lshl_b32 s42, s40, 16")
    a("s_lshl_b32 s43, s41, 7")
    a("s_add_u32 s42, s42, s43")
    a("v_lshrrev_b32 v44, 3, v0")
    a("v_and_b32 v45, 7, v0")
    a("v_lshlrev_b32 v43, 10, v44")
    a("v_lshl_add_u32 v43, v45, 4, v43")
    a("buffer_load_dwordx4 v[32:35], v43, s[12:15], s42 offen")
    a("s_add_u32 s43, s42, 32768")
    a("buffer_load_dwordx4 v[36:39], v43, s[12:15], s43 offen")
    a("v_mul_u32_u24 v40, %d, v44" % UTP)
    a("v_lshl_add_u32 v40, v45, 4, v40")
    a("v_and_b32 v44, 15, v2")
    a("v_lshrrev_b32 v41, 2, v44")
    a("s_lshl_b32 s44, s3, 4")
    a("v_add_u32 v41, s44, v41")
    a("v_mul_u32_u24 v41, %d, v41" % UTP)
    a("v_and_b32 v44, 3, v44")
    a("v_lshl_add_u32 v41, v44, 3, v41")
    a("v_lshrrev_b32 v44, 4, v2")
    a("v_lshl_add_u32 v41, v44, 5, v41")
    a("v_lshlrev_b32 v42, 12, v2")
    a("s_lshl_b32 s44, s41, 18")
    a("s_lshl_b32 s45, s40, 7")
    a("s_add_u32 s44, s44, s45")
    a("s_lshl_b32 s45, s3, 5")
    a("s_add_u32 s44, s44, s45")
    a("s_add_u32 s44, s44, 0x%x" % WS_UF)
    srd(a, 20, 8, WS_SIZE)
    a("s_mul_i32 s26, s3, %d" % (2 * RP))
    a("v_add_u32 v4, s26, v3")
    a("v_and_b32 v5, 15, v2")
    a("v_lshrrev_b32 v6, 2, v5")
    a("v_mul_u32_u24 v6, %d, v6" % RP)
    a("v_and_b32 v5, 3, v5")
    a("v_lshl_add_u32 v6, v5, 3, v6")
    a("v_lshrrev_b32 v5, 4, v2")
    a("v_lshl_add_u32 v6, v5, 5, v6")
    a("s_lshl_b32 s26, s3, 8")
    a("v_add_u32 v6, s26, v6")
    a("v_lshrrev_b32 v7, 5, v2")
    a("s_lshl_b32 s26, s3, 2")
    a("v_add_u32 v7, s26, v7")
    a("v_lshlrev_b32 v7, 17, v7")
    a("v_and_b32 v5, 31, v2")
    a("v_lshl_add_u32 v7, v5, 4, v7")
    a("s_lshl_b32 s28, s2, 9")
    a("s_add_u32 s29, s28, %d" % (2 * 131072))
    a("v_mov_b32 v60, 0x%x" % f32(1.0 / 512))
    a("v_mov_b32 v61, 0x%x" % f32(1e-5))
    a("s_lshl_b32 s30, s24, 2")
    a("s_add_u32 s30, s30, 0x%x" % WS_GT)
    a("v_mov_b32 v8, 0")
    a("s_waitcnt vmcnt(2)")
    stamp(a)
    for q in range(4):
        a("v_lshlrev_b32 v%d, 16, v%d" % (24 + 2 * q, 12 + q))
        a("v_and_b32 v%d, s27, v%d" % (25 + 2 * q, 12 + q))
    L0, T0, G0 = prep_row(R0, 32)
    L1, T1, G1 = prep_row(R1, 36)
    for x, y in zip(L0, L1):
        if "s_nop 0" in x:
            continue
        if "s_nop 1" in x:
            a("s_nop 0")
            continue
        a.L.append(x)
        a.L.append(y)
    a("s_waitcnt vmcnt(0)")
    a("ds_write_b128 v40, v[32:35] offset:%d" % (8 * RP))
    a("ds_write_b128 v40, v[36:39] offset:%d" % (8 * RP + 32 * UTP))
    a("ds_write_b128 v4, v[%d:%d]" % (T0, T0 + 3))
    a("ds_write_b128 v4, v[%d:%d] offset:%d" % (T1, T1 + 3, RP))
    GL = 8 * RP + 64 * UTP
    a("s_lshl_b32 s31, s3, 3")
    a("v_mov_b32 v9, s31")
    a("s_mov_b64 exec, 1")
    a("ds_write2_b32 v9, v%d, v%d offset0:%d offset1:%d" % (G0, G1, 0, 1) if False else "v_add_u32 v9, %d, v9" % GL)
    a("ds_write2_b32 v9, v%d, v%d offset0:0 offset1:1" % (G0, G1))
    a("s_mov_b64 exec, -1")
    a("s_waitcnt lgkmcnt(0)")
    a("s_barrier")
    stamp(a)
    for p in range(2):
        a("ds_read_b64_tr_b16 v[%d:%d], v6 offset:%d" % (8 + 4 * p, 9 + 4 * p, 128 * p))
        a("ds_read_b64_tr_b16 v[%d:%d], v6 offset:%d" % (10 + 4 * p, 11 + 4 * p, 4 * RP + 128 * p))
    for p in range(2):
        for h in range(2):
            a("ds_read_b64_tr_b16 v[%d:%d], v41 offset:%d" % (32 + 4 * p + 2 * h, 33 + 4 * p + 2 * h, 8 * RP + (8 * p + 4 * h) * UTP))
    a("s_waitcnt lgkmcnt(6)")
    a("buffer_store_dwordx4 v[8:11], v7, s[20:23], s28 offen" + SC)
    a("s_waitcnt lgkmcnt(4)")
    a("buffer_store_dwordx4 v[12:15], v7, s[20:23], s29 offen" + SC)
    a("v_mul_u32_u24 v42, 144, v2")
    a("s_lshl_b32 s45, s3, 5")
    a("v_add_u32 v42, s45, v42")
    a("s_waitcnt lgkmcnt(0)")
    a("ds_write_b128 v42, v[32:35] offset:%d" % (GL + 64))
    a("ds_write_b128 v42, v[36:39] offset:%d" % (GL + 64 + 16))
    a("v_lshrrev_b32 v44, 3, v0")
    a("v_and_b32 v45, 7, v0")
    a("v_mul_u32_u24 v42, 144, v44")
    a("v_lshl_add_u32 v42, v45, 4, v42")
    a("v_lshlrev_b32 v43, 12, v44")
    a("v_lshl_add_u32 v43, v45, 4, v43")
    a("s_lshl_b32 s44, s41, 18")
    a("s_lshl_b32 s45, s40, 7")
    a("s_add_u32 s44, s44, s45")
    a("s_add_u32 s44, s44, 0x%x" % WS_UF)
    a("s_add_u32 s45, s44, %d" % (32 * 4096))
    a("v_lshlrev_b32 v9, 2, v2")
    a("s_lshl_b32 s30, s2, 5")
    a("s_add_u32 s30, s30, 0x%x" % WS_GT)
    a("s_waitcnt lgkmcnt(0)")
    a("s_barrier")
    a("ds_read_b128 v[32:35], v42 offset:%d" % (GL + 64))
    a("ds_read_b128 v[36:39], v42 offset:%d" % (GL + 64 + 32 * 144))
    a("ds_read_b32 v10, v9 offset:%d" % GL)
    a("s_waitcnt lgkmcnt(2)")
    a("buffer_store_dwordx4 v[32:35], v43, s[20:23], s44 offen" + SC)
    a("s_waitcnt lgkmcnt(1)")
    a("buffer_store_dwordx4 v[36:39], v43, s[20:23], s45 offen" + SC)
    a("s_waitcnt lgkmcnt(0)")
    a("s_cmp_lg_u32 s3, 0")
    a("s_cbranch_scc1 L_prep_nog")
    a("s_mov_b64 exec, 0xff")
    a("buffer_store_dword v10, v9, s[20:23], s30 offen" + SC)
    a("s_mov_b64 exec, -1")
    a.lab("L_prep_nog")
    if FUSED:
        a("s_load_dwordx2 s[40:41], s[0:1], 128")
        a("s_waitcnt vmcnt(0) lgkmcnt(0)")
        a("s_barrier")
        a("s_mov_b32 s42, 256")
        a("s_mov_b32 s43, 0x00020000")
        a("s_cmp_lg_u32 s3, 0")
        a("s_cbranch_scc1 L_prep_noflag")
        a("v_mov_b32 v9, 1")
        a("v_mov_b32 v8, 0")
        a("s_mov_b64 exec, 1")
        a("s_and_b32 s44, s2, 63")
        a("s_lshl_b32 s44, s44, 2")
        a("buffer_atomic_add v9, v8, s[40:43], s44 offen sc1")
        a("s_mov_b64 exec, -1")
        a.lab("L_prep_noflag")
        if "trace" in X:
            a("s_memrealtime s[86:87]")
            a("s_waitcnt lgkmcnt(0)")
        return
    stamp(a)
    dump_stamps(a, 5)
    trace_end(a, 0)
    a("s_endpgm")


def gen_utr(a, first_wg):
    a.c("---- U transposer role: tile 64 s x 64 d -> UT[d][s]")
    a.cur = "utr"
    trace_begin(a)
    a("s_sub_u32 s2, s2, %d" % first_wg)
    a("s_load_dwordx2 s[4:5], s[0:1], 0")
    a("s_load_dwordx2 s[8:9], s[0:1], 136")
    a("v_lshrrev_b32 v1, 6, v0")
    a("v_and_b32 v2, 63, v0")
    a("v_readfirstlane_b32 s3, v1")
    a("s_lshr_b32 s20, s2, 3")
    a("s_and_b32 s21, s2, 7")
    a("s_lshl_b32 s22, s20, 16")
    a("s_lshl_b32 s23, s21, 7")
    a("s_add_u32 s22, s22, s23")
    a("v_lshrrev_b32 v3, 3, v0")
    a("v_and_b32 v4, 7, v0")
    a("v_lshlrev_b32 v5, 10, v3")
    a("v_lshl_add_u32 v5, v4, 4, v5")
    a("v_mul_u32_u24 v6, %d, v3" % UTP)
    a("v_lshl_add_u32 v6, v4, 4, v6")
    a("s_waitcnt lgkmcnt(0)")
    srd(a, 12, 4, 2 * MB)
    a("buffer_load_dwordx4 v[8:11], v5, s[12:15], s22 offen")
    a("s_add_u32 s23, s22, 32768")
    a("buffer_load_dwordx4 v[12:15], v5, s[12:15], s23 offen")
    srd(a, 16, 8, WS_SIZE)
    a("v_and_b32 v3, 15, v2")
    a("v_lshrrev_b32 v4, 2, v3")
    a("s_lshl_b32 s24, s3, 4")
    a("v_add_u32 v4, s24, v4")
    a("v_mul_u32_u24 v4, %d, v4" % UTP)
    a("v_and_b32 v3, 3, v3")
    a("v_lshl_add_u32 v4, v3, 3, v4")
    a("v_lshrrev_b32 v3, 4, v2")
    a("v_lshl_add_u32 v4, v3, 5, v4")
    a("v_lshlrev_b32 v7, 12, v2")
    a("s_lshl_b32 s24, s21, 18")
    a("s_lshl_b32 s25, s20, 7")
    a("s_add_u32 s24, s24, s25")
    a("s_lshl_b32 s25, s3, 5")
    a("s_add_u32 s24, s24, s25")
    a("s_add_u32 s24, s24, 0x%x" % WS_UF)
    a("s_waitcnt vmcnt(1)")
    a("ds_write_b128 v6, v[8:11]")
    a("s_waitcnt vmcnt(0)")
    a("ds_write_b128 v6, v[12:15] offset:%d" % (32 * UTP))
    a("s_waitcnt lgkmcnt(0)")
    a("s_barrier")
    for p in range(2):
        for h in range(2):
            a("ds_read_b64_tr_b16 v[%d:%d], v4 offset:%d" % (8 + 4 * p + 2 * h, 9 + 4 * p + 2 * h, (8 * p + 4 * h) * UTP))
    a("s_waitcnt lgkmcnt(2)")
    a("buffer_store_dwordx4 v[8:11], v7, s[16:19], s24 offen")
    a("s_waitcnt lgkmcnt(0)")
    a("buffer_store_dwordx4 v[12:15], v7, s[16:19], s24 offen offset:16")
    trace_end(a, 0)
    a("s_endpgm")


def gen_kgen(a, first_wg):
    a.c("---- kgen role: one channel per workgroup")
    a.cur = "kgen"
    if not FUSED:
        trace_begin(a)
    stamp(a)
    if first_wg:
        a("s_sub_u32 s2, s2, %d" % first_wg)
    a("s_load_dwordx4 s[28:31], s[0:1], 8")
    a("s_load_dwordx4 s[32:35], s[0:1], 24")
    a("s_load_dwordx4 s[36:39], s[0:1], 40")
    a("s_load_dwordx2 s[40:41], s[0:1], 56")
    a("s_load_dwordx2 s[4:5], s[0:1], 136")
    a("s_load_dwordx2 s[6:7], s[0:1], 80")
    a("v_lshrrev_b32 v1, 6, v0")
    a("v_and_b32 v2, 63, v0")
    a("v_readfirstlane_b32 s3, v1")
    a("v_and_b32 v3, 127, v0")
    a("v_lshlrev_b32 v4, 1, v3")
    a("s_lshl_b32 s20, s2, 8")
    a("s_lshl_b32 s25, s2, 1")
    a("v_mov_b32 v6, 0")
    a("s_waitcnt lgkmcnt(0)")
    for k in range(6):
        srd(a, 44 + 4 * k, 28 + 2 * k, 131072)
        a("buffer_load_ushort v%d, v4, s[%d:%d], s20 offen" % (10 + k, 44 + 4 * k, 47 + 4 * k))
    srd(a, 12, 40, 1024)
    a("buffer_load_ushort v16, v6, s[12:15], s25 offen")
    if "pf1" in X:
        srd(a, 68, 6, 2048 * 1792 * 2)
        a("s_lshl_b32 s26, s2, 14")
        a("v_lshlrev_b32 v5, 4, v0")
        for k in range(4):
            a("buffer_load_dwordx4 v[%d:%d], v5, s[68:71], s26 offen" % (128 + 4 * k, 131 + 4 * k))
            if k < 3:
                a("s_add_u32 s26, s26, 4096")
    srd(a, 8, 4, WS_SIZE)
    a("s_cmp_ge_u32 s3, 2")
    a("s_cselect_b32 s26, %d, %d" % (XT, YT))
    a("s_cselect_b32 s27, 0x%x, 0x%x" % (f32(16.0), f32(1.0)))
    a("s_cselect_b32 s36, 0x%x, 0x%x" % (f32(0.15915494309189535), f32(-0.15915494309189535)))
    a("v_lshlrev_b32 v8, 2, v3")
    a("v_add_u32 v8, s26, v8")
    a("v_lshlrev_b32 v28, 3, v0")
    a("v_sub_u32 v28, 2047, v28")
    a("s_mov_b32 s28, 0xffff")
    a("s_mov_b32 s29, %d" % (0x4300 - 128))
    for j in range(8):
        a("v_subrev_u32 v%d, %d, v28" % (48 + j, j))
        a("v_cvt_f32_u32 v%d, v%d" % (56 + j, 48 + j))
    for j in range(0, 8, 2):
        a("v_cvt_pk_bf16_f32 v%d, v%d, v%d" % (56 + j, 56 + j, 57 + j))
    for j in range(0, 8, 2):
        a("v_lshrrev_b32 v%d, 16, v%d" % (57 + j, 56 + j))
        a("v_and_b32 v%d, s28, v%d" % (56 + j, 56 + j))
    for j in range(8):
        a("v_subrev_u32 v%d, s29, v%d" % (56 + j, 56 + j))
    for j in range(8):
        a("v_min_u32 v%d, 0x80, v%d" % (48 + j, 48 + j))
    for j in range(8):
        a("v_max_i32 v%d, v%d, v%d" % (56 + j, 56 + j, 48 + j))
    for j in range(8):
        a("v_lshlrev_b32 v%d, 2, v%d" % (56 + j, 56 + j))
    a("v_and_b32 v9, 15, v2")
    a("v_lshrrev_b32 v17, 4, v2")
    a("s_lshl_b32 s26, s3, 3")
    a("s_add_u32 s26, s26, 8")
    a("s_cmp_eq_u32 s3, 0")
    a("s_cselect_b32 s26, 0, s26")
    a("v_add_u32 v18, s26, v9")
    a("v_mul_u32_u24 v18, %d, v18" % TBP)
    a("v_lshl_add_u32 v18, v17, 4, v18")
    a("v_lshlrev_b32 v19, s3, v9")
    a("v_or_b32 v29, 8, v19")
    a("v_ffbh_u32 v29, v29")
    a("v_sub_u32 v29, 28, v29")
    a("v_lshrrev_b32 v19, v29, v19")
    a("v_lshl_add_u32 v19, v29, 3, v19")
    a("v_mul_u32_u24 v19, %d, v19" % TBP)
    a("v_lshl_add_u32 v19, v17, 4, v19")
    a("s_waitcnt vmcnt(%d)" % (4 if "pf1" in X else 0))
    for k in range(7):
        a("v_lshlrev_b32 v%d, 16, v%d" % (10 + k, 10 + k))
    a("v_mul_f32 v16, 0x%x, v16" % f32(1.4426950408889634))
    a("v_exp_f32 v16, v16")
    a.nop(1)
    bf16r(a, 16)
    a("v_mul_f32 v20, v16, v10")
    a("v_mul_f32 v21, v16, v11")
    a("v_mul_f32 v12, v16, v12")
    a("v_mul_f32 v13, v16, v13")
    a("v_mul_f32 v20, 0x%x, v20" % f32(1.4426950408889634))
    a("v_mul_f32 v21, s36, v21")
    a("v_mul_f32 v20, s27, v20")
    a("v_mul_f32 v21, s27, v21")
    a("v_mul_f32 v22, v14, v12")
    a("v_mul_f32 v23, v14, v13")
    a("v_fract_f32 v21, v21")
    a("v_exp_f32 v20, v20")
    a("v_fma_f32 v22, -v15, v13, v22")
    a("v_fma_f32 v23, v15, v12, v23")
    a("v_cos_f32 v24, v21")
    a("v_sin_f32 v25, v21")
    a("v_mov_b32 v26, 1.0")
    a("v_mov_b32 v27, 0")
    a("v_mul_f32 v24, v20, v24")
    a("v_mul_f32 v25, v20, v25")
    a("s_cmp_ge_u32 s3, 2")
    a("s_cbranch_scc0 L_kg_y")
    a("v_mov_b32 v26, v22")
    a("v_mov_b32 v27, v23")
    a.lab("L_kg_y")

    def cmul(dst, x, w):
        a("v_pk_mul_f32 v[30:31], v[%d:%d], v[%d:%d] op_sel:[0,0] op_sel_hi:[1,0]" % (x, x + 1, w, w + 1))
        a("v_pk_fma_f32 v[%d:%d], v[%d:%d], v[%d:%d], v[30:31] op_sel:[1,1,0] op_sel_hi:[0,1,1] neg_lo:[1,0,0]" %
          (dst, dst + 1, x, x + 1, w, w + 1))

    W = [24, 32, 34, 36]
    for k in range(1, 4):
        cmul(W[k], W[k - 1], W[k - 1])
    if "k1slow" in X:
        a("v_mov_b32 v38, v26")
        a("v_mov_b32 v39, v27")
        a("s_mov_b32 s21, 200")
        a.lab("L_slow")
        cmul(38, 38, 24)
        cmul(38, 38, 24)
        a("s_sub_u32 s21, s21, 1")
        a("s_cmp_lg_u32 s21, 0")
        a("s_cbranch_scc1 L_slow")
    for row in range(41):
        a("v_cvt_pk_bf16_f32 v%d, v26, v27" % (40 + (row & 3)))
        if row < 40:
            cmul(26, 26, W[0] if row < 16 else (W[1] if row < 24 else (W[2] if row < 32 else W[3])))
        if row & 1:
            a("ds_write2_b32 v8, v%d, v%d offset0:%d offset1:%d" % (40 + ((row - 1) & 3), 40 + (row & 3), 0, TBP // 4))
            if row < 40:
                a("v_add_u32 v8, %d, v8" % (2 * TBP))
        elif row == 40:
            a("ds_write_b32 v8, v%d" % (40 + (row & 3)))
    a("s_waitcnt lgkmcnt(0)")
    a("s_barrier")
    stamp(a)
    for kap in range(8):
        a("ds_read_b128 v[%d:%d], v18 offset:%d" % (64 + 8 * kap, 67 + 8 * kap, XT + 64 * kap))
        a("ds_read_b128 v[%d:%d], v19 offset:%d" % (68 + 8 * kap, 71 + 8 * kap, YT + 64 * kap))
    a("s_lshl_b32 s26, s3, 7")
    a("s_add_u32 s26, s26, 128")
    a("s_cmp_eq_u32 s3, 0")
    a("s_cselect_b32 s26, 0, s26")
    a("s_mov_b32 s27, 128")
    a("s_cselect_b32 s27, 256, s27")
    a("s_cmp_eq_u32 s3, 3")
    a("s_cselect_b32 s27, 129, s27")
    a("v_lshl_add_u32 v13, v17, 6, v9")
    a("v_add_u32 v15, s26, v13")
    a("v_lshlrev_b32 v15, 2, v15")
    for kap in range(8):
        a("s_waitcnt lgkmcnt(%d)" % (14 - 2 * kap))
        c0 = "0" if kap == 0 else "v[44:47]"
        a("v_mfma_f32_16x16x32_bf16 v[44:47], v[%d:%d], v[%d:%d], %s" % (64 + 8 * kap, 67 + 8 * kap, 68 + 8 * kap, 71 + 8 * kap, c0))
    a("s_lshl_b32 s22, s2, 12")
    a("s_add_u32 s22, s22, 0x%x" % WS_RK)
    a("v_lshlrev_b32 v3, 4, v0")
    a.nop(5)
    for reg in range(4):
        a("v_add_u32 v14, %d, v13" % (16 * reg))
        a("v_cmp_gt_u32 vcc, s27, v14")
        a("s_and_saveexec_b64 s[30:31], vcc")
        a("ds_write_b32 v15, v%d offset:%d" % (44 + reg, KT + 64 * reg))
        a("s_mov_b64 exec, s[30:31]")
    if FUSED:
        poll_flags(a, "cv")
    a("s_waitcnt lgkmcnt(0)")
    a("s_barrier")
    stamp(a)
    if FUSED:
        return
    for j in range(8):
        a("ds_read_b32 v%d, v%d offset:%d" % (64 + j, 56 + j, KT))
    a("s_waitcnt lgkmcnt(0)")
    for q in range(4):
        a("v_cvt_pk_bf16_f32 v%d, v%d, v%d" % (8 + q, 64 + 2 * q, 65 + 2 * q))
    a("buffer_store_dwordx4 v[8:11], v3, s[8:11], s22 offen")
    stamp(a)
    dump_stamps(a, 77, 64)
    trace_end(a, 0)
    a("s_endpgm")


CP = 4416
UB = 8 * CP
UP = 144
K2_LDS = 52480


def gen_conv(a, first_wg):
    a.c("---- conv role: one channel per workgroup")
    a.cur = "conv"
    if not FUSED:
        trace_begin(a)
    stamp(a)
    if FUSED:
        for j in range(8):
            a("ds_read_b32 v%d, v%d offset:%d" % (64 + j, 56 + j, KT))
    if first_wg:
        a("s_sub_u32 s2, s2, %d" % first_wg)
    a("s_load_dwordx2 s[4:5], s[0:1], 136")
    a("s_load_dwordx2 s[6:7], s[0:1], 96")
    a("s_load_dwordx2 s[42:43], s[0:1], 64")
    a("v_lshrrev_b32 v1, 6, v0")
    a("v_and_b32 v2, 63, v0")
    a("v_readfirstlane_b32 s3, v1")
    a("s_lshl_b32 s25, s2, 1")
    a("v_mov_b32 v6, 0")
    a("v_lshlrev_b32 v3, 4, v0")
    a("s_lshl_b32 s21, s2, 12")
    a("s_add_u32 s20, s21, 0x%x" % WS_RK)
    a("s_add_u32 s22, s21, 0x%x" % WS_UF)
    a("s_add_u32 s23, s21, 0x%x" % WS_AF)
    a("s_waitcnt lgkmcnt(0)")
    if not FUSED:
        a("s_add_u32 s12, s4, s20")
        a("s_addc_u32 s13, s5, 0")
        a("s_mov_b32 s14, 4096")
        a("s_mov_b32 s15, 0x00020000")
        a("buffer_load_dwordx4 v[8:11], v3, s[12:15], 0 offen")
        a("buffer_load_dwordx4 v[12:15], v3, s[12:15], 0 offen offset:16")
    else:
        for q in range(4):
            a("v_cvt_pk_bf16_f32 v%d, v%d, v%d" % (8 + q, 64 + 2 * q, 65 + 2 * q))
        a("ds_write_b128 v3, v[8:11]")
    srd(a, 8, 4, WS_SIZE)
    a("buffer_load_dwordx4 v[152:155], v3, s[8:11], s22 offen")
    srd(a, 16, 42, 1024)
    a("v_lshlrev_b32 v7, 5, v0")
    a("s_mov_b32 s24, 0x%x" % WS_GT)
    a("buffer_load_dwordx4 v[156:159], v7, s[8:11], s24 offen")
    a("buffer_load_dwordx4 v[160:163], v7, s[8:11], s24 offen offset:16")
    a("buffer_load_ushort v164, v6, s[16:19], s25 offen")
    NPF = 0
    if "pf2" in X:
        NPF = 4
        srd(a, 68, 6, 2048 * 1792 * 2)
        a("s_lshl_b32 s26, s2, 14")
        for k in range(4):
            a("buffer_load_dwordx4 v[%d:%d], v3, s[68:71], s26 offen" % (128 + 4 * k, 131 + 4 * k))
            if k < 3:
                a("s_add_u32 s26, s26, 4096")
    for k in range(4):
        a("v_mov_b32 v%d, 0" % (48 + k))
    a("ds_write_b128 v3, v[48:51] offset:%d" % UB)
    a("v_lshrrev_b32 v4, 3, v2")
    a("v_mul_u32_u24 v4, %d, v4" % CP)
    a("v_and_b32 v7, 7, v2")
    a("v_lshl_add_u32 v4, v7, 4, v4")
    a("v_add_u32 v4, 4096, v4")
    a("v_add_u32 v5, %d, v3" % (UB + 4096))
    a("s_cmp_eq_u32 s3, 0")
    a("s_cbranch_scc1 L_cv_z0")
    a("s_cmp_eq_u32 s3, 1")
    a("s_cbranch_scc0 L_cv_z1")
    a("ds_write_b128 v4, v[48:51]")
    a("s_branch L_cv_z1")
    a.lab("L_cv_z0")
    a("s_mov_b32 exec_hi, 0")
    a("ds_write_b128 v5, v[48:51]")
    a("s_mov_b64 exec, -1")
    a.lab("L_cv_z1")
    a("v_lshrrev_b32 v6, 3, v0")
    a("v_mul_u32_u24 v6, %d, v6" % UP)
    a("v_and_b32 v7, 7, v0")
    a("v_lshl_add_u32 v6, v7, 4, v6")
    a("v_and_b32 v20, 31, v2")
    a("v_lshrrev_b32 v21, 5, v2")
    a("v_and_b32 v22, 7, v20")
    a("v_sub_u32 v22, 7, v22")
    a("v_mul_u32_u24 v22, %d, v22" % CP)
    a("v_lshrrev_b32 v23, 3, v20")
    a("v_sub_u32 v23, v21, v23")
    a("v_lshl_add_u32 v22, v23, 4, v22")
    a("s_lshl_b32 s28, s3, 9")
    a("s_sub_u32 s30, %d, s28" % (16 * 255 - 128 * 3 - 64))
    a("v_add_u32 v18, s30, v22")
    a("v_mul_u32_u24 v23, %d, v20" % UP)
    a("v_lshl_add_u32 v23, v21, 4, v23")
    a("s_mul_i32 s29, s3, %d" % (4 * UP))
    a("s_sub_u32 s30, %d, s29" % (UB + UP * 29))
    a("v_add_u32 v19, s30, v23")
    a("v_and_b32 v22, 15, v2")
    a("v_lshrrev_b32 v23, 4, v2")
    a("v_and_b32 v16, 7, v2")
    a("v_sub_u32 v16, 7, v16")
    a("v_mul_u32_u24 v16, %d, v16" % CP)
    a("v_lshrrev_b32 v17, 3, v22")
    a("v_sub_u32 v17, v23, v17")
    a("v_lshl_add_u32 v16, v17, 4, v16")
    a("s_sub_u32 s30, %d, s28" % (16 * 255 - 128 * 16 - 128 * 3 - 96))
    a("v_add_u32 v16, s30, v16")
    a("v_mul_u32_u24 v17, %d, v22" % UP)
    a("v_lshl_add_u32 v17, v23, 4, v17")
    a("s_sub_u32 s30, %d, s29" % (UB + UP * 29))
    a("v_add_u32 v17, s30, v17")
    a("v_mul_u32_u24 v7, 272, v22")
    a("v_lshl_add_u32 v7, v23, 4, v7")
    if FUSED:
        a("s_waitcnt lgkmcnt(0)")
        a("s_barrier")
        a("ds_read_b128 v[12:15], v3 offset:16")
        a("s_waitcnt lgkmcnt(0)")
    else:
        a("s_waitcnt vmcnt(%d)" % (4 + NPF))
    for k in range(1, 8):
        a("v_mov_b32 v%d, v%d" % (65 + k, 8 + k))
    for k in range(7):
        a("v_alignbit_b32 v%d, v%d, v%d, 16" % (74 + k, 9 + k, 8 + k))
    for k in range(1, 7):
        a("v_alignbit_b32 v%d, v%d, v%d, 16" % (83 + k, 9 + k, 8 + k))
    src = {0: 8, 2: 66, 4: 10, 6: 68, 1: 74, 3: 84, 5: 76, 7: 86}
    for s in range(1 if FUSED else 0, 8):
        a("ds_write_b128 v3, v[%d:%d] offset:%d" % (src[s], src[s] + 3, s * CP))
    a("s_waitcnt vmcnt(%d)" % (3 + NPF))
    a("ds_write_b128 v6, v[152:155] offset:%d" % (UB + 32 * UP))
    a("s_waitcnt lgkmcnt(0)")
    a("s_barrier")
    stamp(a)
    ACC = [64, 80]
    D16 = 136
    FA = [24 + 4 * k for k in range(10)]
    FB = [[96 + 4 * k for k in range(4)], [112 + 4 * k for k in range(4)]]
    free = list(range(10))

    def loadA(step, rel):
        sl = free.pop(0)
        if step < 4:
            a("ds_read_b128 v[%d:%d], v18 offset:%d" % (FA[sl], FA[sl] + 3, 128 * (3 - step) + 64 - 2 * rel))
        else:
            a("ds_read_b128 v[%d:%d], v16 offset:%d" % (FA[sl], FA[sl] + 3, 128 * (7 - step) + 96 - 2 * rel))
        return sl

    def loadB(step):
        if step < 4:
            for k in range(4):
                a("ds_read_b128 v[%d:%d], v19 offset:%d" % (FB[step & 1][k], FB[step & 1][k] + 3, UP * (3 - step) + 32 * k))
            return 4
        for k in range(2):
            a("ds_read_b128 v[%d:%d], v17 offset:%d" % (FB[step & 1][k], FB[step & 1][k] + 3, UP * (7 - step) + 64 * k))
        return 2

    R32 = (-48, -32, -16, 0, 16, 32)
    R16 = (-32, -16, 0, 16, 32, 48)
    cur = {}
    for rel in R32:
        cur[rel] = loadA(0, rel)
    loadB(0)
    for step in range(8):
        nxt = {}
        n = 0
        if step < 7:
            RN = R32 if step + 1 < 4 else R16
            if step + 1 == 4:
                for rel in RN[:4]:
                    nxt[rel] = loadA(step + 1, rel)
                n = 4
            else:
                nxt[RN[0]] = cur[RN[4]]
                nxt[RN[1]] = cur[RN[5]]
                for rel in RN[2:]:
                    nxt[rel] = loadA(step + 1, rel)
                n = 4
            n += loadB(step + 1)
            a("s_waitcnt lgkmcnt(%d)" % n)
        else:
            a("s_waitcnt lgkmcnt(0)")
        if step < 4:
            for k in range(4):
                for beta in range(2):
                    rel = 32 * beta - 16 * k
                    c = "0" if (step == 0 and k == 0) else "v[%d:%d]" % (ACC[beta], ACC[beta] + 15)
                    a("v_mfma_f32_32x32x16_bf16 v[%d:%d], v[%d:%d], v[%d:%d], %s" %
                      (ACC[beta], ACC[beta] + 15, FA[cur[rel]], FA[cur[rel]] + 3, FB[step & 1][k], FB[step & 1][k] + 3, c))
        else:
            for ki in range(2):
                for mi in range(4):
                    rel = 16 * mi - 32 * ki
                    d = D16 + 4 * mi
                    c = "0" if (step == 4 and ki == 0) else "v[%d:%d]" % (d, d + 3)
                    a("v_mfma_f32_16x16x32_bf16 v[%d:%d], v[%d:%d], v[%d:%d], %s" %
                      (d, d + 3, FA[cur[rel]], FA[cur[rel]] + 3, FB[step & 1][ki], FB[step & 1][ki] + 3, c))
        RC = R32 if step < 4 else R16
        if step == 3:
            for rel in RC:
                free.append(cur[rel])
            for rel in R16[4:]:
                nxt[rel] = loadA(4, rel)
        else:
            for rel in RC[:4]:
                free.append(cur[rel])
        cur = nxt
    a("v_mul_u32_u24 v24, 272, v20")
    a("v_lshl_add_u32 v24, v21, 4, v24")
    a("s_mul_i32 s28, s3, 8704")
    a("v_add_u32 v24, s28, v24")
    a("v_lshrrev_b32 v25, 3, v0")
    a("v_mul_u32_u24 v25, 272, v25")
    a("v_and_b32 v26, 7, v0")
    a("v_lshl_add_u32 v25, v26, 5, v25")
    a("s_mov_b32 s27, 0xffff0000")
    a("s_waitcnt vmcnt(0)")
    a("s_barrier")
    if "cv3" in X:
        trace_end(a, 1)
        a("s_endpgm")
    stamp(a)
    a.nop(4)
    for beta in range(2):
        for rq in range(4):
            a("ds_write_b128 v24, v[%d:%d] offset:%d" % (ACC[beta] + 4 * rq, ACC[beta] + 4 * rq + 3, (32 * beta + 8 * rq) * 4))
    a("s_mul_i32 s29, s3, 4352")
    a("v_add_u32 v7, s29, v7")
    for mi in range(4):
        a("ds_write_b128 v7, v[%d:%d] offset:%d" % (D16 + 4 * mi, D16 + 4 * mi + 3, 34816 + 64 * mi))
    a("v_lshlrev_b32 v164, 16, v164")
    a("v_mov_b32 v165, v164")
    for q in range(4):
        a("v_lshlrev_b32 v%d, 16, v%d" % (128 + 2 * q, 152 + q))
        a("v_and_b32 v%d, s27, v%d" % (129 + 2 * q, 152 + q))
    for q in range(4):
        a("v_pk_mul_f32 v[%d:%d], v[%d:%d], v[164:165]" % (128 + 2 * q, 129 + 2 * q, 128 + 2 * q, 129 + 2 * q))
    a("s_waitcnt lgkmcnt(0)")
    a("s_barrier")
    for w in range(4):
        a("ds_read_b128 v[%d:%d], v25 offset:%d" % (32 + 8 * w, 35 + 8 * w, w * 8704))
        a("ds_read_b128 v[%d:%d], v25 offset:%d" % (36 + 8 * w, 39 + 8 * w, w * 8704 + 16))
    a("s_cmp_lt_u32 s3, 2")
    a("s_cbranch_scc1 L_cv_no16")
    for w in range(4):
        a("ds_read_b128 v[%d:%d], v25 offset:%d" % (96 + 8 * w, 99 + 8 * w, 34816 - 16 * 272 + w * 4352))
        a("ds_read_b128 v[%d:%d], v25 offset:%d" % (100 + 8 * w, 103 + 8 * w, 34816 - 16 * 272 + w * 4352 + 16))
    a("s_waitcnt lgkmcnt(0)")
    for w in range(4):
        for q in range(4):
            a("v_pk_add_f32 v[%d:%d], v[%d:%d], v[%d:%d]" % (128 + 2 * q, 129 + 2 * q, 128 + 2 * q, 129 + 2 * q, 96 + 8 * w + 2 * q, 97 + 8 * w + 2 * q))
    a.lab("L_cv_no16")
    a("s_waitcnt lgkmcnt(4)")
    for q in range(4):
        a("v_pk_add_f32 v[%d:%d], v[%d:%d], v[%d:%d]" % (32 + 2 * q, 33 + 2 * q, 32 + 2 * q, 33 + 2 * q, 40 + 2 * q, 41 + 2 * q))
    a("s_waitcnt lgkmcnt(0)")
    for q in range(4):
        a("v_pk_add_f32 v[%d:%d], v[%d:%d], v[%d:%d]" % (48 + 2 * q, 49 + 2 * q, 48 + 2 * q, 49 + 2 * q, 56 + 2 * q, 57 + 2 * q))
    for q in range(4):
        a("v_pk_add_f32 v[%d:%d], v[%d:%d], v[%d:%d]" % (32 + 2 * q, 33 + 2 * q, 32 + 2 * q, 33 + 2 * q, 48 + 2 * q, 49 + 2 * q))
    for q in range(4):
        a("v_pk_add_f32 v[%d:%d], v[%d:%d], v[%d:%d]" % (32 + 2 * q, 33 + 2 * q, 32 + 2 * q, 33 + 2 * q, 128 + 2 * q, 129 + 2 * q))
    for q in range(4):
        a("v_pk_mul_f32 v[%d:%d], v[%d:%d], v[%d:%d]" % (32 + 2 * q, 33 + 2 * q, 32 + 2 * q, 33 + 2 * q, 156 + 2 * q, 157 + 2 * q))
    for q in range(4):
        a("v_cvt_pk_bf16_f32 v%d, v%d, v%d" % (72 + q, 32 + 2 * q, 33 + 2 * q))
    a("buffer_store_dwordx4 v[72:75], v3, s[8:11], s23 offen")
    if "pf2e" in X:
        srd(a, 68, 6, 2048 * 1792 * 2)
        a("s_lshl_b32 s26, s2, 14")
        for k in range(4):
            a("buffer_load_dwordx4 v[%d:%d], v3, s[68:71], s26 offen" % (128 + 4 * k, 131 + 4 * k))
            if k < 3:
                a("s_add_u32 s26, s26, 4096")
    stamp(a)
    dump_stamps(a, 77, 64)
    trace_end(a, 0 if FUSED else 1)
    a("s_endpgm")


TP = 144
RED = 49152
K3_LDS = 65536 + 64 * TP


def gen_gemm(a, which):
    g1 = (which == 1)
    NOCT = 256 if g1 else 224
    S = 32 if g1 else 28
    NS = 6 if g1 else 8
    for tok in X.split(","):
        if tok.startswith("ns%d=" % which):
            NS = int(tok[4:])
    PW = 3584 if g1 else 4096
    WOFF = 80 if g1 else 96
    WBYTES = 2048 * 1792 * 2
    DOFF = WS_HF if g1 else WS_GF
    TPITCH = NOCT * 512
    NQ = 28 if g1 else 32
    TBASE = 65536
    a.c("---- gemm%d role" % which)
    a.cur = "g%d" % which
    trace_begin(a)
    stamp(a)
    a("s_load_dwordx2 s[4:5], s[0:1], %d" % WOFF)
    a("s_load_dwordx2 s[6:7], s[0:1], 136")
    a("s_load_dwordx2 s[36:37], s[0:1], %d" % (88 if g1 else 104))
    if not g1:
        a("s_load_dwordx2 s[38:39], s[0:1], 120")
    a("v_lshrrev_b32 v1, 6, v0")
    a("v_and_b32 v2, 63, v0")
    a("v_readfirstlane_b32 s3, v1")
    a("s_and_b32 s20, s2, 7")
    a("s_lshr_b32 s21, s2, 3")
    a("s_mul_i32 s20, s20, %d" % NQ)
    a("s_add_u32 s20, s20, s21")
    a("s_lshr_b32 s21, s20, 3")
    a("s_and_b32 s22, s20, 7")
    a("s_mul_i32 s23, s22, %d" % (2 * TPITCH))
    a("s_mul_i32 s24, s3, %d" % (S * 1024))
    a("s_add_u32 s23, s23, s24")
    a("s_add_u32 s23, s23, 0x%x" % DOFF)
    a("v_lshlrev_b32 v3, 4, v2")
    a("v_add_u32 v4, %d, v3" % TPITCH)
    a("v_lshrrev_b32 v5, 3, v2")
    a("v_and_b32 v6, 7, v2")
    a("v_lshlrev_b32 v7, 1, v5")
    a("v_and_b32 v7, 4, v7")
    a("v_xor_b32 v6, v6, v7")
    a("v_mul_u32_u24 v5, %d, v5" % PW)
    a("v_lshl_add_u32 v5, v6, 4, v5")
    a("s_lshl_b32 s24, s21, 7")
    a("v_add_u32 v5, s24, v5")
    a("s_mul_i32 s25, s3, %d" % (S * 16 * PW))
    a("s_mul_i32 s26, s3, %d" % (NS * 2048))
    a("s_waitcnt lgkmcnt(0)")
    srd(a, 8, 4, WBYTES)
    srd(a, 12, 6, WS_SIZE)
    ACC = [[16, 32], [48, 64]]
    DF = [80 + 8 * k for k in range(NS)]
    WFB = 80 + 8 * NS
    XR = WFB + 16

    a("s_and_b32 s48, s21, 3")
    a("s_lshl2_add_u32 s48, s22, s48")
    if "norot" in X:
        a("s_mov_b32 s48, 0")
    a("s_sub_u32 s49, s48, %d" % S)
    a("s_cmp_ge_u32 s48, %d" % S)
    a("s_cselect_b32 s48, s49, s48")

    def issue(st):
        sl = st % NS
        a("s_mul_i32 s27, s48, %d" % (16 * PW))
        a("s_add_u32 m0, s26, %d" % (sl * 2048))
        a("s_add_u32 s27, s27, s25")
        if "wreg" in X:
            a("buffer_load_dwordx4 v[%d:%d], v5, s[8:11], s27 offen" % (WFB + 8 * (st & 1), WFB + 8 * (st & 1) + 3))
        else:
            a("buffer_load_dwordx4 v5, s[8:11], s27 offen lds" + WH)
        a("s_add_u32 m0, s26, %d" % (sl * 2048 + 1024))
        a("s_add_u32 s27, s27, %d" % (8 * PW))
        a("s_lshl_b32 s28, s48, 10")
        if "wreg" in X:
            a("buffer_load_dwordx4 v[%d:%d], v5, s[8:11], s27 offen" % (WFB + 8 * (st & 1) + 4, WFB + 8 * (st & 1) + 7))
        else:
            a("buffer_load_dwordx4 v5, s[8:11], s27 offen lds" + WH)
        a("s_add_u32 s28, s28, s23")
        a("s_add_u32 s48, s48, 1")
        for t in range(2):
            r = DF[sl] + 4 * t
            a("buffer_load_dwordx4 v[%d:%d], v%d, s[12:15], s28 offen" % (r, r + 3, 3 + t) + DH)
        a("s_cmp_lg_u32 s48, %d" % S)
        a("s_cselect_b32 s48, s48, 0")

    if g1 and FUSED:
        a("s_mov_b32 s51, s48")
        for st in range(NS):
            a("s_mul_i32 s27, s51, %d" % (16 * PW))
            a("s_add_u32 s27, s27, s25")
            a("buffer_load_dwordx4 v[%d:%d], v5, s[8:11], s27 offen" % (DF[st], DF[st] + 3))
            a("s_add_u32 s27, s27, %d" % (8 * PW))
            a("s_add_u32 s51, s51, 1")
            a("buffer_load_dwordx4 v[%d:%d], v5, s[8:11], s27 offen" % (DF[st] + 4, DF[st] + 7))
            a("s_cmp_lg_u32 s51, %d" % S)
            a("s_cselect_b32 s51, s51, 0")
        poll_flags(a, "g1")
        a("s_waitcnt vmcnt(0)")
        a("s_barrier")
    issue(0)
    issue(1)
    srd(a, 40, 36, 3584 if g1 else 4096)
    if not g1:
        srd(a, 44, 38, 2 * MB)
    for st in range(2, NS):
        issue(st)
    a("v_lshrrev_b32 v8, 4, v2")
    a("v_and_b32 v9, 15, v2")
    a("v_lshrrev_b32 v10, 2, v9")
    a("v_and_b32 v11, 3, v9")
    a("v_lshrrev_b32 v12, 1, v8")
    a("v_lshl_add_u32 v12, v12, 3, v10")
    a("v_lshlrev_b32 v12, 7, v12")
    a("v_and_b32 v13, 1, v8")
    a("v_lshlrev_b32 v13, 1, v13")
    a("v_lshrrev_b32 v14, 1, v11")
    a("v_add_u32 v13, v13, v14")
    a("v_lshlrev_b32 v14, 1, v10")
    a("v_and_b32 v14, 4, v14")
    a("v_xor_b32 v13, v13, v14")
    a("v_lshl_add_u32 v12, v13, 4, v12")
    a("v_and_b32 v14, 1, v11")
    a("v_lshl_add_u32 v12, v14, 3, v12")
    a("v_add_u32 v12, s26, v12")
    a("v_xor_b32 v13, 64, v12")
    a("s_lshr_b32 s29, s3, 1")
    a("s_and_b32 s30, s3, 1")
    a("v_and_b32 v6, 31, v2")
    a("v_lshrrev_b32 v7, 5, v2")
    NX = 0
    if g1:
        a("s_lshl_b32 s31, s21, 7")
        a("s_lshl_b32 s32, s29, 6")
        a("s_add_u32 s31, s31, s32")
        a("v_lshlrev_b32 v14, 3, v7")
        for rq in range(4):
            a("buffer_load_dwordx2 v[%d:%d], v14, s[40:43], s31 offen offset:%d" % (XR + 2 * rq, XR + 2 * rq + 1, 16 * rq))
        NX = 4
    else:
        a("s_lshl_b32 s31, s22, 18")
        a("s_lshl_b32 s32, s21, 7")
        a("s_add_u32 s31, s31, s32")
        a("s_add_u32 s31, s31, 0x%x" % WS_AF)
        a("s_add_u32 s32, s31, 131072")
        a("v_lshrrev_b32 v14, 3, v0")
        a("v_and_b32 v15, 7, v0")
        a("v_lshlrev_b32 v15, 4, v15")
        a("v_lshl_add_u32 v15, v14, 12, v15")
        a("buffer_load_dwordx4 v[%d:%d], v15, s[12:15], s31 offen" % (XR, XR + 3))
        a("buffer_load_dwordx4 v[%d:%d], v15, s[12:15], s32 offen" % (XR + 4, XR + 7))
        a("s_lshl_b32 s33, s21, 6")
        a("s_lshl_b32 s34, s30, 5")
        a("s_add_u32 s33, s33, s34")
        a("v_add_u32 v14, s33, v6")
        a("v_lshlrev_b32 v15, 2, v14")
        a("s_mov_b32 s34, 0x%x" % WS_GT)
        a("buffer_load_dword v%d, v15, s[12:15], s34 offen" % (XR + 8))
        a("v_lshlrev_b32 v15, 1, v14")
        a("buffer_load_ushort v%d, v15, s[40:43], 0 offen" % (XR + 9))
        NX = 4
    stamp(a)

    def trreads(st):
        if "wreg" in X:
            return
        sl = st % NS
        for nu in range(2):
            for h in range(2):
                r = WFB + 8 * (st & 1) + 4 * nu + 2 * h
                a("ds_read_b64_tr_b16 v[%d:%d], v%d offset:%d" % (r, r + 1, 12 + nu, sl * 2048 + h * 512))

    def stage(st, sl, par, do_issue, wait_next, first=False):
        if wait_next is not None:
            a("s_waitcnt vmcnt(%d)" % wait_next)
            trreads2((sl + 1) % NS, par ^ 1)
            a("s_waitcnt lgkmcnt(4)")
        else:
            a("s_waitcnt lgkmcnt(0)")
        for nu in range(2):
            for t in range(2):
                wf = WFB + 8 * par + 4 * nu
                df = DF[sl] + 4 * t
                if g1:
                    acc = ACC[nu][t]
                    A_, B_ = wf, df
                else:
                    acc = ACC[t][nu]
                    A_, B_ = df, wf
                a("v_mfma_f32_32x32x16_bf16 v[%d:%d], v[%d:%d], v[%d:%d], v[%d:%d]" % (acc, acc + 15, A_, A_ + 3, B_, B_ + 3, acc, acc + 15))
        if do_issue:
            issue(sl)

    def trreads2(sl, par):
        if "wreg" in X:
            return
        for nu in range(2):
            for h in range(2):
                r = WFB + 8 * par + 4 * nu + 2 * h
                a("ds_read_b64_tr_b16 v[%d:%d], v%d offset:%d" % (r, r + 1, 12 + nu, sl * 2048 + h * 512))

    assert NS % 2 == 0
    for r in range(16, 80):
        a("v_mov_b32 v%d, 0" % r)
    NL = (S - NS) // NS
    a("s_mov_b32 s50, %d" % NL)
    a("s_waitcnt vmcnt(%d)" % (4 * (NS - 1) + NX))
    trreads2(0, 0)
    a.lab("L_g%d_loop" % which)
    for k in range(NS):
        stage(k, k, k & 1, True, 4 * (NS - 2))
    a("s_sub_u32 s50, s50, 1")
    a("s_cmp_lg_u32 s50, 0")
    a("s_cbranch_scc1 L_g%d_loop" % which)
    for st in range(NL * NS, S):
        k = st % NS
        iss = st + NS < S
        later = min(S - 1, st + NS - 1) - (st + 1)
        stage(st, k, st & 1, iss, (4 * later) if st + 1 < S else None)
        if g1 and "pf3" in X and st == S - 2:
            a("s_load_dwordx2 s[52:53], s[0:1], 96")
            a("s_lshl_b32 s56, s2, 2")
            a("s_add_u32 s56, s56, s3")
            a("s_lshl_b32 s56, s56, 13")
            a("s_waitcnt lgkmcnt(0)")
            srd(a, 52, 52, 2048 * 1792 * 2)
            for kk in range(8):
                a("buffer_load_dwordx4 v[%d:%d], v3, s[52:55], s56 offen offset:%d" % (152 + 4 * (kk & 3), 155 + 4 * (kk & 3), (kk & 3) * 1024))
                if kk == 3:
                    a("s_add_u32 s56, s56, 4096")
    stamp(a)
    F = 80
    a("s_mov_b32 s27, 0xffff0000")
    if not g1:
        a("v_lshrrev_b32 v9, 3, v0")
        a("v_mul_u32_u24 v9, %d, v9" % TP)
        a("v_and_b32 v10, 7, v0")
        a("v_lshl_add_u32 v9, v10, 4, v9")
        a("v_add_u32 v9, %d, v9" % TBASE)
        a("s_waitcnt vmcnt(0)")
        a("ds_write_b128 v9, v[%d:%d]" % (XR, XR + 3))
        a("ds_write_b128 v9, v[%d:%d] offset:%d" % (XR + 4, XR + 7, 32 * TP))
    a("s_barrier")
    a.nop(4)
    for qd in range(4):
        acc = ACC[qd >> 1][qd & 1]
        a("s_cmp_eq_u32 s3, %d" % qd)
        a("s_cbranch_scc1 L_g%d_own%d" % (which, qd))
        a("s_sub_u32 s28, s3, %d" % (qd + 1))
        a("s_and_b32 s28, s28, 3")
        a("s_add_u32 s28, s28, %d" % (qd * 3))
        a("s_lshl_b32 s28, s28, 12")
        a("v_add_u32 v8, s28, v3")
        for rq in range(4):
            a("ds_write_b128 v8, v[%d:%d] offset:%d" % (acc + 4 * rq, acc + 4 * rq + 3, rq * 1024))
        a("s_branch L_g%d_nx%d" % (which, qd))
        a.lab("L_g%d_own%d" % (which, qd))
        for k in range(8):
            a("v_pk_add_f32 v[%d:%d], v[%d:%d], 0" % (F + 2 * k, F + 2 * k + 1, acc + 2 * k, acc + 2 * k + 1))
        a.lab("L_g%d_nx%d" % (which, qd))
    a("s_mul_i32 s28, s3, %d" % (3 * 4096))
    a("v_add_u32 v8, s28, v3")
    if g1:
        a("s_lshl_b32 s32, s22, 1")
        a("s_add_u32 s32, s32, s30")
        a("s_mul_i32 s32, s32, %d" % (224 * 512))
        a("s_lshl_b32 s33, s21, 12")
        a("s_add_u32 s32, s32, s33")
        a("s_lshl_b32 s33, s29, 11")
        a("s_add_u32 s32, s32, s33")
        a("s_add_u32 s32, s32, 0x%x" % WS_GF)
        a("v_lshlrev_b32 v11, 4, v6")
        a("v_lshl_add_u32 v11, v7, 3, v11")
    else:
        a("v_lshrrev_b32 v9, 4, v2")
        a("v_and_b32 v10, 15, v2")
        a("v_lshrrev_b32 v13, 2, v10")
        a("v_lshl_add_u32 v13, v7, 2, v13")
        a("v_mul_u32_u24 v13, %d, v13" % TP)
        a("v_and_b32 v10, 3, v10")
        a("v_lshl_add_u32 v13, v10, 3, v13")
        a("v_and_b32 v9, 1, v9")
        a("v_lshl_add_u32 v13, v9, 5, v13")
        a("s_mul_i32 s32, s29, %d" % (32 * TP))
        a("s_lshl_b32 s33, s30, 6")
        a("s_add_u32 s32, s32, s33")
        a("s_add_u32 s32, s32, %d" % TBASE)
        a("v_add_u32 v13, s32, v13")
        a("v_lshlrev_b32 v14, 10, v14")
        a("v_lshl_add_u32 v14, v7, 3, v14")
        a("s_lshl_b32 s33, s22, 7")
        a("s_lshl_b32 s34, s29, 6")
        a("s_add_u32 s33, s33, s34")
    a("s_waitcnt lgkmcnt(0)")
    a("s_barrier")
    P = 96
    for rq in range(4):
        for k in range(3):
            a("ds_read_b128 v[%d:%d], v8 offset:%d" % (P + 16 * k + 4 * rq, P + 16 * k + 4 * rq + 3, k * 4096 + rq * 1024))
    if not g1:
        for rq in range(4):
            a("ds_read_b64_tr_b16 v[%d:%d], v13 offset:%d" % (16 + 2 * rq, 17 + 2 * rq, 8 * rq * TP))
        a("v_lshlrev_b32 v%d, 16, v%d" % (XR + 9, XR + 9))
        a("v_sub_f32 v%d, 1.0, v%d" % (XR + 8, XR + 8))
        bf16r(a, XR + 8)
        a("v_mov_b32 v%d, v%d" % (XR + 11, XR + 9))
        a("v_mov_b32 v%d, v%d" % (XR + 10, XR + 9))
        a("v_mov_b32 v%d, v%d" % (XR + 9, XR + 8))
    else:
        if "pf3" not in X:
            a("s_waitcnt vmcnt(0)")
        k1 = -2.0 * 0.7978845608028654 * 1.4426950408889634
        a("v_mov_b32 v16, 0x%x" % f32(k1))
        a("v_mov_b32 v17, 0x%x" % f32(k1))
        a("v_mov_b32 v18, 0x%x" % f32(k1 * 0.044715))
        a("v_mov_b32 v19, 0x%x" % f32(k1 * 0.044715))
        a("v_mov_b32 v20, 1.0")
        a("v_mov_b32 v21, 1.0")
    nrd = 12 + (0 if g1 else 4)

    def pk(op, d, x, y):
        a("v_pk_%s_f32 v[%d:%d], v[%d:%d], v[%d:%d]" % (op, d, d + 1, x, x + 1, y, y + 1))

    def rnd(base, n, tmp):
        for k in range(n // 2):
            a("v_cvt_pk_bf16_f32 v%d, v%d, v%d" % (tmp + k, base + 2 * k, base + 2 * k + 1))
        for k in range(n // 2):
            a("v_lshlrev_b32 v%d, 16, v%d" % (base + 2 * k, tmp + k))
            a("v_and_b32 v%d, s27, v%d" % (base + 2 * k + 1, tmp + k))

    for half in range(2):
        a("s_waitcnt lgkmcnt(%d)" % (nrd - 6 * (half + 1)))
        for k in range(3):
            for e in range(4):
                pk("add", F + 8 * half + 2 * e, F + 8 * half + 2 * e, P + 16 * k + 8 * half + 2 * e)
    TM = 48
    B = 32
    if g1:
        for k in range(8):
            a("v_lshlrev_b32 v%d, 16, v%d" % (B + 2 * k, XR + k))
            a("v_and_b32 v%d, s27, v%d" % (B + 2 * k + 1, XR + k))
        for e in range(8):
            pk("add", F + 2 * e, F + 2 * e, B + 2 * e)
        for e in range(8):
            pk("mul", B + 2 * e, F + 2 * e, F + 2 * e)
        for e in range(8):
            a("v_pk_fma_f32 v[%d:%d], v[%d:%d], v[18:19], v[16:17]" % (B + 2 * e, B + 2 * e + 1, B + 2 * e, B + 2 * e + 1))
        for e in range(8):
            pk("mul", B + 2 * e, B + 2 * e, F + 2 * e)
        for j in range(16):
            a("v_exp_f32 v%d, v%d" % (B + j, B + j))
        for e in range(8):
            pk("add", B + 2 * e, B + 2 * e, 20)
        for j in range(16):
            a("v_rcp_f32 v%d, v%d" % (B + j, B + j))
        a.nop(1)
        for e in range(8):
            pk("mul", F + 2 * e, F + 2 * e, B + 2 * e)
        for k in range(8):
            a("v_cvt_pk_bf16_f32 v%d, v%d, v%d" % (TM + k, F + 2 * k, F + 2 * k + 1))
        for rq in range(4):
            a("buffer_store_dwordx2 v[%d:%d], v11, s[12:15], s32 offen offset:%d" % (TM + 2 * rq, TM + 2 * rq + 1, 512 * rq))
    else:
        for e in range(8):
            pk("add", F + 2 * e, F + 2 * e, XR + 10)
        a("s_waitcnt lgkmcnt(0)")
        for k in range(8):
            a("v_lshlrev_b32 v%d, 16, v%d" % (B + 2 * k, 16 + k))
            a("v_and_b32 v%d, s27, v%d" % (B + 2 * k + 1, 16 + k))
        for e in range(8):
            a("v_pk_fma_f32 v[%d:%d], v[%d:%d], v[%d:%d], v[%d:%d]" % (F + 2 * e, F + 2 * e + 1, F + 2 * e, F + 2 * e + 1, XR + 8, XR + 9, B + 2 * e, B + 2 * e + 1))
        for k in range(8):
            a("v_cvt_pk_bf16_f32 v%d, v%d, v%d" % (TM + k, F + 2 * k, F + 2 * k + 1))
        for rq in range(4):
            a("buffer_store_dwordx2 v[%d:%d], v14, s[44:47], s33 offen offset:%d" % (TM + 2 * rq, TM + 2 * rq + 1, 16 * rq))
    stamp(a)
    dump_stamps(a, 9)
    trace_end(a, which - (1 if FUSED else 0))
    a("s_endpgm")


def kd(name, vgpr, sgpr=102):
    acc = (vgpr + 3) // 4 * 4
    return """.amdhsa_kernel %s
  .amdhsa_next_free_vgpr %d
  .amdhsa_next_free_sgpr %d
  .amdhsa_accum_offset %d
  .amdhsa_group_segment_fixed_size 0
  .amdhsa_kernarg_size 144
  .amdhsa_user_sgpr_count 2
  .amdhsa_user_sgpr_kernarg_segment_ptr 1
  .amdhsa_system_sgpr_workgroup_id_x 1
.end_amdhsa_kernel
""" % (name, vgpr, sgpr, acc)


def main(out):
    ref = open("cdna_kernels/%s.s.ref" % NAME).read()
    head = []
    for ln in ref.splitlines():
        if ln.startswith("; @launch"):
            break
        if ln.startswith("; Override") or ln.startswith("; grid=ceil"):
            continue
        head.append(ln)
    a = A()
    K1, K2, K3 = "k1_prep_kernel", "k2_gemm1_conv_kernel", "k3_gemm2_kernel"
    if not FUSED:
        head.append("; @launch kernel=%s grid=(%d,1,1) block=(256,1,1) lds=%d" % (K1, 768, K1_LDS))
    head.append("; @launch kernel=%s grid=(%d,1,1) block=(256,1,1) lds=%d" % (K2, 224 + 512, K2_LDS))
    head.append("; @launch kernel=%s grid=(%d,1,1) block=(256,1,1) lds=%d" % (K3, 256, K3_LDS))
    a.L += head
    a.L.append('.amdgcn_target "amdgcn-amd-amdhsa--gfx950"')
    a.L.append(".text")

    def start(k):
        a.L.append(".globl %s" % k)
        a.L.append(".p2align 8")
        a.L.append(".type %s,@function" % k)
        a.lab(k)

    if not FUSED:
        start(K1)
        a("s_cmp_ge_u32 s2, 768")
        a("s_cbranch_scc1 L_k1_exit")
        if "pfirst" in X:
            a("s_cmp_lt_u32 s2, 256")
            a("s_cbranch_scc1 L_k1_prep")
            gen_kgen(a, 256)
        else:
            a("s_cmp_ge_u32 s2, 512")
            a("s_cbranch_scc1 L_k1_prep")
            gen_kgen(a, 0)
        a.lab("L_k1_exit")
        a("s_endpgm")
        a.lab("L_k1_prep")
        if "pprio" in X:
            a("s_setprio 3")
        gen_prep(a, 0 if "pfirst" in X else 512)

    start(K2)
    a("s_cmp_ge_u32 s2, %d" % (224 + 512))
    a("s_cbranch_scc1 L_k2_exit")
    if "gfirst" in X:
        a("s_cmp_ge_u32 s2, 224")
        a("s_cbranch_scc1 L_k2_conv")
    else:
        a("s_cmp_lt_u32 s2, 512")
        a("s_cbranch_scc1 L_k2_conv")
        a("s_sub_u32 s2, s2, 512")
    if "noprio" not in X:
        a("s_setprio 3")
    gen_gemm(a, 1)
    a.lab("L_k2_exit")
    a("s_endpgm")
    a.lab("L_k2_conv")
    if FUSED:
        a.cur = "conv"
        trace_begin(a)
        a("s_cmp_ge_u32 s2, 256")
        a("s_cbranch_scc1 L_k2_kgen")
        gen_prep(a, 0)
        a.lab("L_k2_kgen")
        gen_kgen(a, 0)
    gen_conv(a, 224 if "gfirst" in X else 0)

    start(K3)
    a("s_cmp_ge_u32 s2, 256")
    a("s_cbranch_scc1 L_k3_exit")
    gen_gemm(a, 2)
    a.lab("L_k3_exit")
    a("s_endpgm")

    a.L.append('.section .rodata,"a"')
    for k, v in ((K1, 144), (K2, 168), (K3, 176))[1 if FUSED else 0:]:
        a.L.append(".p2align 6")
        a.L.append(kd(k, v))
    open(out, "w").write("\n".join(a.L) + "\n")


if __name__ == "__main__":
    main(sys.argv[1] if len(sys.argv) > 1 else "cdna_kernels/%s.s" % NAME)
```

```python
import struct, sys, os
X = os.environ.get("GENX", "")
GX = X
FUSED = "fuse" in X
KC = FUSED or ("kc2" in X)
SC = " sc1" if FUSED else ""
WH = " nt" if "wnt" in X else (" sc1" if "wsc1" in X else "")
DH = " nt" if "dnt" in X else (" sc1" if "dsc1" in X else "")

NAME = "gated_mix__ssm_conv_s4__mixer_token_mlp__prompt"

MB = 1 << 20
WS_HF = 0
WS_UF = 2 * MB
WS_GF = 4 * MB
WS_AF = 6 * MB
WS_GT = 8 * MB
WS_RK = 9 * MB
WS_SIZE = 268435456

NPREP = 64
HILO = True


def f32(x):
    return struct.unpack("<I", struct.pack("<f", x))[0]


class A:
    def __init__(self):
        self.L = []
        self.cur = ""

    def __call__(self, s):
        self.L.append("    " + s)

    def lab(self, s):
        self.L.append(s + ":")

    def nop(self, n):
        while n > 0:
            k = min(n, 16)
            self("s_nop %d" % (k - 1))
            n -= k

    def c(self, s):
        self.L.append("    ; " + s)


STAMPS = [0]
def stamp(a):
    if "stamp" not in X:
        return
    k = STAMPS[0]
    a("s_memtime s[%d:%d]" % (72 + 2 * k, 73 + 2 * k))
    STAMPS[0] += 1


def dump_stamps(a, wg, off=0):
    if "stamp" not in X:
        return
    n = STAMPS[0]
    STAMPS[0] = 0
    a("s_waitcnt vmcnt(0) lgkmcnt(0)")
    a("s_memtime s[%d:%d]" % (72 + 2 * n, 73 + 2 * n))
    n += 1
    a("s_load_dwordx2 s[96:97], s[0:1], 128")
    a("s_waitcnt lgkmcnt(0)")
    a("s_mov_b32 s98, 256")
    a("s_mov_b32 s99, 0x00020000")
    a("s_mov_b64 exec, -1")
    a("v_lshrrev_b32 v1, 6, v0")
    a("s_nop 1")
    a("v_readfirstlane_b32 s95, v1")
    a("s_cmp_lg_u32 s95, 0")
    a("s_cbranch_scc1 L_nostamp%d" % len(a.L))
    lab = "L_nostamp%d" % (len(a.L) - 1)
    a("s_cmp_lg_u32 s2, %d" % wg)
    a("s_cbranch_scc1 %s" % lab)
    a("s_mov_b64 exec, 1")
    a("v_mov_b32 v1, 0")
    for k in range(n):
        a("v_mov_b32 v2, s%d" % (72 + 2 * k))
        a("buffer_store_dword v2, v1, s[96:99], 0 offen offset:%d" % (off + 4 * k))
    a.lab(lab)


def trace_begin(a):
    if "trace" not in X:
        return
    a("s_memrealtime s[88:89]")
    a("s_memtime s[90:91]")
    a("s_mov_b32 s94, s2")
    a("s_mov_b32 s86, 0")
    if a.cur == "g1":
        a("s_add_u32 s94, s94, 512")


def trace_end(a, launch):
    if "trace" not in X:
        return
    a("s_waitcnt vmcnt(0) lgkmcnt(0)")
    a("s_memrealtime s[92:93]")
    if FUSED:
        a("s_mov_b32 s84, s86")
    else:
        a("s_memtime s[84:85]")
    a("s_load_dwordx2 s[96:97], s[0:1], 136")
    a("s_waitcnt lgkmcnt(0)")
    a("s_mov_b32 s98, 0x%x" % WS_SIZE)
    a("s_mov_b32 s99, 0x00020000")
    a("s_mov_b64 exec, -1")
    a("v_lshrrev_b32 v1, 6, v0")
    a("s_nop 1")
    a("v_readfirstlane_b32 s95, v1")
    a("s_cmp_lg_u32 s95, 0")
    a("s_cbranch_scc1 L_notr%d" % len(a.L))
    lab = "L_notr%d" % (len(a.L) - 1)
    a("s_lshl_b32 s94, s94, 4")
    a("s_add_u32 s94, s94, 0x%x" % (64 * MB + launch * 65536))
    a("s_mov_b64 exec, 1")
    a("v_mov_b32 v1, 0")
    a("v_mov_b32 v4, s88")
    a("v_mov_b32 v5, s92")
    if "hwid" in X:
        a("s_getreg_b32 s90, hwreg(HW_REG_HW_ID)")
        a("s_getreg_b32 s84, hwreg(HW_REG_XCC_ID)")
    a("v_mov_b32 v6, s90")
    a("v_mov_b32 v7, s84")
    a("buffer_store_dwordx4 v[4:7], v1, s[96:99], s94 offen")
    a.lab(lab)


def poll_flags(a, tag, sreg=72):
    a("s_cmp_lg_u32 s3, 0")
    a("s_cbranch_scc1 L_pf_done_%s" % tag)
    a("s_load_dwordx2 s[%d:%d], s[0:1], 128" % (sreg, sreg + 1))
    a("v_lshlrev_b32 v72, 2, v2")
    a("s_mov_b32 s%d, 4" % (sreg + 4))
    a("s_mov_b32 s%d, 0x40000" % (sreg + 5))
    a("s_waitcnt lgkmcnt(0)")
    a("s_mov_b32 s%d, 256" % (sreg + 2))
    a("s_mov_b32 s%d, 0x00020000" % (sreg + 3))
    a.lab("L_pf_loop_%s" % tag)
    a("buffer_load_dword v73, v72, s[%d:%d], 0 offen sc1" % (sreg, sreg + 3))
    a("s_waitcnt vmcnt(0)")
    a("v_cmp_ne_u32 vcc, s%d, v73" % (sreg + 4))
    a("s_nop 4")
    a("s_cbranch_vccz L_pf_done_%s" % tag)
    a("s_sleep %d" % (64 if "slow" in X else 4))
    a("s_sub_u32 s%d, s%d, 1" % (sreg + 5, sreg + 5))
    a("s_cmp_lg_u32 s%d, 0" % (sreg + 5))
    a("s_cbranch_scc1 L_pf_loop_%s" % tag)
    a.lab("L_pf_done_%s" % tag)
    if "trace" in X:
        a("s_memrealtime s[90:91]")
        a("s_waitcnt lgkmcnt(0)")


def srd(a, d, base, nbytes, off=0):
    if off:
        a("s_add_u32 s%d, s%d, 0x%x" % (d, base, off))
        a("s_addc_u32 s%d, s%d, 0" % (d + 1, base + 1))
    else:
        a("s_mov_b32 s%d, s%d" % (d, base))
        a("s_mov_b32 s%d, s%d" % (d + 1, base + 1))
    a("s_mov_b32 s%d, 0x%x" % (d + 2, nbytes))
    a("s_mov_b32 s%d, 0x00020000" % (d + 3))


def bf16r(a, v):
    a("v_cvt_pk_bf16_f32 v%d, v%d, v%d" % (v, v, v))
    a("v_lshlrev_b32 v%d, 16, v%d" % (v, v))


def wave_reduce(a, regs):
    assert len(regs) >= 3
    steps = ["quad_perm:[1,0,3,2] row_mask:0xf bank_mask:0xf",
             "quad_perm:[2,3,0,1] row_mask:0xf bank_mask:0xf",
             "row_half_mirror row_mask:0xf bank_mask:0xf",
             "row_mirror row_mask:0xf bank_mask:0xf",
             "row_bcast:15 row_mask:0xa bank_mask:0xf",
             "row_bcast:31 row_mask:0xc bank_mask:0xf"]
    a.nop(2)
    for st in steps:
        for r in regs:
            a("v_add_f32_dpp v%d, v%d, v%d %s" % (r, r, r, st))
    a.nop(1)


RP = 1024 + 64
UTP = 128 + 64
TBP = 528
XT = 0
YT = 41 * TBP
KT = 45056 if KC else 82 * TBP
K1_LDS = KT + 2576
DSTEPS = ["quad_perm:[1,0,3,2] row_mask:0xf bank_mask:0xf",
          "quad_perm:[2,3,0,1] row_mask:0xf bank_mask:0xf",
          "row_half_mirror row_mask:0xf bank_mask:0xf",
          "row_mirror row_mask:0xf bank_mask:0xf",
          "row_bcast:15 row_mask:0xa bank_mask:0xf",
          "row_bcast:31 row_mask:0xc bank_mask:0xf"]


def prep_row(R, SR):
    a = A()
    XV, T, M = R + 8, R + 16, R + 24
    GW = 24
    for q in range(4):
        a("v_lshlrev_b32 v%d, 16, v%d" % (XV + 2 * q, R + q))
        a("v_and_b32 v%d, s27, v%d" % (XV + 2 * q + 1, R + q))
    for q in range(4):
        a("v_pk_mul_f32 v[%d:%d], v[%d:%d], v[%d:%d]" % (T + 2 * q, T + 2 * q + 1, XV + 2 * q, XV + 2 * q + 1, GW + 2 * q, GW + 2 * q + 1))
    a("v_pk_add_f32 v[%d:%d], v[%d:%d], v[%d:%d]" % (M, M + 1, XV, XV + 1, XV + 2, XV + 3))
    a("v_pk_add_f32 v[%d:%d], v[%d:%d], v[%d:%d]" % (M + 2, M + 3, XV + 4, XV + 5, XV + 6, XV + 7))
    for q in range(4):
        a("v_cvt_pk_bf16_f32 v%d, v%d, v%d" % (M + 4 + q, T + 2 * q, T + 2 * q + 1))
    a("v_pk_add_f32 v[%d:%d], v[%d:%d], v[%d:%d]" % (M, M + 1, M, M + 1, M + 2, M + 3))
    for q in range(4):
        a("v_lshlrev_b32 v%d, 16, v%d" % (T + 2 * q, M + 4 + q))
        a("v_and_b32 v%d, s27, v%d" % (T + 2 * q + 1, M + 4 + q))
    a("v_add_f32 v%d, v%d, v%d" % (M, M, M + 1))
    a("v_pk_add_f32 v[%d:%d], v[%d:%d], v[%d:%d]" % (M + 2, M + 3, T, T + 1, T + 2, T + 3))
    a("v_pk_add_f32 v[%d:%d], v[%d:%d], v[%d:%d]" % (M + 4, M + 5, T + 4, T + 5, T + 6, T + 7))
    a("v_pk_add_f32 v[%d:%d], v[%d:%d], v[%d:%d]" % (M + 2, M + 3, M + 2, M + 3, M + 4, M + 5))
    a("v_add_f32 v%d, v%d, v%d" % (M + 1, M + 2, M + 3))
    a.nop(1)
    for st in DSTEPS:
        a("v_add_f32_dpp v%d, v%d, v%d %s" % (M, M, M, st))
        a("v_add_f32_dpp v%d, v%d, v%d %s" % (M + 1, M + 1, M + 1, st))
        a.nop(1)
    a("v_readlane_b32 s%d, v%d, 63" % (SR, M))
    a("v_readlane_b32 s%d, v%d, 63" % (SR + 1, M + 1))
    a.nop(2)
    G = M + 10
    a("v_mul_f32 v%d, s%d, v60" % (M + 2, SR))
    a("v_mul_f32 v%d, s%d, v60" % (M + 3, SR))
    a("v_mov_b32 v%d, s%d" % (G, SR + 1))
    for q in range(4):
        a("v_pk_add_f32 v[%d:%d], v[%d:%d], v[%d:%d] neg_lo:[0,1] neg_hi:[0,1]" % (T + 2 * q, T + 2 * q + 1, XV + 2 * q, XV + 2 * q + 1, M + 2, M + 3))
    a("v_pk_mul_f32 v[%d:%d], v[%d:%d], v[%d:%d]" % (M + 4, M + 5, T, T + 1, T, T + 1))
    a("v_pk_mul_f32 v[%d:%d], v[%d:%d], v[%d:%d]" % (M + 6, M + 7, T + 2, T + 3, T + 2, T + 3))
    a("v_pk_fma_f32 v[%d:%d], v[%d:%d], v[%d:%d], v[%d:%d]" % (M + 4, M + 5, T + 4, T + 5, T + 4, T + 5, M + 4, M + 5))
    a("v_pk_fma_f32 v[%d:%d], v[%d:%d], v[%d:%d], v[%d:%d]" % (M + 6, M + 7, T + 6, T + 7, T + 6, T + 7, M + 6, M + 7))
    bf16r(a, G)
    a("v_pk_add_f32 v[%d:%d], v[%d:%d], v[%d:%d]" % (M + 4, M + 5, M + 4, M + 5, M + 6, M + 7))
    a("v_mul_f32 v%d, 0x%x, v%d" % (G, f32(-1.4426950408889634), G))
    a("v_add_f32 v%d, v%d, v%d" % (M + 4, M + 4, M + 5))
    a("v_exp_f32 v%d, v%d" % (G, G))
    bf16r(a, M + 2)
    for k, st in enumerate(DSTEPS):
        a("v_add_f32_dpp v%d, v%d, v%d %s" % (M + 4, M + 4, M + 4, st))
        if k == 0:
            a("v_add_f32 v%d, 1.0, v%d" % (G, G))
            a("v_mov_b32 v%d, v%d" % (M + 3, M + 2))
        elif k == 1:
            a("v_rcp_f32 v%d, v%d" % (G, G))
            a.nop(1)
        else:
            a.nop(2)
    a("v_readlane_b32 s%d, v%d, 63" % (SR + 2, M + 4))
    for q in range(4):
        a("v_pk_add_f32 v[%d:%d], v[%d:%d], v[%d:%d] neg_lo:[0,1] neg_hi:[0,1]" % (XV + 2 * q, XV + 2 * q + 1, XV + 2 * q, XV + 2 * q + 1, M + 2, M + 3))
    a("v_mul_f32 v%d, s%d, v60" % (M + 4, SR + 2))
    for q in range(4):
        a("v_cvt_pk_bf16_f32 v%d, v%d, v%d" % (T + q, XV + 2 * q, XV + 2 * q + 1))
    bf16r(a, M + 4)
    bf16r(a, G)
    a("v_add_f32 v%d, v%d, v61" % (M + 4, M + 4))
    for q in range(4):
        a("v_lshlrev_b32 v%d, 16, v%d" % (XV + 2 * q, T + q))
        a("v_and_b32 v%d, s27, v%d" % (XV + 2 * q + 1, T + q))
    bf16r(a, M + 4)
    a("v_sqrt_f32 v%d, v%d" % (M + 4, M + 4))
    a.nop(1)
    bf16r(a, M + 4)
    a("v_rcp_f32 v%d, v%d" % (M + 4, M + 4))
    a.nop(1)
    a("v_mov_b32 v%d, v%d" % (M + 5, M + 4))
    for q in range(4):
        a("v_pk_mul_f32 v[%d:%d], v[%d:%d], v[%d:%d]" % (XV + 2 * q, XV + 2 * q + 1, XV + 2 * q, XV + 2 * q + 1, M + 4, M + 5))
    for q in range(4):
        a("v_cvt_pk_bf16_f32 v%d, v%d, v%d" % (T + q, XV + 2 * q, XV + 2 * q + 1))
    return a.L, T, G


def gen_prep(a, first_wg):
    a.c("---- prep role: wave handles 2 rows, WG = 8 rows")
    a.cur = "prep"
    if not FUSED:
        trace_begin(a)
    stamp(a)
    if first_wg:
        a("s_sub_u32 s2, s2, %d" % first_wg)
    a("s_load_dwordx2 s[4:5], s[0:1], 0")
    a("s_load_dwordx2 s[6:7], s[0:1], 112")
    a("s_load_dwordx2 s[8:9], s[0:1], 136")
    a("v_lshrrev_b32 v1, 6, v0")
    a("v_and_b32 v2, 63, v0")
    a("v_readfirstlane_b32 s3, v1")
    a("v_lshlrev_b32 v3, 4, v2")
    a("s_lshl_b32 s24, s2, 3")
    a("s_lshl_b32 s25, s3, 1")
    a("s_add_u32 s24, s24, s25")
    a("s_lshl_b32 s25, s24, 10")
    a("s_mov_b32 s27, 0xffff0000")
    a("s_waitcnt lgkmcnt(0)")
    srd(a, 12, 4, 2 * MB)
    srd(a, 16, 6, 1024)
    R0, R1 = 64, 104
    a("buffer_load_dwordx4 v[%d:%d], v3, s[12:15], s25 offen" % (R0, R0 + 3))
    a("buffer_load_dwordx4 v[%d:%d], v3, s[12:15], s25 offen offset:1024" % (R1, R1 + 3))
    a("buffer_load_dwordx4 v[12:15], v3, s[16:19], 0 offen")
    a("s_lshr_b32 s40, s2, 3")
    a("s_and_b32 s41, s2, 7")
    a("s_lshl_b32 s42, s40, 16")
    a("s_lshl_b32 s43, s41, 7")
    a("s_add_u32 s42, s42, s43")
    a("v_lshrrev_b32 v44, 3, v0")
    a("v_and_b32 v45, 7, v0")
    a("v_lshlrev_b32 v43, 10, v44")
    a("v_lshl_add_u32 v43, v45, 4, v43")
    a("buffer_load_dwordx4 v[32:35], v43, s[12:15], s42 offen")
    a("s_add_u32 s43, s42, 32768")
    a("buffer_load_dwordx4 v[36:39], v43, s[12:15], s43 offen")
    a("v_mul_u32_u24 v40, %d, v44" % UTP)
    a("v_lshl_add_u32 v40, v45, 4, v40")
    a("v_and_b32 v44, 15, v2")
    a("v_lshrrev_b32 v41, 2, v44")
    a("s_lshl_b32 s44, s3, 4")
    a("v_add_u32 v41, s44, v41")
    a("v_mul_u32_u24 v41, %d, v41" % UTP)
    a("v_and_b32 v44, 3, v44")
    a("v_lshl_add_u32 v41, v44, 3, v41")
    a("v_lshrrev_b32 v44, 4, v2")
    a("v_lshl_add_u32 v41, v44, 5, v41")
    a("v_lshlrev_b32 v42, 12, v2")
    a("s_lshl_b32 s44, s41, 18")
    a("s_lshl_b32 s45, s40, 7")
    a("s_add_u32 s44, s44, s45")
    a("s_lshl_b32 s45, s3, 5")
    a("s_add_u32 s44, s44, s45")
    a("s_add_u32 s44, s44, 0x%x" % WS_UF)
    srd(a, 20, 8, WS_SIZE)
    a("s_mul_i32 s26, s3, %d" % (2 * RP))
    a("v_add_u32 v4, s26, v3")
    a("v_and_b32 v5, 15, v2")
    a("v_lshrrev_b32 v6, 2, v5")
    a("v_mul_u32_u24 v6, %d, v6" % RP)
    a("v_and_b32 v5, 3, v5")
    a("v_lshl_add_u32 v6, v5, 3, v6")
    a("v_lshrrev_b32 v5, 4, v2")
    a("v_lshl_add_u32 v6, v5, 5, v6")
    a("s_lshl_b32 s26, s3, 8")
    a("v_add_u32 v6, s26, v6")
    a("v_lshrrev_b32 v7, 5, v2")
    a("s_lshl_b32 s26, s3, 2")
    a("v_add_u32 v7, s26, v7")
    a("v_lshlrev_b32 v7, 17, v7")
    a("v_and_b32 v5, 31, v2")
    a("v_lshl_add_u32 v7, v5, 4, v7")
    a("s_lshl_b32 s28, s2, 9")
    a("s_add_u32 s29, s28, %d" % (2 * 131072))
    a("v_mov_b32 v60, 0x%x" % f32(1.0 / 512))
    a("v_mov_b32 v61, 0x%x" % f32(1e-5))
    a("s_lshl_b32 s30, s24, 2")
    a("s_add_u32 s30, s30, 0x%x" % WS_GT)
    a("v_mov_b32 v8, 0")
    a("s_waitcnt vmcnt(2)")
    stamp(a)
    for q in range(4):
        a("v_lshlrev_b32 v%d, 16, v%d" % (24 + 2 * q, 12 + q))
        a("v_and_b32 v%d, s27, v%d" % (25 + 2 * q, 12 + q))
    L0, T0, G0 = prep_row(R0, 32)
    L1, T1, G1 = prep_row(R1, 36)
    for x, y in zip(L0, L1):
        if "s_nop 0" in x:
            continue
        if "s_nop 1" in x:
            a("s_nop 0")
            continue
        a.L.append(x)
        a.L.append(y)
    a("s_waitcnt vmcnt(0)")
    a("ds_write_b128 v40, v[32:35] offset:%d" % (8 * RP))
    a("ds_write_b128 v40, v[36:39] offset:%d" % (8 * RP + 32 * UTP))
    a("ds_write_b128 v4, v[%d:%d]" % (T0, T0 + 3))
    a("ds_write_b128 v4, v[%d:%d] offset:%d" % (T1, T1 + 3, RP))
    GL = 8 * RP + 64 * UTP
    a("s_lshl_b32 s31, s3, 3")
    a("v_mov_b32 v9, s31")
    a("s_mov_b64 exec, 1")
    a("ds_write2_b32 v9, v%d, v%d offset0:%d offset1:%d" % (G0, G1, 0, 1) if False else "v_add_u32 v9, %d, v9" % GL)
    a("ds_write2_b32 v9, v%d, v%d offset0:0 offset1:1" % (G0, G1))
    a("s_mov_b64 exec, -1")
    a("s_waitcnt lgkmcnt(0)")
    a("s_barrier")
    stamp(a)
    for p in range(2):
        a("ds_read_b64_tr_b16 v[%d:%d], v6 offset:%d" % (8 + 4 * p, 9 + 4 * p, 128 * p))
        a("ds_read_b64_tr_b16 v[%d:%d], v6 offset:%d" % (10 + 4 * p, 11 + 4 * p, 4 * RP + 128 * p))
    for p in range(2):
        for h in range(2):
            a("ds_read_b64_tr_b16 v[%d:%d], v41 offset:%d" % (32 + 4 * p + 2 * h, 33 + 4 * p + 2 * h, 8 * RP + (8 * p + 4 * h) * UTP))
    a("s_waitcnt lgkmcnt(6)")
    a("buffer_store_dwordx4 v[8:11], v7, s[20:23], s28 offen" + SC)
    a("s_waitcnt lgkmcnt(4)")
    a("buffer_store_dwordx4 v[12:15], v7, s[20:23], s29 offen" + SC)
    a("v_mul_u32_u24 v42, 144, v2")
    a("s_lshl_b32 s45, s3, 5")
    a("v_add_u32 v42, s45, v42")
    a("s_waitcnt lgkmcnt(0)")
    a("ds_write_b128 v42, v[32:35] offset:%d" % (GL + 64))
    a("ds_write_b128 v42, v[36:39] offset:%d" % (GL + 64 + 16))
    a("v_lshrrev_b32 v44, 3, v0")
    a("v_and_b32 v45, 7, v0")
    a("v_mul_u32_u24 v42, 144, v44")
    a("v_lshl_add_u32 v42, v45, 4, v42")
    a("v_lshlrev_b32 v43, 12, v44")
    a("v_lshl_add_u32 v43, v45, 4, v43")
    a("s_lshl_b32 s44, s41, 18")
    a("s_lshl_b32 s45, s40, 7")
    a("s_add_u32 s44, s44, s45")
    a("s_add_u32 s44, s44, 0x%x" % WS_UF)
    a("s_add_u32 s45, s44, %d" % (32 * 4096))
    a("v_lshlrev_b32 v9, 2, v2")
    a("s_lshl_b32 s30, s2, 5")
    a("s_add_u32 s30, s30, 0x%x" % WS_GT)
    a("s_waitcnt lgkmcnt(0)")
    a("s_barrier")
    a("ds_read_b128 v[32:35], v42 offset:%d" % (GL + 64))
    a("ds_read_b128 v[36:39], v42 offset:%d" % (GL + 64 + 32 * 144))
    a("ds_read_b32 v10, v9 offset:%d" % GL)
    a("s_waitcnt lgkmcnt(2)")
    a("buffer_store_dwordx4 v[32:35], v43, s[20:23], s44 offen" + SC)
    a("s_waitcnt lgkmcnt(1)")
    a("buffer_store_dwordx4 v[36:39], v43, s[20:23], s45 offen" + SC)
    a("s_waitcnt lgkmcnt(0)")
    a("s_cmp_lg_u32 s3, 0")
    a("s_cbranch_scc1 L_prep_nog")
    a("s_mov_b64 exec, 0xff")
    a("buffer_store_dword v10, v9, s[20:23], s30 offen" + SC)
    a("s_mov_b64 exec, -1")
    a.lab("L_prep_nog")
    if FUSED:
        a("s_load_dwordx2 s[40:41], s[0:1], 128")
        a("s_waitcnt vmcnt(0) lgkmcnt(0)")
        a("s_barrier")
        a("s_mov_b32 s42, 256")
        a("s_mov_b32 s43, 0x00020000")
        a("s_cmp_lg_u32 s3, 0")
        a("s_cbranch_scc1 L_prep_noflag")
        a("v_mov_b32 v9, 1")
        a("v_mov_b32 v8, 0")
        a("s_mov_b64 exec, 1")
        a("s_and_b32 s44, s2, 63")
        a("s_lshl_b32 s44, s44, 2")
        a("buffer_atomic_add v9, v8, s[40:43], s44 offen sc1")
        a("s_mov_b64 exec, -1")
        a.lab("L_prep_noflag")
        if "trace" in X:
            a("s_memrealtime s[86:87]")
            a("s_waitcnt lgkmcnt(0)")
        return
    stamp(a)
    dump_stamps(a, 5)
    trace_end(a, 0)
    a("s_endpgm")


def gen_utr(a, first_wg):
    a.c("---- U transposer role: tile 64 s x 64 d -> UT[d][s]")
    a.cur = "utr"
    trace_begin(a)
    a("s_sub_u32 s2, s2, %d" % first_wg)
    a("s_load_dwordx2 s[4:5], s[0:1], 0")
    a("s_load_dwordx2 s[8:9], s[0:1], 136")
    a("v_lshrrev_b32 v1, 6, v0")
    a("v_and_b32 v2, 63, v0")
    a("v_readfirstlane_b32 s3, v1")
    a("s_lshr_b32 s20, s2, 3")
    a("s_and_b32 s21, s2, 7")
    a("s_lshl_b32 s22, s20, 16")
    a("s_lshl_b32 s23, s21, 7")
    a("s_add_u32 s22, s22, s23")
    a("v_lshrrev_b32 v3, 3, v0")
    a("v_and_b32 v4, 7, v0")
    a("v_lshlrev_b32 v5, 10, v3")
    a("v_lshl_add_u32 v5, v4, 4, v5")
    a("v_mul_u32_u24 v6, %d, v3" % UTP)
    a("v_lshl_add_u32 v6, v4, 4, v6")
    a("s_waitcnt lgkmcnt(0)")
    srd(a, 12, 4, 2 * MB)
    a("buffer_load_dwordx4 v[8:11], v5, s[12:15], s22 offen")
    a("s_add_u32 s23, s22, 32768")
    a("buffer_load_dwordx4 v[12:15], v5, s[12:15], s23 offen")
    srd(a, 16, 8, WS_SIZE)
    a("v_and_b32 v3, 15, v2")
    a("v_lshrrev_b32 v4, 2, v3")
    a("s_lshl_b32 s24, s3, 4")
    a("v_add_u32 v4, s24, v4")
    a("v_mul_u32_u24 v4, %d, v4" % UTP)
    a("v_and_b32 v3, 3, v3")
    a("v_lshl_add_u32 v4, v3, 3, v4")
    a("v_lshrrev_b32 v3, 4, v2")
    a("v_lshl_add_u32 v4, v3, 5, v4")
    a("v_lshlrev_b32 v7, 12, v2")
    a("s_lshl_b32 s24, s21, 18")
    a("s_lshl_b32 s25, s20, 7")
    a("s_add_u32 s24, s24, s25")
    a("s_lshl_b32 s25, s3, 5")
    a("s_add_u32 s24, s24, s25")
    a("s_add_u32 s24, s24, 0x%x" % WS_UF)
    a("s_waitcnt vmcnt(1)")
    a("ds_write_b128 v6, v[8:11]")
    a("s_waitcnt vmcnt(0)")
    a("ds_write_b128 v6, v[12:15] offset:%d" % (32 * UTP))
    a("s_waitcnt lgkmcnt(0)")
    a("s_barrier")
    for p in range(2):
        for h in range(2):
            a("ds_read_b64_tr_b16 v[%d:%d], v4 offset:%d" % (8 + 4 * p + 2 * h, 9 + 4 * p + 2 * h, (8 * p + 4 * h) * UTP))
    a("s_waitcnt lgkmcnt(2)")
    a("buffer_store_dwordx4 v[8:11], v7, s[16:19], s24 offen")
    a("s_waitcnt lgkmcnt(0)")
    a("buffer_store_dwordx4 v[12:15], v7, s[16:19], s24 offen offset:16")
    trace_end(a, 0)
    a("s_endpgm")


def gen_kgen(a, first_wg):
    a.c("---- kgen role: one channel per workgroup")
    a.cur = "kgen"
    if not KC:
        trace_begin(a)
    stamp(a)
    if first_wg:
        a("s_sub_u32 s2, s2, %d" % first_wg)
    a("s_load_dwordx4 s[28:31], s[0:1], 8")
    a("s_load_dwordx4 s[32:35], s[0:1], 24")
    a("s_load_dwordx4 s[36:39], s[0:1], 40")
    a("s_load_dwordx2 s[40:41], s[0:1], 56")
    a("s_load_dwordx2 s[4:5], s[0:1], 136")
    a("s_load_dwordx2 s[6:7], s[0:1], 80")
    a("v_lshrrev_b32 v1, 6, v0")
    a("v_and_b32 v2, 63, v0")
    a("v_readfirstlane_b32 s3, v1")
    a("v_and_b32 v3, 127, v0")
    a("v_lshlrev_b32 v4, 1, v3")
    a("s_lshl_b32 s20, s2, 8")
    a("s_lshl_b32 s25, s2, 1")
    a("v_mov_b32 v6, 0")
    a("s_waitcnt lgkmcnt(0)")
    for k in range(6):
        srd(a, 44 + 4 * k, 28 + 2 * k, 131072)
        a("buffer_load_ushort v%d, v4, s[%d:%d], s20 offen" % (10 + k, 44 + 4 * k, 47 + 4 * k))
    srd(a, 12, 40, 1024)
    a("buffer_load_ushort v16, v6, s[12:15], s25 offen")
    if "pf1" in X:
        srd(a, 68, 6, 2048 * 1792 * 2)
        a("s_lshl_b32 s26, s2, 14")
        a("v_lshlrev_b32 v5, 4, v0")
        for k in range(4):
            a("buffer_load_dwordx4 v[%d:%d], v5, s[68:71], s26 offen" % (128 + 4 * k, 131 + 4 * k))
            if k < 3:
                a("s_add_u32 s26, s26, 4096")
    srd(a, 8, 4, WS_SIZE)
    a("s_cmp_ge_u32 s3, 2")
    a("s_cselect_b32 s26, %d, %d" % (XT, YT))
    a("s_cselect_b32 s27, 0x%x, 0x%x" % (f32(16.0), f32(1.0)))
    a("s_cselect_b32 s36, 0x%x, 0x%x" % (f32(0.15915494309189535), f32(-0.15915494309189535)))
    a("v_lshlrev_b32 v8, 2, v3")
    a("v_add_u32 v8, s26, v8")
    a("v_lshlrev_b32 v28, 3, v0")
    a("v_sub_u32 v28, 2047, v28")
    a("s_mov_b32 s28, 0xffff")
    a("s_mov_b32 s29, %d" % (0x4300 - 128))
    for j in range(8):
        a("v_subrev_u32 v%d, %d, v28" % (48 + j, j))
        a("v_cvt_f32_u32 v%d, v%d" % (56 + j, 48 + j))
    for j in range(0, 8, 2):
        a("v_cvt_pk_bf16_f32 v%d, v%d, v%d" % (56 + j, 56 + j, 57 + j))
    for j in range(0, 8, 2):
        a("v_lshrrev_b32 v%d, 16, v%d" % (57 + j, 56 + j))
        a("v_and_b32 v%d, s28, v%d" % (56 + j, 56 + j))
    for j in range(8):
        a("v_subrev_u32 v%d, s29, v%d" % (56 + j, 56 + j))
    for j in range(8):
        a("v_min_u32 v%d, 0x80, v%d" % (48 + j, 48 + j))
    for j in range(8):
        a("v_max_i32 v%d, v%d, v%d" % (56 + j, 56 + j, 48 + j))
    for j in range(8):
        a("v_lshlrev_b32 v%d, 2, v%d" % (56 + j, 56 + j))
    a("v_and_b32 v9, 15, v2")
    a("v_lshrrev_b32 v17, 4, v2")
    a("s_lshl_b32 s26, s3, 3")
    a("s_add_u32 s26, s26, 8")
    a("s_cmp_eq_u32 s3, 0")
    a("s_cselect_b32 s26, 0, s26")
    a("v_add_u32 v18, s26, v9")
    a("v_mul_u32_u24 v18, %d, v18" % TBP)
    a("v_lshl_add_u32 v18, v17, 4, v18")
    a("v_lshlrev_b32 v19, s3, v9")
    a("v_or_b32 v29, 8, v19")
    a("v_ffbh_u32 v29, v29")
    a("v_sub_u32 v29, 28, v29")
    a("v_lshrrev_b32 v19, v29, v19")
    a("v_lshl_add_u32 v19, v29, 3, v19")
    a("v_mul_u32_u24 v19, %d, v19" % TBP)
    a("v_lshl_add_u32 v19, v17, 4, v19")
    a("s_waitcnt vmcnt(%d)" % (4 if "pf1" in X else 0))
    for k in range(7):
        a("v_lshlrev_b32 v%d, 16, v%d" % (10 + k, 10 + k))
    a("v_mul_f32 v16, 0x%x, v16" % f32(1.4426950408889634))
    a("v_exp_f32 v16, v16")
    a.nop(1)
    bf16r(a, 16)
    a("v_mul_f32 v20, v16, v10")
    a("v_mul_f32 v21, v16, v11")
    a("v_mul_f32 v12, v16, v12")
    a("v_mul_f32 v13, v16, v13")
    a("v_mul_f32 v20, 0x%x, v20" % f32(1.4426950408889634))
    a("v_mul_f32 v21, s36, v21")
    a("v_mul_f32 v20, s27, v20")
    a("v_mul_f32 v21, s27, v21")
    a("v_mul_f32 v22, v14, v12")
    a("v_mul_f32 v23, v14, v13")
    a("v_fract_f32 v21, v21")
    a("v_exp_f32 v20, v20")
    a("v_fma_f32 v22, -v15, v13, v22")
    a("v_fma_f32 v23, v15, v12, v23")
    a("v_cos_f32 v24, v21")
    a("v_sin_f32 v25, v21")
    a("v_mov_b32 v26, 1.0")
    a("v_mov_b32 v27, 0")
    a("v_mul_f32 v24, v20, v24")
    a("v_mul_f32 v25, v20, v25")
    a("s_cmp_ge_u32 s3, 2")
    a("s_cbranch_scc0 L_kg_y")
    a("v_mov_b32 v26, v22")
    a("v_mov_b32 v27, v23")
    a.lab("L_kg_y")

    def cmul(dst, x, w):
        a("v_pk_mul_f32 v[30:31], v[%d:%d], v[%d:%d] op_sel:[0,0] op_sel_hi:[1,0]" % (x, x + 1, w, w + 1))
        a("v_pk_fma_f32 v[%d:%d], v[%d:%d], v[%d:%d], v[30:31] op_sel:[1,1,0] op_sel_hi:[0,1,1] neg_lo:[1,0,0]" %
          (dst, dst + 1, x, x + 1, w, w + 1))

    W = [24, 32, 34, 36]
    for k in range(1, 4):
        cmul(W[k], W[k - 1], W[k - 1])
    if "k1slow" in X:
        a("v_mov_b32 v38, v26")
        a("v_mov_b32 v39, v27")
        a("s_mov_b32 s21, 200")
        a.lab("L_slow")
        cmul(38, 38, 24)
        cmul(38, 38, 24)
        a("s_sub_u32 s21, s21, 1")
        a("s_cmp_lg_u32 s21, 0")
        a("s_cbranch_scc1 L_slow")
    for row in range(41):
        a("v_cvt_pk_bf16_f32 v%d, v26, v27" % (40 + (row & 3)))
        if row < 40:
            cmul(26, 26, W[0] if row < 16 else (W[1] if row < 24 else (W[2] if row < 32 else W[3])))
        if row & 1:
            a("ds_write2_b32 v8, v%d, v%d offset0:%d offset1:%d" % (40 + ((row - 1) & 3), 40 + (row & 3), 0, TBP // 4))
            if row < 40:
                a("v_add_u32 v8, %d, v8" % (2 * TBP))
        elif row == 40:
            a("ds_write_b32 v8, v%d" % (40 + (row & 3)))
    a("s_waitcnt lgkmcnt(0)")
    a("s_barrier")
    stamp(a)
    for kap in range(8):
        a("ds_read_b128 v[%d:%d], v18 offset:%d" % (64 + 8 * kap, 67 + 8 * kap, XT + 64 * kap))
        a("ds_read_b128 v[%d:%d], v19 offset:%d" % (68 + 8 * kap, 71 + 8 * kap, YT + 64 * kap))
    a("s_lshl_b32 s26, s3, 7")
    a("s_add_u32 s26, s26, 128")
    a("s_cmp_eq_u32 s3, 0")
    a("s_cselect_b32 s26, 0, s26")
    a("s_mov_b32 s27, 128")
    a("s_cselect_b32 s27, 256, s27")
    a("s_cmp_eq_u32 s3, 3")
    a("s_cselect_b32 s27, 129, s27")
    a("v_lshl_add_u32 v13, v17, 6, v9")
    a("v_add_u32 v15, s26, v13")
    a("v_lshlrev_b32 v15, 2, v15")
    for kap in range(8):
        a("s_waitcnt lgkmcnt(%d)" % (14 - 2 * kap))
        c0 = "0" if kap == 0 else "v[44:47]"
        a("v_mfma_f32_16x16x32_bf16 v[44:47], v[%d:%d], v[%d:%d], %s" % (64 + 8 * kap, 67 + 8 * kap, 68 + 8 * kap, 71 + 8 * kap, c0))
    a("s_lshl_b32 s22, s2, 12")
    a("s_add_u32 s22, s22, 0x%x" % WS_RK)
    a("v_lshlrev_b32 v3, 4, v0")
    a.nop(5)
    for reg in range(4):
        a("v_add_u32 v14, %d, v13" % (16 * reg))
        a("v_cmp_gt_u32 vcc, s27, v14")
        a("s_and_saveexec_b64 s[30:31], vcc")
        a("ds_write_b32 v15, v%d offset:%d" % (44 + reg, KT + 64 * reg))
        a("s_mov_b64 exec, s[30:31]")
    if FUSED:
        poll_flags(a, "cv")
    a("s_waitcnt lgkmcnt(0)")
    a("s_barrier")
    stamp(a)
    if KC:
        return
    for j in range(8):
        a("ds_read_b32 v%d, v%d offset:%d" % (64 + j, 56 + j, KT))
    a("s_waitcnt lgkmcnt(0)")
    for q in range(4):
        a("v_cvt_pk_bf16_f32 v%d, v%d, v%d" % (8 + q, 64 + 2 * q, 65 + 2 * q))
    a("buffer_store_dwordx4 v[8:11], v3, s[8:11], s22 offen")
    stamp(a)
    dump_stamps(a, 77, 64)
    trace_end(a, 0)
    a("s_endpgm")


CP = 4416
UB = 8 * CP
UP = 144
K2_LDS = 52480


def gen_conv(a, first_wg):
    a.c("---- conv role: one channel per workgroup")
    a.cur = "conv"
    if not KC:
        trace_begin(a)
    stamp(a)
    if KC:
        for j in range(8):
            a("ds_read_b32 v%d, v%d offset:%d" % (64 + j, 56 + j, KT))
    if first_wg:
        a("s_sub_u32 s2, s2, %d" % first_wg)
    a("s_load_dwordx2 s[4:5], s[0:1], 136")
    a("s_load_dwordx2 s[6:7], s[0:1], 96")
    a("s_load_dwordx2 s[42:43], s[0:1], 64")
    a("v_lshrrev_b32 v1, 6, v0")
    a("v_and_b32 v2, 63, v0")
    a("v_readfirstlane_b32 s3, v1")
    a("s_lshl_b32 s25, s2, 1")
    a("v_mov_b32 v6, 0")
    a("v_lshlrev_b32 v3, 4, v0")
    a("s_lshl_b32 s21, s2, 12")
    a("s_add_u32 s20, s21, 0x%x" % WS_RK)
    a("s_add_u32 s22, s21, 0x%x" % WS_UF)
    a("s_add_u32 s23, s21, 0x%x" % WS_AF)
    a("s_waitcnt lgkmcnt(0)")
    if not KC:
        a("s_add_u32 s12, s4, s20")
        a("s_addc_u32 s13, s5, 0")
        a("s_mov_b32 s14, 4096")
        a("s_mov_b32 s15, 0x00020000")
        a("buffer_load_dwordx4 v[8:11], v3, s[12:15], 0 offen")
        a("buffer_load_dwordx4 v[12:15], v3, s[12:15], 0 offen offset:16")
    else:
        for q in range(4):
            a("v_cvt_pk_bf16_f32 v%d, v%d, v%d" % (8 + q, 64 + 2 * q, 65 + 2 * q))
        a("ds_write_b128 v3, v[8:11]")
    srd(a, 8, 4, WS_SIZE)
    a("buffer_load_dwordx4 v[152:155], v3, s[8:11], s22 offen")
    srd(a, 16, 42, 1024)
    a("v_lshlrev_b32 v7, 5, v0")
    a("s_mov_b32 s24, 0x%x" % WS_GT)
    a("buffer_load_dwordx4 v[156:159], v7, s[8:11], s24 offen")
    a("buffer_load_dwordx4 v[160:163], v7, s[8:11], s24 offen offset:16")
    a("buffer_load_ushort v164, v6, s[16:19], s25 offen")
    NPF = 0
    if "pf2" in X:
        NPF = 4
        srd(a, 68, 6, 2048 * 1792 * 2)
        a("s_lshl_b32 s26, s2, 14")
        for k in range(4):
            a("buffer_load_dwordx4 v[%d:%d], v3, s[68:71], s26 offen" % (128 + 4 * k, 131 + 4 * k))
            if k < 3:
                a("s_add_u32 s26, s26, 4096")
    for k in range(4):
        a("v_mov_b32 v%d, 0" % (48 + k))
    a("ds_write_b128 v3, v[48:51] offset:%d" % UB)
    a("v_lshrrev_b32 v4, 3, v2")
    a("v_mul_u32_u24 v4, %d, v4" % CP)
    a("v_and_b32 v7, 7, v2")
    a("v_lshl_add_u32 v4, v7, 4, v4")
    a("v_add_u32 v4, 4096, v4")
    a("v_add_u32 v5, %d, v3" % (UB + 4096))
    a("s_cmp_eq_u32 s3, 0")
    a("s_cbranch_scc1 L_cv_z0")
    a("s_cmp_eq_u32 s3, 1")
    a("s_cbranch_scc0 L_cv_z1")
    a("ds_write_b128 v4, v[48:51]")
    a("s_branch L_cv_z1")
    a.lab("L_cv_z0")
    a("s_mov_b32 exec_hi, 0")
    a("ds_write_b128 v5, v[48:51]")
    a("s_mov_b64 exec, -1")
    a.lab("L_cv_z1")
    a("v_lshrrev_b32 v6, 3, v0")
    a("v_mul_u32_u24 v6, %d, v6" % UP)
    a("v_and_b32 v7, 7, v0")
    a("v_lshl_add_u32 v6, v7, 4, v6")
    a("v_and_b32 v20, 31, v2")
    a("v_lshrrev_b32 v21, 5, v2")
    a("v_and_b32 v22, 7, v20")
    a("v_sub_u32 v22, 7, v22")
    a("v_mul_u32_u24 v22, %d, v22" % CP)
    a("v_lshrrev_b32 v23, 3, v20")
    a("v_sub_u32 v23, v21, v23")
    a("v_lshl_add_u32 v22, v23, 4, v22")
    a("s_lshl_b32 s28, s3, 9")
    a("s_sub_u32 s30, %d, s28" % (16 * 255 - 128 * 3 - 64))
    a("v_add_u32 v18, s30, v22")
    a("v_mul_u32_u24 v23, %d, v20" % UP)
    a("v_lshl_add_u32 v23, v21, 4, v23")
    a("s_mul_i32 s29, s3, %d" % (4 * UP))
    a("s_sub_u32 s30, %d, s29" % (UB + UP * 29))
    a("v_add_u32 v19, s30, v23")
    a("v_and_b32 v22, 15, v2")
    a("v_lshrrev_b32 v23, 4, v2")
    a("v_and_b32 v16, 7, v2")
    a("v_sub_u32 v16, 7, v16")
    a("v_mul_u32_u24 v16, %d, v16" % CP)
    a("v_lshrrev_b32 v17, 3, v22")
    a("v_sub_u32 v17, v23, v17")
    a("v_lshl_add_u32 v16, v17, 4, v16")
    a("s_sub_u32 s30, %d, s28" % (16 * 255 - 128 * 16 - 128 * 3 - 96))
    a("v_add_u32 v16, s30, v16")
    a("v_mul_u32_u24 v17, %d, v22" % UP)
    a("v_lshl_add_u32 v17, v23, 4, v17")
    a("s_sub_u32 s30, %d, s29" % (UB + UP * 29))
    a("v_add_u32 v17, s30, v17")
    a("v_mul_u32_u24 v7, 272, v22")
    a("v_lshl_add_u32 v7, v23, 4, v7")
    if KC:
        a("s_waitcnt lgkmcnt(0)")
        a("s_barrier")
        a("ds_read_b128 v[12:15], v3 offset:16")
        a("s_waitcnt lgkmcnt(0)")
    else:
        a("s_waitcnt vmcnt(%d)" % (4 + NPF))
    for k in range(1, 8):
        a("v_mov_b32 v%d, v%d" % (65 + k, 8 + k))
    for k in range(7):
        a("v_alignbit_b32 v%d, v%d, v%d, 16" % (74 + k, 9 + k, 8 + k))
    for k in range(1, 7):
        a("v_alignbit_b32 v%d, v%d, v%d, 16" % (83 + k, 9 + k, 8 + k))
    src = {0: 8, 2: 66, 4: 10, 6: 68, 1: 74, 3: 84, 5: 76, 7: 86}
    for s in range(1 if KC else 0, 8):
        a("ds_write_b128 v3, v[%d:%d] offset:%d" % (src[s], src[s] + 3, s * CP))
    a("s_waitcnt vmcnt(%d)" % (3 + NPF))
    a("ds_write_b128 v6, v[152:155] offset:%d" % (UB + 32 * UP))
    a("s_waitcnt lgkmcnt(0)")
    a("s_barrier")
    stamp(a)
    ACC = [64, 80]
    D16 = 136
    FA = [24 + 4 * k for k in range(10)]
    FB = [[96 + 4 * k for k in range(4)], [112 + 4 * k for k in range(4)]]
    free = list(range(10))

    def loadA(step, rel):
        sl = free.pop(0)
        if step < 4:
            a("ds_read_b128 v[%d:%d], v18 offset:%d" % (FA[sl], FA[sl] + 3, 128 * (3 - step) + 64 - 2 * rel))
        else:
            a("ds_read_b128 v[%d:%d], v16 offset:%d" % (FA[sl], FA[sl] + 3, 128 * (7 - step) + 96 - 2 * rel))
        return sl

    def loadB(step):
        if step < 4:
            for k in range(4):
                a("ds_read_b128 v[%d:%d], v19 offset:%d" % (FB[step & 1][k], FB[step & 1][k] + 3, UP * (3 - step) + 32 * k))
            return 4
        for k in range(2):
            a("ds_read_b128 v[%d:%d], v17 offset:%d" % (FB[step & 1][k], FB[step & 1][k] + 3, UP * (7 - step) + 64 * k))
        return 2

    R32 = (-48, -32, -16, 0, 16, 32)
    R16 = (-32, -16, 0, 16, 32, 48)
    cur = {}
    for rel in R32:
        cur[rel] = loadA(0, rel)
    loadB(0)
    for step in range(8):
        nxt = {}
        n = 0
        if step < 7:
            RN = R32 if step + 1 < 4 else R16
            if step + 1 == 4:
                for rel in RN[:4]:
                    nxt[rel] = loadA(step + 1, rel)
                n = 4
            else:
                nxt[RN[0]] = cur[RN[4]]
                nxt[RN[1]] = cur[RN[5]]
                for rel in RN[2:]:
                    nxt[rel] = loadA(step + 1, rel)
                n = 4
            n += loadB(step + 1)
            a("s_waitcnt lgkmcnt(%d)" % n)
        else:
            a("s_waitcnt lgkmcnt(0)")
        if step < 4:
            for k in range(4):
                for beta in range(2):
                    rel = 32 * beta - 16 * k
                    c = "0" if (step == 0 and k == 0) else "v[%d:%d]" % (ACC[beta], ACC[beta] + 15)
                    a("v_mfma_f32_32x32x16_bf16 v[%d:%d], v[%d:%d], v[%d:%d], %s" %
                      (ACC[beta], ACC[beta] + 15, FA[cur[rel]], FA[cur[rel]] + 3, FB[step & 1][k], FB[step & 1][k] + 3, c))
        else:
            for ki in range(2):
                for mi in range(4):
                    rel = 16 * mi - 32 * ki
                    d = D16 + 4 * mi
                    c = "0" if (step == 4 and ki == 0) else "v[%d:%d]" % (d, d + 3)
                    a("v_mfma_f32_16x16x32_bf16 v[%d:%d], v[%d:%d], v[%d:%d], %s" %
                      (d, d + 3, FA[cur[rel]], FA[cur[rel]] + 3, FB[step & 1][ki], FB[step & 1][ki] + 3, c))
        RC = R32 if step < 4 else R16
        if step == 3:
            for rel in RC:
                free.append(cur[rel])
            for rel in R16[4:]:
                nxt[rel] = loadA(4, rel)
        else:
            for rel in RC[:4]:
                free.append(cur[rel])
        cur = nxt
    a("v_mul_u32_u24 v24, 272, v20")
    a("v_lshl_add_u32 v24, v21, 4, v24")
    a("s_mul_i32 s28, s3, 8704")
    a("v_add_u32 v24, s28, v24")
    a("v_lshrrev_b32 v25, 3, v0")
    a("v_mul_u32_u24 v25, 272, v25")
    a("v_and_b32 v26, 7, v0")
    a("v_lshl_add_u32 v25, v26, 5, v25")
    a("s_mov_b32 s27, 0xffff0000")
    a("s_waitcnt vmcnt(0)")
    a("s_barrier")
    if "cv3" in X:
        trace_end(a, 1)
        a("s_endpgm")
    stamp(a)
    a.nop(4)
    for beta in range(2):
        for rq in range(4):
            a("ds_write_b128 v24, v[%d:%d] offset:%d" % (ACC[beta] + 4 * rq, ACC[beta] + 4 * rq + 3, (32 * beta + 8 * rq) * 4))
    a("s_mul_i32 s29, s3, 4352")
    a("v_add_u32 v7, s29, v7")
    for mi in range(4):
        a("ds_write_b128 v7, v[%d:%d] offset:%d" % (D16 + 4 * mi, D16 + 4 * mi + 3, 34816 + 64 * mi))
    a("v_lshlrev_b32 v164, 16, v164")
    a("v_mov_b32 v165, v164")
    for q in range(4):
        a("v_lshlrev_b32 v%d, 16, v%d" % (128 + 2 * q, 152 + q))
        a("v_and_b32 v%d, s27, v%d" % (129 + 2 * q, 152 + q))
    for q in range(4):
        a("v_pk_mul_f32 v[%d:%d], v[%d:%d], v[164:165]" % (128 + 2 * q, 129 + 2 * q, 128 + 2 * q, 129 + 2 * q))
    a("s_waitcnt lgkmcnt(0)")
    a("s_barrier")
    for w in range(4):
        a("ds_read_b128 v[%d:%d], v25 offset:%d" % (32 + 8 * w, 35 + 8 * w, w * 8704))
        a("ds_read_b128 v[%d:%d], v25 offset:%d" % (36 + 8 * w, 39 + 8 * w, w * 8704 + 16))
    a("s_cmp_lt_u32 s3, 2")
    a("s_cbranch_scc1 L_cv_no16")
    for w in range(4):
        a("ds_read_b128 v[%d:%d], v25 offset:%d" % (96 + 8 * w, 99 + 8 * w, 34816 - 16 * 272 + w * 4352))
        a("ds_read_b128 v[%d:%d], v25 offset:%d" % (100 + 8 * w, 103 + 8 * w, 34816 - 16 * 272 + w * 4352 + 16))
    a("s_waitcnt lgkmcnt(0)")
    for w in range(4):
        for q in range(4):
            a("v_pk_add_f32 v[%d:%d], v[%d:%d], v[%d:%d]" % (128 + 2 * q, 129 + 2 * q, 128 + 2 * q, 129 + 2 * q, 96 + 8 * w + 2 * q, 97 + 8 * w + 2 * q))
    a.lab("L_cv_no16")
    a("s_waitcnt lgkmcnt(4)")
    for q in range(4):
        a("v_pk_add_f32 v[%d:%d], v[%d:%d], v[%d:%d]" % (32 + 2 * q, 33 + 2 * q, 32 + 2 * q, 33 + 2 * q, 40 + 2 * q, 41 + 2 * q))
    a("s_waitcnt lgkmcnt(0)")
    for q in range(4):
        a("v_pk_add_f32 v[%d:%d], v[%d:%d], v[%d:%d]" % (48 + 2 * q, 49 + 2 * q, 48 + 2 * q, 49 + 2 * q, 56 + 2 * q, 57 + 2 * q))
    for q in range(4):
        a("v_pk_add_f32 v[%d:%d], v[%d:%d], v[%d:%d]" % (32 + 2 * q, 33 + 2 * q, 32 + 2 * q, 33 + 2 * q, 48 + 2 * q, 49 + 2 * q))
    for q in range(4):
        a("v_pk_add_f32 v[%d:%d], v[%d:%d], v[%d:%d]" % (32 + 2 * q, 33 + 2 * q, 32 + 2 * q, 33 + 2 * q, 128 + 2 * q, 129 + 2 * q))
    for q in range(4):
        a("v_pk_mul_f32 v[%d:%d], v[%d:%d], v[%d:%d]" % (32 + 2 * q, 33 + 2 * q, 32 + 2 * q, 33 + 2 * q, 156 + 2 * q, 157 + 2 * q))
    for q in range(4):
        a("v_cvt_pk_bf16_f32 v%d, v%d, v%d" % (72 + q, 32 + 2 * q, 33 + 2 * q))
    a("buffer_store_dwordx4 v[72:75], v3, s[8:11], s23 offen")
    if "pf2e" in X:
        srd(a, 68, 6, 2048 * 1792 * 2)
        a("s_lshl_b32 s26, s2, 14")
        for k in range(4):
            a("buffer_load_dwordx4 v[%d:%d], v3, s[68:71], s26 offen" % (128 + 4 * k, 131 + 4 * k))
            if k < 3:
                a("s_add_u32 s26, s26, 4096")
    stamp(a)
    dump_stamps(a, 77, 64)
    trace_end(a, 0 if FUSED else 1)
    a("s_endpgm")


TP = 144
RED = 49152
K3_LDS = 65536 + 64 * TP


def gen_gemm(a, which):
    g1 = (which == 1)
    NOCT = 256 if g1 else 224
    S = 32 if g1 else 28
    NS = 6 if g1 else 8
    for tok in X.split(","):
        if tok.startswith("ns%d=" % which):
            NS = int(tok[4:])
    PW = 3584 if g1 else 4096
    WOFF = 80 if g1 else 96
    WBYTES = 2048 * 1792 * 2
    DOFF = WS_HF if g1 else WS_GF
    TPITCH = NOCT * 512
    NQ = 28 if g1 else 32
    TBASE = 65536
    a.c("---- gemm%d role" % which)
    a.cur = "g%d" % which
    trace_begin(a)
    stamp(a)
    a("s_load_dwordx2 s[4:5], s[0:1], %d" % WOFF)
    a("s_load_dwordx2 s[6:7], s[0:1], 136")
    a("s_load_dwordx2 s[36:37], s[0:1], %d" % (88 if g1 else 104))
    if not g1:
        a("s_load_dwordx2 s[38:39], s[0:1], 120")
    a("v_lshrrev_b32 v1, 6, v0")
    a("v_and_b32 v2, 63, v0")
    a("v_readfirstlane_b32 s3, v1")
    a("s_and_b32 s20, s2, 7")
    a("s_lshr_b32 s21, s2, 3")
    a("s_mul_i32 s20, s20, %d" % NQ)
    a("s_add_u32 s20, s20, s21")
    a("s_lshr_b32 s21, s20, 3")
    a("s_and_b32 s22, s20, 7")
    a("s_mul_i32 s23, s22, %d" % (2 * TPITCH))
    a("s_mul_i32 s24, s3, %d" % (S * 1024))
    a("s_add_u32 s23, s23, s24")
    a("s_add_u32 s23, s23, 0x%x" % DOFF)
    a("v_lshlrev_b32 v3, 4, v2")
    a("v_add_u32 v4, %d, v3" % TPITCH)
    a("v_lshrrev_b32 v5, 3, v2")
    a("v_and_b32 v6, 7, v2")
    a("v_lshlrev_b32 v7, 1, v5")
    a("v_and_b32 v7, 4, v7")
    a("v_xor_b32 v6, v6, v7")
    a("v_mul_u32_u24 v5, %d, v5" % PW)
    a("v_lshl_add_u32 v5, v6, 4, v5")
    a("s_lshl_b32 s24, s21, 7")
    a("v_add_u32 v5, s24, v5")
    a("s_mul_i32 s25, s3, %d" % (S * 16 * PW))
    a("s_mul_i32 s26, s3, %d" % (NS * 2048))
    a("s_waitcnt lgkmcnt(0)")
    srd(a, 8, 4, WBYTES)
    srd(a, 12, 6, WS_SIZE)
    ACC = [[16, 32], [48, 64]]
    DF = [80 + 8 * k for k in range(NS)]
    WFB = 80 + 8 * NS
    XR = WFB + 16

    a("s_and_b32 s48, s21, 3")
    a("s_lshl2_add_u32 s48, s22, s48")
    if "norot" in X:
        a("s_mov_b32 s48, 0")
    a("s_sub_u32 s49, s48, %d" % S)
    a("s_cmp_ge_u32 s48, %d" % S)
    a("s_cselect_b32 s48, s49, s48")

    def issue(st):
        sl = st % NS
        a("s_mul_i32 s27, s48, %d" % (16 * PW))
        a("s_add_u32 m0, s26, %d" % (sl * 2048))
        a("s_add_u32 s27, s27, s25")
        if "wreg" in X:
            a("buffer_load_dwordx4 v[%d:%d], v5, s[8:11], s27 offen" % (WFB + 8 * (st & 1), WFB + 8 * (st & 1) + 3))
        else:
            a("buffer_load_dwordx4 v5, s[8:11], s27 offen lds" + WH)
        a("s_add_u32 m0, s26, %d" % (sl * 2048 + 1024))
        a("s_add_u32 s27, s27, %d" % (8 * PW))
        a("s_lshl_b32 s28, s48, 10")
        if "wreg" in X:
            a("buffer_load_dwordx4 v[%d:%d], v5, s[8:11], s27 offen" % (WFB + 8 * (st & 1) + 4, WFB + 8 * (st & 1) + 7))
        else:
            a("buffer_load_dwordx4 v5, s[8:11], s27 offen lds" + WH)
        a("s_add_u32 s28, s28, s23")
        a("s_add_u32 s48, s48, 1")
        for t in range(2):
            r = DF[sl] + 4 * t
            a("buffer_load_dwordx4 v[%d:%d], v%d, s[12:15], s28 offen" % (r, r + 3, 3 + t) + DH)
        a("s_cmp_lg_u32 s48, %d" % S)
        a("s_cselect_b32 s48, s48, 0")

    if g1 and FUSED:
        a("s_mov_b32 s51, s48")
        for st in range(NS):
            a("s_mul_i32 s27, s51, %d" % (16 * PW))
            a("s_add_u32 s27, s27, s25")
            a("buffer_load_dwordx4 v[%d:%d], v5, s[8:11], s27 offen" % (DF[st], DF[st] + 3))
            a("s_add_u32 s27, s27, %d" % (8 * PW))
            a("s_add_u32 s51, s51, 1")
            a("buffer_load_dwordx4 v[%d:%d], v5, s[8:11], s27 offen" % (DF[st] + 4, DF[st] + 7))
            a("s_cmp_lg_u32 s51, %d" % S)
            a("s_cselect_b32 s51, s51, 0")
        poll_flags(a, "g1")
        a("s_waitcnt vmcnt(0)")
        a("s_barrier")
    issue(0)
    issue(1)
    srd(a, 40, 36, 3584 if g1 else 4096)
    if not g1:
        srd(a, 44, 38, 2 * MB)
    for st in range(2, NS):
        issue(st)
    a("v_lshrrev_b32 v8, 4, v2")
    a("v_and_b32 v9, 15, v2")
    a("v_lshrrev_b32 v10, 2, v9")
    a("v_and_b32 v11, 3, v9")
    a("v_lshrrev_b32 v12, 1, v8")
    a("v_lshl_add_u32 v12, v12, 3, v10")
    a("v_lshlrev_b32 v12, 7, v12")
    a("v_and_b32 v13, 1, v8")
    a("v_lshlrev_b32 v13, 1, v13")
    a("v_lshrrev_b32 v14, 1, v11")
    a("v_add_u32 v13, v13, v14")
    a("v_lshlrev_b32 v14, 1, v10")
    a("v_and_b32 v14, 4, v14")
    a("v_xor_b32 v13, v13, v14")
    a("v_lshl_add_u32 v12, v13, 4, v12")
    a("v_and_b32 v14, 1, v11")
    a("v_lshl_add_u32 v12, v14, 3, v12")
    a("v_add_u32 v12, s26, v12")
    a("v_xor_b32 v13, 64, v12")
    a("s_lshr_b32 s29, s3, 1")
    a("s_and_b32 s30, s3, 1")
    a("v_and_b32 v6, 31, v2")
    a("v_lshrrev_b32 v7, 5, v2")
    NX = 0
    if g1:
        a("s_lshl_b32 s31, s21, 7")
        a("s_lshl_b32 s32, s29, 6")
        a("s_add_u32 s31, s31, s32")
        a("v_lshlrev_b32 v14, 3, v7")
        for rq in range(4):
            a("buffer_load_dwordx2 v[%d:%d], v14, s[40:43], s31 offen offset:%d" % (XR + 2 * rq, XR + 2 * rq + 1, 16 * rq))
        NX = 4
    else:
        a("s_lshl_b32 s31, s22, 18")
        a("s_lshl_b32 s32, s21, 7")
        a("s_add_u32 s31, s31, s32")
        a("s_add_u32 s31, s31, 0x%x" % WS_AF)
        a("s_add_u32 s32, s31, 131072")
        a("v_lshrrev_b32 v14, 3, v0")
        a("v_and_b32 v15, 7, v0")
        a("v_lshlrev_b32 v15, 4, v15")
        a("v_lshl_add_u32 v15, v14, 12, v15")
        a("buffer_load_dwordx4 v[%d:%d], v15, s[12:15], s31 offen" % (XR, XR + 3))
        a("buffer_load_dwordx4 v[%d:%d], v15, s[12:15], s32 offen" % (XR + 4, XR + 7))
        a("s_lshl_b32 s33, s21, 6")
        a("s_lshl_b32 s34, s30, 5")
        a("s_add_u32 s33, s33, s34")
        a("v_add_u32 v14, s33, v6")
        a("v_lshlrev_b32 v15, 2, v14")
        a("s_mov_b32 s34, 0x%x" % WS_GT)
        a("buffer_load_dword v%d, v15, s[12:15], s34 offen" % (XR + 8))
        a("v_lshlrev_b32 v15, 1, v14")
        a("buffer_load_ushort v%d, v15, s[40:43], 0 offen" % (XR + 9))
        NX = 4
    stamp(a)

    def trreads(st):
        if "wreg" in X:
            return
        sl = st % NS
        for nu in range(2):
            for h in range(2):
                r = WFB + 8 * (st & 1) + 4 * nu + 2 * h
                a("ds_read_b64_tr_b16 v[%d:%d], v%d offset:%d" % (r, r + 1, 12 + nu, sl * 2048 + h * 512))

    def stage(st, sl, par, do_issue, wait_next, first=False):
        if wait_next is not None:
            a("s_waitcnt vmcnt(%d)" % wait_next)
            trreads2((sl + 1) % NS, par ^ 1)
            a("s_waitcnt lgkmcnt(4)")
        else:
            a("s_waitcnt lgkmcnt(0)")
        for nu in range(2):
            for t in range(2):
                wf = WFB + 8 * par + 4 * nu
                df = DF[sl] + 4 * t
                if g1:
                    acc = ACC[nu][t]
                    A_, B_ = wf, df
                else:
                    acc = ACC[t][nu]
                    A_, B_ = df, wf
                a("v_mfma_f32_32x32x16_bf16 v[%d:%d], v[%d:%d], v[%d:%d], v[%d:%d]" % (acc, acc + 15, A_, A_ + 3, B_, B_ + 3, acc, acc + 15))
        if do_issue:
            issue(sl)

    def trreads2(sl, par):
        if "wreg" in X:
            return
        for nu in range(2):
            for h in range(2):
                r = WFB + 8 * par + 4 * nu + 2 * h
                a("ds_read_b64_tr_b16 v[%d:%d], v%d offset:%d" % (r, r + 1, 12 + nu, sl * 2048 + h * 512))

    assert NS % 2 == 0
    for r in range(16, 80):
        a("v_mov_b32 v%d, 0" % r)
    NL = (S - NS) // NS
    a("s_mov_b32 s50, %d" % NL)
    a("s_waitcnt vmcnt(%d)" % (4 * (NS - 1) + NX))
    trreads2(0, 0)
    a.lab("L_g%d_loop" % which)
    for k in range(NS):
        stage(k, k, k & 1, True, 4 * (NS - 2))
    a("s_sub_u32 s50, s50, 1")
    a("s_cmp_lg_u32 s50, 0")
    a("s_cbranch_scc1 L_g%d_loop" % which)
    for st in range(NL * NS, S):
        k = st % NS
        iss = st + NS < S
        later = min(S - 1, st + NS - 1) - (st + 1)
        stage(st, k, st & 1, iss, (4 * later) if st + 1 < S else None)
        if g1 and "pf3" in X and st == S - 2:
            a("s_load_dwordx2 s[52:53], s[0:1], 96")
            a("s_lshl_b32 s56, s2, 2")
            a("s_add_u32 s56, s56, s3")
            a("s_lshl_b32 s56, s56, 13")
            a("s_waitcnt lgkmcnt(0)")
            srd(a, 52, 52, 2048 * 1792 * 2)
            for kk in range(8):
                a("buffer_load_dwordx4 v[%d:%d], v3, s[52:55], s56 offen offset:%d" % (152 + 4 * (kk & 3), 155 + 4 * (kk & 3), (kk & 3) * 1024))
                if kk == 3:
                    a("s_add_u32 s56, s56, 4096")
    stamp(a)
    F = 80
    a("s_mov_b32 s27, 0xffff0000")
    if not g1:
        a("v_lshrrev_b32 v9, 3, v0")
        a("v_mul_u32_u24 v9, %d, v9" % TP)
        a("v_and_b32 v10, 7, v0")
        a("v_lshl_add_u32 v9, v10, 4, v9")
        a("v_add_u32 v9, %d, v9" % TBASE)
        a("s_waitcnt vmcnt(0)")
        a("ds_write_b128 v9, v[%d:%d]" % (XR, XR + 3))
        a("ds_write_b128 v9, v[%d:%d] offset:%d" % (XR + 4, XR + 7, 32 * TP))
    a("s_barrier")
    a.nop(4)
    for qd in range(4):
        acc = ACC[qd >> 1][qd & 1]
        a("s_cmp_eq_u32 s3, %d" % qd)
        a("s_cbranch_scc1 L_g%d_own%d" % (which, qd))
        a("s_sub_u32 s28, s3, %d" % (qd + 1))
        a("s_and_b32 s28, s28, 3")
        a("s_add_u32 s28, s28, %d" % (qd * 3))
        a("s_lshl_b32 s28, s28, 12")
        a("v_add_u32 v8, s28, v3")
        for rq in range(4):
            a("ds_write_b128 v8, v[%d:%d] offset:%d" % (acc + 4 * rq, acc + 4 * rq + 3, rq * 1024))
        a("s_branch L_g%d_nx%d" % (which, qd))
        a.lab("L_g%d_own%d" % (which, qd))
        for k in range(8):
            a("v_pk_add_f32 v[%d:%d], v[%d:%d], 0" % (F + 2 * k, F + 2 * k + 1, acc + 2 * k, acc + 2 * k + 1))
        a.lab("L_g%d_nx%d" % (which, qd))
    a("s_mul_i32 s28, s3, %d" % (3 * 4096))
    a("v_add_u32 v8, s28, v3")
    if g1:
        a("s_lshl_b32 s32, s22, 1")
        a("s_add_u32 s32, s32, s30")
        a("s_mul_i32 s32, s32, %d" % (224 * 512))
        a("s_lshl_b32 s33, s21, 12")
        a("s_add_u32 s32, s32, s33")
        a("s_lshl_b32 s33, s29, 11")
        a("s_add_u32 s32, s32, s33")
        a("s_add_u32 s32, s32, 0x%x" % WS_GF)
        a("v_lshlrev_b32 v11, 4, v6")
        a("v_lshl_add_u32 v11, v7, 3, v11")
    else:
        a("v_lshrrev_b32 v9, 4, v2")
        a("v_and_b32 v10, 15, v2")
        a("v_lshrrev_b32 v13, 2, v10")
        a("v_lshl_add_u32 v13, v7, 2, v13")
        a("v_mul_u32_u24 v13, %d, v13" % TP)
        a("v_and_b32 v10, 3, v10")
        a("v_lshl_add_u32 v13, v10, 3, v13")
        a("v_and_b32 v9, 1, v9")
        a("v_lshl_add_u32 v13, v9, 5, v13")
        a("s_mul_i32 s32, s29, %d" % (32 * TP))
        a("s_lshl_b32 s33, s30, 6")
        a("s_add_u32 s32, s32, s33")
        a("s_add_u32 s32, s32, %d" % TBASE)
        a("v_add_u32 v13, s32, v13")
        a("v_lshlrev_b32 v14, 10, v14")
        a("v_lshl_add_u32 v14, v7, 3, v14")
        a("s_lshl_b32 s33, s22, 7")
        a("s_lshl_b32 s34, s29, 6")
        a("s_add_u32 s33, s33, s34")
    a("s_waitcnt lgkmcnt(0)")
    a("s_barrier")
    P = 96
    for rq in range(4):
        for k in range(3):
            a("ds_read_b128 v[%d:%d], v8 offset:%d" % (P + 16 * k + 4 * rq, P + 16 * k + 4 * rq + 3, k * 4096 + rq * 1024))
    if not g1:
        for rq in range(4):
            a("ds_read_b64_tr_b16 v[%d:%d], v13 offset:%d" % (16 + 2 * rq, 17 + 2 * rq, 8 * rq * TP))
        a("v_lshlrev_b32 v%d, 16, v%d" % (XR + 9, XR + 9))
        a("v_sub_f32 v%d, 1.0, v%d" % (XR + 8, XR + 8))
        bf16r(a, XR + 8)
        a("v_mov_b32 v%d, v%d" % (XR + 11, XR + 9))
        a("v_mov_b32 v%d, v%d" % (XR + 10, XR + 9))
        a("v_mov_b32 v%d, v%d" % (XR + 9, XR + 8))
    else:
        if "pf3" not in X:
            a("s_waitcnt vmcnt(0)")
        k1 = -2.0 * 0.7978845608028654 * 1.4426950408889634
        a("v_mov_b32 v16, 0x%x" % f32(k1))
        a("v_mov_b32 v17, 0x%x" % f32(k1))
        a("v_mov_b32 v18, 0x%x" % f32(k1 * 0.044715))
        a("v_mov_b32 v19, 0x%x" % f32(k1 * 0.044715))
        a("v_mov_b32 v20, 1.0")
        a("v_mov_b32 v21, 1.0")
    nrd = 12 + (0 if g1 else 4)

    def pk(op, d, x, y):
        a("v_pk_%s_f32 v[%d:%d], v[%d:%d], v[%d:%d]" % (op, d, d + 1, x, x + 1, y, y + 1))

    def rnd(base, n, tmp):
        for k in range(n // 2):
            a("v_cvt_pk_bf16_f32 v%d, v%d, v%d" % (tmp + k, base + 2 * k, base + 2 * k + 1))
        for k in range(n // 2):
            a("v_lshlrev_b32 v%d, 16, v%d" % (base + 2 * k, tmp + k))
            a("v_and_b32 v%d, s27, v%d" % (base + 2 * k + 1, tmp + k))

    for half in range(2):
        a("s_waitcnt lgkmcnt(%d)" % (nrd - 6 * (half + 1)))
        for k in range(3):
            for e in range(4):
                pk("add", F + 8 * half + 2 * e, F + 8 * half + 2 * e, P + 16 * k + 8 * half + 2 * e)
    TM = 48
    B = 32
    if g1:
        for k in range(8):
            a("v_lshlrev_b32 v%d, 16, v%d" % (B + 2 * k, XR + k))
            a("v_and_b32 v%d, s27, v%d" % (B + 2 * k + 1, XR + k))
        for e in range(8):
            pk("add", F + 2 * e, F + 2 * e, B + 2 * e)
        for e in range(8):
            pk("mul", B + 2 * e, F + 2 * e, F + 2 * e)
        for e in range(8):
            a("v_pk_fma_f32 v[%d:%d], v[%d:%d], v[18:19], v[16:17]" % (B + 2 * e, B + 2 * e + 1, B + 2 * e, B + 2 * e + 1))
        for e in range(8):
            pk("mul", B + 2 * e, B + 2 * e, F + 2 * e)
        for j in range(16):
            a("v_exp_f32 v%d, v%d" % (B + j, B + j))
        for e in range(8):
            pk("add", B + 2 * e, B + 2 * e, 20)
        for j in range(16):
            a("v_rcp_f32 v%d, v%d" % (B + j, B + j))
        a.nop(1)
        for e in range(8):
            pk("mul", F + 2 * e, F + 2 * e, B + 2 * e)
        for k in range(8):
            a("v_cvt_pk_bf16_f32 v%d, v%d, v%d" % (TM + k, F + 2 * k, F + 2 * k + 1))
        for rq in range(4):
            a("buffer_store_dwordx2 v[%d:%d], v11, s[12:15], s32 offen offset:%d" % (TM + 2 * rq, TM + 2 * rq + 1, 512 * rq))
    else:
        for e in range(8):
            pk("add", F + 2 * e, F + 2 * e, XR + 10)
        a("s_waitcnt lgkmcnt(0)")
        for k in range(8):
            a("v_lshlrev_b32 v%d, 16, v%d" % (B + 2 * k, 16 + k))
            a("v_and_b32 v%d, s27, v%d" % (B + 2 * k + 1, 16 + k))
        for e in range(8):
            a("v_pk_fma_f32 v[%d:%d], v[%d:%d], v[%d:%d], v[%d:%d]" % (F + 2 * e, F + 2 * e + 1, F + 2 * e, F + 2 * e + 1, XR + 8, XR + 9, B + 2 * e, B + 2 * e + 1))
        for k in range(8):
            a("v_cvt_pk_bf16_f32 v%d, v%d, v%d" % (TM + k, F + 2 * k, F + 2 * k + 1))
        for rq in range(4):
            a("buffer_store_dwordx2 v[%d:%d], v14, s[44:47], s33 offen offset:%d" % (TM + 2 * rq, TM + 2 * rq + 1, 16 * rq))
    stamp(a)
    dump_stamps(a, 9)
    trace_end(a, which - (1 if FUSED else 0))
    a("s_endpgm")


def kd(name, vgpr, sgpr=102):
    acc = (vgpr + 3) // 4 * 4
    return """.amdhsa_kernel %s
  .amdhsa_next_free_vgpr %d
  .amdhsa_next_free_sgpr %d
  .amdhsa_accum_offset %d
  .amdhsa_group_segment_fixed_size 0
  .amdhsa_kernarg_size 144
  .amdhsa_user_sgpr_count 2
  .amdhsa_user_sgpr_kernarg_segment_ptr 1
  .amdhsa_system_sgpr_workgroup_id_x 1
.end_amdhsa_kernel
""" % (name, vgpr, sgpr, acc)


def main(out):
    ref = open("cdna_kernels/%s.s.ref" % NAME).read()
    head = []
    for ln in ref.splitlines():
        if ln.startswith("; @launch"):
            break
        if ln.startswith("; Override") or ln.startswith("; grid=ceil"):
            continue
        head.append(ln)
    a = A()
    K1, K2, K3 = "k1_prep_kernel", "k2_gemm1_conv_kernel", "k3_gemm2_kernel"
    if not FUSED:
        head.append("; @launch kernel=%s grid=(%d,1,1) block=(256,1,1) lds=%d" % (K1, 256 if KC else 768, 32768 if KC else K1_LDS))
    head.append("; @launch kernel=%s grid=(%d,1,1) block=(256,1,1) lds=%d" % (K2, 224 + 512, K2_LDS))
    head.append("; @launch kernel=%s grid=(%d,1,1) block=(256,1,1) lds=%d" % (K3, 256, K3_LDS))
    a.L += head
    a.L.append('.amdgcn_target "amdgcn-amd-amdhsa--gfx950"')
    a.L.append(".text")

    def start(k):
        a.L.append(".globl %s" % k)
        a.L.append(".p2align 8")
        a.L.append(".type %s,@function" % k)
        a.lab(k)

    if not FUSED:
        start(K1)
        a("s_cmp_ge_u32 s2, %d" % (256 if KC else 768))
        a("s_cbranch_scc1 L_k1_exit")
        if KC:
            a("s_branch L_k1_prep")
        elif "pfirst" in X:
            a("s_cmp_lt_u32 s2, 256")
            a("s_cbranch_scc1 L_k1_prep")
            gen_kgen(a, 256)
        else:
            a("s_cmp_ge_u32 s2, 512")
            a("s_cbranch_scc1 L_k1_prep")
            gen_kgen(a, 0)
        a.lab("L_k1_exit")
        a("s_endpgm")
        a.lab("L_k1_prep")
        if "pprio" in X:
            a("s_setprio 3")
        gen_prep(a, 0 if ("pfirst" in X or KC) else 512)

    start(K2)
    a("s_cmp_ge_u32 s2, %d" % (224 + 512))
    a("s_cbranch_scc1 L_k2_exit")
    if "gfirst" in X:
        a("s_cmp_ge_u32 s2, 224")
        a("s_cbranch_scc1 L_k2_conv")
    else:
        a("s_cmp_lt_u32 s2, 512")
        a("s_cbranch_scc1 L_k2_conv")
        a("s_sub_u32 s2, s2, 512")
    if "noprio" not in X:
        a("s_setprio 3")
    gen_gemm(a, 1)
    a.lab("L_k2_exit")
    a("s_endpgm")
    a.lab("L_k2_conv")
    if FUSED:
        a.cur = "conv"
        trace_begin(a)
        a("s_cmp_ge_u32 s2, 256")
        a("s_cbranch_scc1 L_k2_kgen")
        gen_prep(a, 0)
        a.lab("L_k2_kgen")
        gen_kgen(a, 0)
    elif KC:
        a.cur = "conv"
        trace_begin(a)
        gen_kgen(a, 0)
    gen_conv(a, 224 if "gfirst" in X else 0)

    start(K3)
    a("s_cmp_ge_u32 s2, 256")
    a("s_cbranch_scc1 L_k3_exit")
    gen_gemm(a, 2)
    a.lab("L_k3_exit")
    a("s_endpgm")

    a.L.append('.section .rodata,"a"')
    for k, v in ((K1, 144), (K2, 168), (K3, 176))[1 if FUSED else 0:]:
        a.L.append(".p2align 6")
        a.L.append(kd(k, v))
    open(out, "w").write("\n".join(a.L) + "\n")


if __name__ == "__main__":
    main(sys.argv[1] if len(sys.argv) > 1 else "cdna_kernels/%s.s" % NAME)
```
